```python
import torch

def _softmax(x, axis=-1):
    return torch.softmax(x, dim=axis)
def _gelu(x):
    return torch.nn.functional.gelu(x, approximate="tanh")
def _silu(x):
    return torch.nn.functional.silu(x)
def _sigmoid(x):
    return torch.sigmoid(x)
def _layernorm(x, axis=-1, eps=1e-5):
    m = x.mean(dim=axis, keepdim=True)
    v = x.var(dim=axis, keepdim=True, unbiased=False)
    return (x - m) / torch.sqrt(v + eps)
def _scatter_add(tgt, idx, src, axis=0):
    return tgt.clone().index_add_(axis, idx, src)
def _segment_sum(src, seg, n):
    out = torch.zeros((n,) + src.shape[1:], dtype=src.dtype)
    return out.index_add_(0, seg, src)
def _pad(x, pw):
    flat = tuple(v for pair in reversed(pw) for v in pair)
    return torch.nn.functional.pad(x, flat)

kernel_name = 'recurrent_scan__compressed_kv_cla__geglu_ffn__decode'

def setup_inputs():

    _w = (lambda a: (lambda t: t.to(torch.bfloat16) if t.is_floating_point() else t)(torch.as_tensor(a)))
    def _A_setup():
        B, H, Sq, Sk, D, M = 1, 32, 1, 16384, 128, 512
        Dc = 4 * D
        return {
            "x": _w((lambda *s: torch.randn(*s, dtype=torch.bfloat16) * 0.05)(B, Sq, M)),
            "c_kv": _w((lambda *s: torch.randn(*s, dtype=torch.bfloat16) * 0.8)(B, Sk, Dc)),
            "w_q": _w((lambda *s: torch.randn(*s, dtype=torch.bfloat16) * 1.6)(M, H, D) * (M ** -0.5)),
            "w_uk": _w((lambda *s: torch.randn(*s, dtype=torch.bfloat16) * 1.6)(Dc, H, D) * (Dc ** -0.5)),
            "w_uv": _w((lambda *s: torch.randn(*s, dtype=torch.bfloat16) * 0.8)(Dc, H, D) * (Dc ** -0.5)),
            "w_o": _w((lambda *s: torch.randn(*s, dtype=torch.bfloat16) * 0.8)(H, D, M) * ((H * D) ** -0.5)),
        }
    _A_in = _A_setup()

    def _B_setup():
        B, S, D, F = 1, 1, 512, 1792
        return {
            "x": _w((lambda *s: torch.randn(*s, dtype=torch.bfloat16) * 0.05)(B, S, D)),
            "w_gate": _w((lambda *s: torch.randn(*s, dtype=torch.bfloat16) * 0.2)(D, F)),
            "w_up": _w((lambda *s: torch.randn(*s, dtype=torch.bfloat16) * 0.2)(D, F)),
            "w_down": _w((lambda *s: torch.randn(*s, dtype=torch.bfloat16) * 0.2)(F, D)),
        }
    _B_in = _B_setup()

    return {
        "A_x": _A_in["x"],
        "A_c_kv": _A_in["c_kv"],
        "A_w_q": _A_in["w_q"],
        "A_w_uk": _A_in["w_uk"],
        "A_w_uv": _A_in["w_uv"],
        "A_w_o": _A_in["w_o"],
        "B_x": _B_in["x"],
        "B_w_gate": _B_in["w_gate"],
        "B_w_up": _B_in["w_up"],
        "B_w_down": _B_in["w_down"],
    }

def reference(A_x, A_c_kv, A_w_q, A_w_uk, A_w_uv, A_w_o, B_x, B_w_gate, B_w_up, B_w_down):
    def _A_ref(x, c_kv, w_q, w_uk, w_uv, w_o):
        B, Sq, M = x.shape[0], x.shape[1], x.shape[2]
        Sk = c_kv.shape[1]
        H, D = w_q.shape[1], w_q.shape[2]
        q = torch.einsum("bqm,mhd->bhqd", x, w_q)
        k = torch.einsum("bkc,chd->bhkd", c_kv, w_uk)
        v = torch.einsum("bkc,chd->bhkd", c_kv, w_uv)
        scores = torch.einsum("bhqd,bhkd->bhqk", q, k) * (D ** -0.5)
        off = Sk - Sq
        qi = torch.arange(Sq)[:, None]
        kj = torch.arange(Sk)[None, :]
        cmask = kj <= (qi + off)
        scores = torch.where(cmask[None, None], scores, -1e9)
        p = _softmax(scores, axis=-1)
        ctx = torch.einsum("bhqk,bhkd->bhqd", p, v)
        return torch.einsum("bhqd,hdm->bqm", ctx, w_o)

    def _B_ref(x, w_gate, w_up, w_down):
        return (_gelu(x @ w_gate) * (x @ w_up)) @ w_down

    x = A_x
    xn = _layernorm(x, axis=-1)
    s = _A_ref(xn, A_c_kv, A_w_q, A_w_uk, A_w_uv, A_w_o)
    g = _silu(_B_ref(xn, B_w_gate, B_w_up, B_w_down))
    return x + s * g
```

```python
import re

REG_RE = re.compile(r'^(v|a|s)(\d+)$')
RNG_RE = re.compile(r'^(v|a|s)\[(\d+):(\d+)\]$')
TRANS = ('v_exp_f32', 'v_log_f32', 'v_rcp_f32', 'v_rsq_f32', 'v_sqrt_f32', 'v_sin_f32', 'v_cos_f32')


def regs_of(tok):
    tok = tok.strip()
    if tok.startswith('-'):
        tok = tok[1:]
    if tok.startswith('abs(') or tok.startswith('|'):
        tok = tok.strip('|')
        tok = tok.replace('abs(', '').rstrip(')')
    m = REG_RE.match(tok)
    if m:
        k, i = m.group(1), int(m.group(2))
        return {('v', i + 256)} if k == 'a' else {(k, i)}
    m = RNG_RE.match(tok)
    if m:
        k, lo, hi = m.group(1), int(m.group(2)), int(m.group(3))
        return {(('v', i + 256) if k == 'a' else (k, i)) for i in range(lo, hi + 1)}
    if tok == 'vcc':
        return {('s', 106), ('s', 107)}
    if tok == 'vcc_lo':
        return {('s', 106)}
    if tok == 'vcc_hi':
        return {('s', 107)}
    if tok == 'exec':
        return {('s', 126), ('s', 127)}
    if tok == 'exec_lo':
        return {('s', 126)}
    if tok == 'exec_hi':
        return {('s', 127)}
    if tok == 'm0':
        return {('s', 124)}
    return set()


class Ins:
    __slots__ = ('text', 'op', 'kind', 'wr', 'rd', 'srcab', 'srcc', 'dpp', 'states', 'stdata', 'wide', 'lanesel')

    def __init__(self, text):
        self.text = text
        t = text.split(';')[0].strip()
        parts = t.split(None, 1)
        op = parts[0]
        self.op = op
        rest = parts[1] if len(parts) > 1 else ''
        ops = [o.strip() for o in rest.split(',')] if rest else []
        mods = ''
        if ops:
            m = re.search(r'\s(quad_perm:\[[^\]]*\]|op_sel[a-z_]*:\[[^\]]*\]|neg_[a-z]*:\[[^\]]*\])', rest)
            if m:
                head = rest[:m.start()]
                mods = rest[m.start():]
                ops = [o.strip() for o in head.split(',')]
            last = ops[-1].split(None, 1)
            ops[-1] = last[0]
            if len(last) > 1:
                mods = last[1] + ' ' + mods
        R = [regs_of(o) for o in ops]
        self.wr = set(); self.rd = set(); self.srcab = set(); self.srcc = set()
        self.dpp = set(); self.states = 1; self.stdata = set(); self.wide = False; self.lanesel = set()
        U = lambda xs: set().union(*xs) if xs else set()
        if op == 's_nop':
            self.kind = 'nop'; self.states = int(ops[0], 0) + 1
        elif op.startswith('v_mfma'):
            self.kind = 'mfma'; self.wr = R[0]; self.srcab = R[1] | R[2]; self.srcc = R[3]; self.rd = self.srcab | self.srcc
            assert '16x16x32' in op, 'only 4-pass mfma modelled'
        elif op.startswith('v_'):
            self.kind = 'valu'
            if op.startswith('v_permlane') or op.startswith('v_swap'):
                self.wr = R[0] | R[1]; self.rd = R[0] | R[1]
            elif op.startswith('v_add_co') or op.startswith('v_sub_co') or op.startswith('v_addc_co'):
                self.wr = R[0] | R[1]; self.rd = U(R[2:])
            else:
                self.wr = R[0]; self.rd = U(R[1:])
                if op.startswith('v_fmac') or op.startswith('v_writelane') or '_dpp' in op:
                    self.rd |= R[0]
            if op.startswith('v_cndmask') and len(ops) == 3:
                self.rd |= regs_of('vcc')
            if '_dpp' in op:
                self.dpp = R[1]
            if op.startswith('v_readlane') or op.startswith('v_writelane'):
                self.lanesel = R[2]
        elif op.startswith('ds_'):
            self.kind = 'ds'
            if 'read' in op or '_rtn' in op or 'permute' in op or 'swizzle' in op:
                self.wr = R[0]; self.rd = U(R[1:])
            else:
                self.rd = U(R)
        elif op.startswith('global_load_lds'):
            self.kind = 'vmem'; self.rd = U(R) | regs_of('m0')
        elif op.startswith('global_load') or op.startswith('buffer_load'):
            self.kind = 'vmem'; self.wr = R[0]; self.rd = U(R[1:])
        elif op.startswith('global_atomic') and ' sc0' in t:
            self.kind = 'vmem'; self.wr = R[0]; self.rd = U(R[1:])
        elif op.startswith('global_store') or op.startswith('global_atomic'):
            self.kind = 'vmem'; self.rd = U(R); self.stdata = R[1]
            self.wide = op.endswith('x4') or op.endswith('x3')
        elif op.startswith('s_'):
            self.kind = 'salu'
            if op.startswith(('s_cmp', 's_waitcnt', 's_branch', 's_cbranch', 's_barrier', 's_sleep', 's_setprio', 's_endpgm', 's_bitcmp')):
                self.rd = U(R)
            else:
                self.wr = R[0]; self.rd = U(R[1:])
                if 'saveexec' in op:
                    self.wr = self.wr | regs_of('exec')
        else:
            raise ValueError('unknown op ' + text)


def need_states(prev, cur):
    n = 0
    V = lambda s: {r for r in s if r[0] == 'v'}
    S = lambda s: {r for r in s if r[0] == 's'}
    if prev.kind == 'valu':
        wv, ws = V(prev.wr), S(prev.wr)
        if cur.kind == 'mfma' and wv & cur.rd: n = max(n, 2)
        if cur.kind == 'valu':
            if cur.dpp & wv: n = max(n, 2)
            if cur.op.startswith('v_permlane') and wv & cur.rd: n = max(n, 2)
            if cur.op.startswith(('v_readlane', 'v_readfirstlane')) and wv & cur.rd: n = max(n, 1)
            if ws & cur.rd: n = max(n, 2)
            if ws & cur.lanesel: n = max(n, 4)
            if prev.op.startswith(TRANS) and (wv & cur.rd): n = max(n, 1)
        if cur.kind in ('ds', 'vmem') and prev.op.startswith(TRANS) and (wv & cur.rd): n = max(n, 1)
        if cur.kind == 'vmem' and ws & cur.rd: n = max(n, 5)
        if cur.kind == 'salu' and ws & cur.rd: n = max(n, 1)
    if prev.kind == 'mfma':
        if cur.kind == 'mfma':
            if prev.wr & cur.srcab: n = max(n, 8)
            if prev.wr & cur.srcc and prev.wr != cur.srcc: n = max(n, 6)
            if prev.wr & cur.wr and not (prev.wr == cur.srcc): n = max(n, 8)
        elif cur.kind in ('valu', 'ds', 'vmem'):
            if prev.wr & (cur.rd | cur.wr): n = max(n, 8)
            if cur.kind == 'valu' and prev.srcc & cur.wr: n = max(n, 3)
    if prev.kind == 'salu':
        if ('s', 124) in prev.wr and cur.kind == 'vmem' and ('s', 124) in cur.rd: n = max(n, 1)
    if prev.kind == 'vmem' and prev.wide:
        if prev.stdata & cur.wr: n = max(n, 2)
    return n


class Asm:
    def __init__(self):
        self.out = []
        self.paths = [[]]
        self.pending = {}
        self.labels = {}
        self.seq = []
        self.uid = 0

    def _required(self, hist, ins):
        dist = 0
        need = 0
        for p in reversed(hist):
            r = need_states(p, ins)
            if r > dist:
                need = max(need, r - dist)
            dist += p.states
            if dist > 12:
                break
        return need

    def _push(self, ins):
        self.out.append('    ' + ins.text)
        self.seq.append(ins)
        for h in self.paths:
            h.append(ins)
            del h[:-14]
        if len(self.paths) > 1 and all(h[-13:] == self.paths[0][-13:] and len(h) >= 13 for h in self.paths):
            self.paths = [self.paths[0]]

    def __call__(self, text):
        for line in text.strip().split('\n'):
            line = line.strip()
            if not line or line.startswith(';'):
                continue
            self.emit(line)

    def emit(self, text):
        ins = Ins(text)
        need = max(self._required(h, ins) for h in self.paths)
        if ins.op.startswith(('s_branch', 's_cbranch')):
            tgt = text.split()[1]
            if tgt in self.labels:
                idx = self.labels[tgt]
                head = self.seq[idx:idx + 12]
                for h in self.paths:
                    sim = list(h) + [ins]
                    for k in head:
                        r = self._required(sim, k)
                        need = max(need, r)
                        sim.append(k)
        if need > 0:
            self._push(Ins('s_nop %d' % (need - 1)))
        self._push(ins)
        if ins.op.startswith(('s_branch', 's_cbranch')):
            tgt = text.split()[1]
            if tgt not in self.labels:
                self.pending.setdefault(tgt, []).extend([list(h) for h in self.paths])
            if ins.op == 's_branch':
                self.paths = [[]]
        if ins.op == 's_endpgm':
            self.paths = [[]]

    def label(self, name):
        self.out.append(name + ':')
        self.labels[name] = len(self.seq)
        self.paths.extend(self.pending.pop(name, []))

    def raw(self, text):
        self.out.append(text)

    def newlabel(self, base):
        self.uid += 1
        return 'L_%s_%d' % (base, self.uid)

    def text(self):
        return '\n'.join(self.out) + '\n'
```

```python
import sys
from asmlib import Asm

NAME = 'recurrent_scan__compressed_kv_cla__geglu_ffn__decode'
STAMPS = '--stamps' in sys.argv
MIMIC = True

W_EPOCH = 0
W_QP = 0x10000
W_ST = 0x30000
W_FP = 0x38000
W_SP = 0x60000
W_OP = 0x200000
W_STAMP = 0x800000
LB = 131072
QL = 131072
PL = 147712
XT = 151808
XR = 153856
Z = 154880
QSUM = Z + 0
CL = Z + 256
CX = Z + 768
FS = Z + 1024
FIN = Z + 1536
LS = Z + 1600
FL = Z + 1664
F_QS, F_QL, F_H1, F_MX, F_P, F_CL, F_CX, F_FS, F_FIN, F_QOK = [FL + 4 * k for k in range(10)]
MX = Z + 2048
LDS_BYTES = MX + 64

sWave, sW, sX, sI, sA, sH, sDH, sCQ, sKB, sHG, sI15 = ['s%d' % k for k in range(3, 14)]
sT0, sT1 = 's14', 's15'
pX, pCKV, pWQ, pWUK, pWUV, pWO, pBX, pWG, pWU, pWD, pOUT, pDBG, pWS = ['s[%d:%d]' % (16 + 2 * k, 17 + 2 * k) for k in range(13)]
sT2, sT3, sT4, sT5 = 's42', 's43', 's44', 's45'
sHD = 's46'
sFG1 = 's47'
sTag = ['s48', 's49', 's50', 's51']
sEp = 's52'
sBudL, sBudG = 's53', 's54'
sK64 = 's55'
pB = 's[56:57]'; pBlo, pBhi = 's56', 's57'
pC = 's[58:59]'; pClo, pChi = 's58', 's59'
mVALID = 's[92:93]'
mT0 = 's[94:95]'; mT1 = 's[96:97]'; mT2 = 's[98:99]'
vLane, vI, vG, vR8, vCH, vL16, vLB = ['v%d' % k for k in range(1, 8)]
vM = ['v8', 'v9', 'v10', 'v11']
vOne = 'v12'
vF = 'v13'


def v(n, cnt=1):
    return 'v%d' % n if cnt == 1 else 'v[%d:%d]' % (n, n + cnt - 1)


a = Asm()
stamp_used = []


def stamp(k):
    if STAMPS:
        a('s_memrealtime s[%d:%d]' % (60 + 2 * k, 61 + 2 * k))


def flag_add(flag, restore=True):
    a('s_mov_b64 exec, 1')
    a('ds_add_u32 %s, %s offset:%d' % (vLB, vOne, flag - LB))
    if restore:
        a('s_mov_b64 exec, -1')


def spin(flag, target, reads=(), sleep=0):
    L = a.newlabel('spin'); D = a.newlabel('spind')
    a.label(L)
    a('ds_read_b32 %s, %s offset:%d' % (vF, vLB, flag - LB))
    for r in reads:
        a(r)
    a('s_waitcnt lgkmcnt(0)')
    a('v_readfirstlane_b32 %s, %s' % (sT0, vF))
    a('s_cmp_ge_u32 %s, %d' % (sT0, target))
    a('s_cbranch_scc1 %s' % D)
    if sleep:
        a('s_sleep %d' % sleep)
    a('s_sub_u32 %s, %s, 1' % (sBudL, sBudL))
    a('s_cbranch_scc0 %s' % L)
    a('s_mov_b32 %s, 0' % sBudL)
    a.label(D)


def retry_tail(L, D, sleep=2):
    a('s_cbranch_vccz %s' % D)
    if sleep:
        a('s_sleep %d' % sleep)
    a('s_sub_u32 %s, %s, 1' % (sBudG, sBudG))
    a('s_cbranch_scc0 %s' % L)
    a('s_mov_b32 %s, 0' % sBudG)
    a.label(D)


def allreduce(op, x, t):
    for r in (8, 4, 2, 1):
        a('%s_dpp %s, %s, %s row_ror:%d row_mask:0xf bank_mask:0xf' % (op, x, x, x, r))
    a('v_mov_b32 %s, %s' % (t, x))
    a('v_permlane16_swap_b32 %s, %s' % (x, t))
    a('%s %s, %s, %s' % (op, x, x, t))
    a('v_mov_b32 %s, %s' % (t, x))
    a('v_permlane32_swap_b32 %s, %s' % (x, t))
    a('%s %s, %s, %s' % (op, x, x, t))


def rnd_bf16(dst, src):
    a('v_cvt_pk_bf16_f32 %s, %s, %s' % (dst, src, src))
    a('v_and_b32 %s, 0xffff0000, %s' % (dst, dst))


def mfma(d, A, B, c=None):
    a('v_mfma_f32_16x16x32_bf16 %s, %s, %s, %s' % (v(d, 4), v(A, 4), v(B, 4), '0' if c is None else v(c, 4)))


def masks():
    a('v_and_b32 v14, 1, %s' % vCH)
    a('v_lshlrev_b32 v14, 4, v14')
    a('v_mov_b32 v15, 0xffff')
    a('v_lshlrev_b32 v14, v14, v15')
    a('v_lshrrev_b32 v15, 1, %s' % vCH)
    for r in range(4):
        a('v_cmp_eq_u32 vcc, %d, v15' % r)
        a('v_cndmask_b32 %s, 0, v14, vcc' % vM[r])


def dump_stamps():
    if not STAMPS:
        return
    a('s_waitcnt lgkmcnt(0)')
    a('s_mov_b64 exec, -1')
    a('v_mov_b32 v14, 0')
    for k in range(16):
        a('v_writelane_b32 v14, s%d, %d' % (60 + 2 * k, k))
    a('s_lshl_b32 %s, s2, 3' % sT0)
    a('s_add_u32 %s, %s, %s' % (sT0, sT0, sWave))
    a('s_lshl_b32 %s, %s, 6' % (sT0, sT0))
    a('s_add_u32 %s, %s, 0x%x' % (sT0, sT0, W_STAMP))
    a('v_lshl_add_u32 v15, %s, 2, %s' % (vLane, sT0))
    a('s_mov_b64 exec, 0xffff')
    a('global_store_dword v15, v14, %s' % pWS)


a.label('L_code_start')
a('s_cmpk_gt_u32 s2, 255')
a('s_cbranch_scc1 L_end')
a('s_load_dwordx16 s[16:31], s[0:1], 0')
a('s_load_dwordx8 s[32:39], s[0:1], 64')
a('s_load_dwordx2 s[40:41], s[0:1], 96')
if STAMPS:
    for k in range(1, 16):
        a('s_mov_b32 s%d, 0' % (60 + 2 * k))
stamp(0)
a('v_lshrrev_b32 v14, 6, v0')
a('v_and_b32 %s, 63, v0' % vLane)
a('v_readfirstlane_b32 %s, v14' % sWave)
a('s_and_b32 %s, s2, 7' % sX)
a('s_lshr_b32 %s, s2, 3' % sI)
a('s_lshr_b32 %s, s2, 7' % sA)
a('s_bfe_u32 %s, s2, 0x10006' % sT0)
a('s_lshl_b32 %s, %s, 4' % (sH, sA))
a('s_lshl1_add_u32 %s, %s, %s' % (sT0, sX, sT0))
a('s_add_u32 %s, %s, %s' % (sH, sH, sT0))
a('s_bfe_u32 %s, s2, 0x10005' % sDH)
a('s_and_b32 %s, %s, 3' % (sCQ, sI))
a('s_lshl1_add_u32 %s, %s, %s' % (sHD, sH, sDH))
a('s_lshl_b32 %s, %s, 7' % (sHD, sHD))
a('s_and_b32 %s, %s, 3' % (sW, sWave))
a('v_lshrrev_b32 %s, 3, %s' % (vR8, vLane))
a('v_and_b32 %s, 7, %s' % (vCH, vLane))
a('v_lshlrev_b32 v16, 13, %s' % vR8)
a('v_lshl_or_b32 v16, %s, 4, v16' % vCH)
a('v_and_b32 %s, 15, %s' % (vI, vLane))
a('v_lshrrev_b32 %s, 4, %s' % (vG, vLane))
a('v_lshlrev_b32 %s, 4, %s' % (vL16, vLane))
a('s_mov_b32 %s, 0x10000' % sK64)
a('s_cmp_ge_u32 %s, 4' % sWave)
a('s_cbranch_scc1 L_stream')

WQ = 64; WUK = 128; XD = 144; AP = 160; ACCQ = 168; QR = 172; QB = 188; D2 = 196
a('s_lshl_b32 %s, %s, 20' % (sT0, sW))
a('s_add_u32 %s, %s, %s' % (sT0, sT0, sHD))
a('v_add_u32 v17, %s, v16' % sT0)
a('v_mov_b32 v18, 0')
a('s_lshl2_add_u32 %s, %s, %s' % (sT1, sCQ, sW))
a('s_lshl_b32 %s, %s, 18' % (sT1, sT1))
a('s_add_u32 %s, %s, %s' % (sT1, sT1, sHD))
a('v_lshlrev_b32 v19, 13, %s' % vI)
a('v_lshl_or_b32 v19, %s, 4, v19' % vG)
a('v_add_u32 v19, %s, v19' % sT1)
a('v_add_u32 v20, 0x20000, v19')
a('s_waitcnt lgkmcnt(0)')
for t in range(16):
    a('global_load_dwordx4 %s, v17, %s nt' % (v(WQ + 4 * t, 4), pWQ))
    if t < 15:
        a('v_add_u32 v17, %s, v17' % sK64)
a('global_load_dwordx4 %s, v19, %s nt' % (v(WUK + 0, 4), pWUK))
a('global_load_dwordx4 %s, v19, %s offset:64 nt' % (v(WUK + 4, 4), pWUK))
a('global_load_dwordx4 %s, v20, %s nt' % (v(WUK + 8, 4), pWUK))
a('global_load_dwordx4 %s, v20, %s offset:64 nt' % (v(WUK + 12, 4), pWUK))
a('global_load_dword v21, v18, %s sc1' % pWS)
stamp(1)
a('s_branch L_front')

a.label('L_stream')
X4 = 20; XF = 24; PZ = 40
a('v_mov_b32 %s, -1' % v(PZ))
a('v_mov_b32 %s, -1' % v(PZ + 1))
a('v_mov_b32 %s, -1' % v(PZ + 2))
a('v_mov_b32 %s, -1' % v(PZ + 3))
a('s_getpc_b64 %s' % pC)
a.label('L_pc')
a('s_sub_u32 %s, %s, L_pc-L_code_start' % (pClo, pClo))
a('s_subb_u32 %s, %s, 0' % (pChi, pChi))
a('v_lshlrev_b32 v14, 6, v0')
a('v_and_b32 v14, 0x3fff, v14')
a('v_min_u32 v14, L_code_end-L_code_start-4, v14')
a('global_load_dword v63, v14, %s' % pC)
a('s_and_b32 %s, %s, 15' % (sI15, sI))
a('s_lshl4_add_u32 %s, %s, %s' % (sKB, sX, sI15))
a('s_xor_b32 %s, %s, 1' % (sHG, sA))
a('s_waitcnt lgkmcnt(0)')
a('global_load_dwordx4 %s, %s, %s' % (v(X4, 4), vL16, pX))
a('s_lshl_b32 %s, %s, 21' % (sT0, sHG))
a('s_lshl_b32 %s, %s, 15' % (sT1, sW))
a('s_add_u32 %s, %s, %s' % (sT0, sT0, sT1))
a('s_lshl_b32 %s, %s, 8' % (sT1, sKB))
a('s_add_u32 %s, %s, %s' % (sT0, sT0, sT1))
a('s_add_u32 %s, %s, 0x%x' % (sT0, sT0, W_OP))
a('v_lshlrev_b32 v17, 19, %s' % vG)
a('v_lshl_or_b32 v17, %s, 4, v17' % vI)
a('v_add_u32 v17, %s, v17' % sT0)
for r in range(4):
    a('global_store_dwordx4 v17, %s, %s sc1' % (v(PZ, 4), pWS))
    if r < 3:
        a('v_add_u32 v17, 0x20000, v17')
vSPA = 'v18'
a('s_lshl_b32 %s, %s, 18' % (sT0, sW))
a('s_lshl_b32 %s, s2, 6' % sT1)
a('s_add_u32 %s, %s, %s' % (sT0, sT0, sT1))
a('s_add_u32 %s, %s, 0x%x' % (sT0, sT0, W_SP))
a('v_lshlrev_b32 %s, 14, %s' % (vSPA, vI))
a('v_lshl_or_b32 %s, %s, 4, %s' % (vSPA, vG, vSPA))
a('v_add_u32 %s, %s, %s' % (vSPA, sT0, vSPA))
a('global_store_dwordx4 %s, %s, %s sc1' % (vSPA, v(PZ, 4), pWS))
vFPA = 'v19'
a('s_min_u32 %s, %s, 13' % (sT2, sI15))
a('s_mul_i32 %s, %s, 14' % (sFG1, sA))
a('s_add_u32 %s, %s, %s' % (sFG1, sFG1, sT2))
a('s_lshl_b32 %s, %s, 12' % (sT0, sFG1))
a('s_lshl_b32 %s, %s, 6' % (sT1, sX))
a('s_add_u32 %s, %s, %s' % (sT0, sT0, sT1))
a('s_add_u32 %s, %s, 0x%x' % (sT0, sT0, W_FP))
a('v_bfe_u32 v14, %s, 2, 3' % vLane)
a('v_lshlrev_b32 v14, 9, v14')
a('v_and_b32 %s, 3, %s' % (vFPA, vLane))
a('v_lshl_or_b32 %s, %s, 4, v14' % (vFPA, vFPA))
a('v_add_u32 %s, %s, %s' % (vFPA, sT0, vFPA))
a('s_lshr_b32 %s, %s, 3' % (sT0, sKB))
a('s_and_b32 %s, %s, 3' % (sT1, sKB))
a('s_lshl2_add_u32 %s, %s, %s' % (sT0, sT0, sT1))
a('s_bfe_u32 %s, %s, 0x10002' % (sT1, sKB))
a('s_lshl1_add_u32 %s, %s, %s' % (sT0, sT0, sT1))
a('s_lshl_b32 %s, %s, 3' % (sT0, sT0))
a('s_lshl_b32 %s, %s, 14' % (sT1, sHG))
a('s_add_u32 %s, %s, %s' % (sT0, sT0, sT1))
a('s_add_u32 %s, %s, 0x%x' % (sT0, sT0, W_ST))
a('v_lshl_add_u32 v50, %s, 10, %s' % (vI, sT0))
a('v_mov_b32 %s, 0x%x' % (vLB, LB))
a('v_mov_b32 %s, 1' % vOne)
a('v_mov_b32 v44, 0')
a('v_mov_b32 v45, 0')
a('v_mov_b32 v46, 0')
a('v_mov_b32 v47, 0')
a('v_add_u32 v48, %s, %s' % (vLB, vL16))
a('ds_write_b128 v48, v[44:47] offset:%d' % (Z - LB))
a('ds_write_b128 v48, v[44:47] offset:%d' % (Z + 1024 - LB))
a('v_mov_b32 v44, 0xff800000')
a('v_lshl_add_u32 v49, %s, 2, %s' % (vI, vLB))
a('ds_write_b32 v49, v44 offset:%d' % (MX - LB))
masks()
a('s_mov_b32 %s, 0x200000' % sBudL)
a('s_mov_b32 %s, 8192' % sBudG)
a('s_mov_b32 s92, 0x00ff00ff')
a('s_mov_b32 s93, 0xff00ff00')
a('s_waitcnt vmcnt(5)')
a('ds_write_b128 v48, %s offset:%d' % (v(X4, 4), XR - LB))
for k in range(4):
    a('v_lshlrev_b32 %s, 16, %s' % (v(XF + 2 * k), v(X4 + k)))
    a('v_and_b32 %s, 0xffff0000, %s' % (v(XF + 2 * k + 1), v(X4 + k)))
a('v_add_f32 v32, %s, %s' % (v(XF), v(XF + 1)))
a('v_add_f32 v33, %s, %s' % (v(XF + 2), v(XF + 3)))
a('v_add_f32 v34, %s, %s' % (v(XF + 4), v(XF + 5)))
a('v_add_f32 v35, %s, %s' % (v(XF + 6), v(XF + 7)))
a('v_add_f32 v32, v32, v33')
a('v_add_f32 v34, v34, v35')
a('v_add_f32 v32, v32, v34')
allreduce('v_add_f32', 'v32', 'v33')
a('v_mul_f32 v32, 0x3b000000, v32')
a('v_sub_f32 v33, %s, v32' % v(XF))
a('v_mul_f32 v34, v33, v33')
for k in range(1, 8):
    a('v_sub_f32 v33, %s, v32' % v(XF + k))
    a('v_fmac_f32 v34, v33, v33')
allreduce('v_add_f32', 'v34', 'v33')
a('v_mul_f32 v34, 0x3b000000, v34')
rnd_bf16('v32', 'v32')
rnd_bf16('v34', 'v34')
a('v_add_f32 v34, 0x3727c5ac, v34')
rnd_bf16('v34', 'v34')
a('v_sqrt_f32 v34, v34')
rnd_bf16('v34', 'v34')
a('v_rcp_f32 v34, v34')
a('v_lshlrev_b32 v35, 9, %s' % vG)
a('v_lshl_add_u32 v35, %s, 2, v35' % vI)
a('v_add_u32 v35, %s, v35' % vLB)
for k in range(8):
    a('v_sub_f32 %s, %s, v32' % (v(XF + k), v(XF + k)))
for k in range(8):
    rnd_bf16(v(XF + k), v(XF + k))
for k in range(8):
    a('v_mul_f32 %s, %s, v34' % (v(XF + k), v(XF + k)))
for k in range(8):
    a('v_cvt_pk_bf16_f32 %s, %s, %s' % (v(XF + k), v(XF + k), v(XF + k)))
    a('ds_write_b32 v35, %s offset:%d' % (v(XF + k), XT - LB + 64 * k))
a('s_cmp_lg_u32 %s, 0' % sW)
a('s_cbranch_scc1 L_nost')
a('s_mov_b64 exec, 0xffff')
a('global_store_dwordx2 v50, %s, %s sc1' % (v(PZ, 2), pWS))
a('s_cmp_gt_u32 %s, 13' % sI15)
a('s_cbranch_scc1 L_nost')
a('s_mov_b32 exec_lo, -1'); a('s_mov_b32 exec_hi, 0')
a('global_store_dwordx4 %s, %s, %s sc1' % (vFPA, v(PZ, 4), pWS))
a.label('L_nost')
a('s_mov_b64 exec, -1')
DA = 20
a('s_and_b32 %s, %s, 1' % (sT0, sW))
a('s_lshl_b32 %s, %s, 3' % (sT0, sT0))
a('s_lshr_b32 %s, %s, 1' % (sT1, sW))
a('s_add_u32 %s, %s, %s' % (sT0, sT0, sT1))
a('s_lshl_b32 %s, %s, 4' % (sT0, sT0))
a('v_xor_b32 %s, %s, %s' % (v(DA), sT0, vL16))
a('v_xor_b32 %s, 32, %s' % (v(DA + 1), v(DA)))
a('v_xor_b32 %s, 64, %s' % (v(DA + 2), v(DA)))
a('v_xor_b32 %s, 0x60, %s' % (v(DA + 3), v(DA)))
a('s_lshl_b32 %s, %s, 17' % (sT0, sKB))
a('s_lshl_b32 %s, %s, 12' % (sT1, sW))
a('s_add_u32 %s, %s, %s' % (sT0, sT0, sT1))
a('s_add_u32 %s, s18, %s' % (pBlo, sT0))
a('s_addc_u32 %s, s19, 0' % pBhi)
a('s_mov_b32 m0, %s' % sT1)
a('s_waitcnt lgkmcnt(0)')
stamp(1)
a('s_barrier')
stamp(2)


def dma_block():
    for q in range(4):
        a('global_load_lds_dwordx4 %s, %s offset:%d nt' % (v(DA + q), pB, 1024 * q))
    a('s_add_u32 %s, %s, 0x4000' % (pBlo, pBlo))
    a('s_addc_u32 %s, %s, 0' % (pBhi, pBhi))
    a('s_add_u32 m0, m0, 0x4000')


GU = 64; WUV = 80; WD = 96; WO = 104; FA = 168
dma_block()
dma_block()
a('s_waitcnt vmcnt(8)')
flag_add(F_QS)
stamp(3)
a('s_lshr_b32 %s, %s, 1' % (sT0, sX))
a('s_lshl_b32 %s, %s, 9' % (sT0, sT0))
a('s_and_b32 %s, %s, 1' % (sT1, sX))
a('s_lshl_b32 %s, %s, 5' % (sT1, sT1))
a('s_add_u32 %s, %s, %s' % (sT0, sT0, sT1))
a('s_lshr_b32 %s, %s, 1' % (sT1, sW))
a('s_lshl_b32 %s, %s, 4' % (sT1, sT1))
a('s_add_u32 %s, %s, %s' % (sT0, sT0, sT1))
a('s_add_u32 %s, %s, 0x%x' % (sT0, sT0, XT))
a('v_lshl_add_u32 v14, %s, 6, %s' % (vR8, sT0))
a('ds_read_b128 v[24:27], v14')
dma_block()
dma_block()
dma_block()
dma_block()
a('s_waitcnt vmcnt(8)')
flag_add(F_QL)
stamp(4)
dma_block()
dma_block()
a('s_bitcmp1_b32 %s, 0' % sW)
a('s_cselect_b64 %s, %s, %s' % (pB, pWU, pWG))
a('s_lshr_b32 %s, %s, 1' % (sT1, sW))
a('s_lshl1_add_u32 %s, %s, %s' % (sT0, sX, sT1))
a('s_mul_i32 %s, %s, %d' % (sT0, sT0, 32 * 3584))
a('s_lshl_b32 %s, %s, 7' % (sT1, sFG1))
a('s_add_u32 %s, %s, %s' % (sT0, sT0, sT1))
a('v_mul_u32_u24 v14, 3584, %s' % vR8)
a('v_lshl_add_u32 v14, %s, 4, v14' % vCH)
a('v_add_u32 v14, %s, v14' % sT0)
for t in range(4):
    a('global_load_dwordx4 %s, v14, %s nt' % (v(GU + 4 * t, 4), pB))
    if t < 3:
        a('v_add_u32 v14, %d, v14' % (8 * 3584))
a('s_lshr_b32 %s, %s, 1' % (sT0, sW))
a('s_lshl_b32 %s, %s, 5' % (sT0, sT0))
a('s_lshl2_add_u32 %s, %s, %s' % (sT0, sCQ, sT0))
a('s_and_b32 %s, %s, 1' % (sT1, sW))
a('s_add_u32 %s, %s, %s' % (sT0, sT0, sT1))
a('s_lshl_b32 %s, %s, 16' % (sT0, sT0))
a('s_add_u32 %s, %s, %s' % (sT0, sT0, sHD))
a('v_add_u32 v14, %s, v16' % sT0)
a('v_add_u32 v15, 0x20000, v14')
a('global_load_dwordx4 %s, v14, %s nt' % (v(WUV + 0, 4), pWUV))
a('global_load_dwordx4 %s, v15, %s nt' % (v(WUV + 4, 4), pWUV))
a('v_add_u32 v14, 0x100000, v14')
a('v_add_u32 v15, 0x100000, v15')
a('global_load_dwordx4 %s, v14, %s nt' % (v(WUV + 8, 4), pWUV))
a('global_load_dwordx4 %s, v15, %s nt' % (v(WUV + 12, 4), pWUV))
a('s_waitcnt vmcnt(8)')
flag_add(F_H1)
stamp(5)
a('s_mul_i32 %s, %s, 14' % (sT3, sHG))
a('s_min_u32 %s, %s, 13' % (sT2, sI15))
a('s_add_u32 %s, %s, %s' % (sT3, sT3, sT2))
a('s_lshl3_add_u32 %s, %s, %s' % (sT3, sT3, sX))
a('s_lshl_b32 %s, %s, 13' % (sT0, sT3))
a('s_lshl_b32 %s, %s, 8' % (sT1, sW))
a('s_add_u32 %s, %s, %s' % (sT0, sT0, sT1))
a('v_lshlrev_b32 v17, 10, %s' % vG)
a('v_lshl_or_b32 v17, %s, 4, v17' % vI)
a('v_add_u32 v14, %s, v17' % sT0)
a('v_add_u32 v15, 0x1000, v14')
a('global_load_dwordx4 %s, v14, %s nt' % (v(WD + 0, 4), pWD))
a('global_load_dwordx4 %s, v15, %s nt' % (v(WD + 4, 4), pWD))
a('s_lshl_b32 %s, %s, 9' % (sT0, sHD))
a('s_add_u32 %s, %s, %s' % (sT0, sT0, sT1))
a('s_add_u32 %s, %s, 0x1000' % (sT0, sT0))
a('v_add_u32 v14, %s, v17' % sT0)


def wo_pair(p):
    a('global_load_dwordx4 %s, v14, %s offset:-4096 nt' % (v(WO + 8 * p, 4), pWO))
    a('global_load_dwordx4 %s, v14, %s nt' % (v(WO + 8 * p + 4, 4), pWO))
    if p < 7:
        a('v_add_u32 v14, 0x2000, v14')


for p in range(3):
    wo_pair(p)
a('s_waitcnt lgkmcnt(0)')
for t in range(4):
    for r in range(4):
        a('v_and_b32 %s, %s, %s' % (v(FA + 4 * t + r), v(24 + t), vM[r]))
a('v_and_b32 v32, 1, %s' % vG)
a('v_lshlrev_b32 v32, 4, v32')
a('v_lshl_or_b32 v32, %s, 5, v32' % vCH)
a('v_add_u32 v32, %s, v32' % vLB)
a('s_and_b32 %s, %s, 1' % (sT0, sW))
a('s_lshl_b32 %s, %s, 8' % (sT0, sT0))
a('v_add_u32 v33, %s, v32' % sT0)
a('v_bfe_u32 v34, %s, 2, 3' % vLane)
a('v_lshlrev_b32 v34, 5, v34')
a('v_and_b32 v35, 1, %s' % vLane)
a('v_lshl_or_b32 v34, v35, 4, v34')
a('v_bfe_u32 v35, %s, 1, 1' % vLane)
a('v_lshl_or_b32 v34, v35, 8, v34')
a('v_add_u32 v34, %s, v34' % vLB)
a('s_waitcnt vmcnt(12)')
for t in range(4):
    mfma(28, FA + 4 * t, GU + 4 * t, None if t == 0 else 28)
for p in range(3, 8):
    wo_pair(p)
a('s_mov_b64 exec, %s' % mVALID)
for r in range(4):
    a('ds_add_f32 v33, %s offset:%d' % (v(28 + r), FS - LB + 4 * r))
a('s_mov_b64 exec, 1')
a('ds_add_rtn_u32 %s, %s, %s offset:%d' % (vF, vLB, vOne, F_FS - LB))
a('s_mov_b64 exec, -1')
a('ds_read_b128 v[36:39], v34 offset:%d' % (FS - LB))
a('s_waitcnt lgkmcnt(0)')
a('v_readfirstlane_b32 %s, %s' % (sT0, vF))
a('s_cmp_lg_u32 %s, 3' % sT0)
a('s_cbranch_scc1 L_nofp')
a('s_cmp_gt_u32 %s, 13' % sI15)
a('s_cbranch_scc1 L_nofp')
a('s_mov_b32 exec_lo, -1'); a('s_mov_b32 exec_hi, 0')
a('global_store_dwordx4 %s, v[36:39], %s sc1' % (vFPA, pWS))
a('s_mov_b64 exec, -1')
a.label('L_nofp')
stamp(6)
SA = 184
for k in range(16):
    a('v_mov_b32 %s, 0' % v(SA + k))
a('v_mov_b32 v52, 0')
a('s_cmp_gt_u32 %s, 13' % sI15)
a('s_cbranch_scc1 L_nof2')
spin(F_QOK, 4, sleep=2)
a('s_lshl_b32 %s, %s, 9' % (sT0, sT3))
a('s_add_u32 %s, %s, 0x%x' % (sT0, sT0, W_FP))
a('v_and_b32 v14, 0x1f0, %s' % vL16)
a('v_add_u32 v14, %s, v14' % sT0)
a('s_waitcnt vmcnt(0)')
stamp(7)
Lr = a.newlabel('fhop'); Ld = a.newlabel('fhopd')
a.label(Lr)
a('global_load_dwordx4 v[36:39], v14, %s sc1' % pWS)
a('s_waitcnt vmcnt(0)')
a('v_max3_u32 v15, v36, v37, v38')
a('v_max_u32 v15, v15, v39')
a('v_cmp_eq_u32 vcc, -1, v15')
retry_tail(Lr, Ld, sleep=4)
for rr in (4, 8):
    for k in range(4):
        a('v_add_f32_dpp %s, %s, %s row_ror:%d row_mask:0xf bank_mask:0xf' % (v(36 + k), v(36 + k), v(36 + k), rr))
for k in range(4):
    a('v_mov_b32 %s, %s' % (v(40 + k), v(36 + k)))
for k in range(4):
    a('v_permlane16_swap_b32 %s, %s' % (v(36 + k), v(40 + k)))
for k in range(4):
    a('v_add_f32 %s, %s, %s' % (v(36 + k), v(36 + k), v(40 + k)))
a('v_mov_b32_dpp v36, v37 quad_perm:[0,1,2,3] row_mask:0x2 bank_mask:0xf')
a('v_mov_b32_dpp v36, v38 quad_perm:[0,1,2,3] row_mask:0x4 bank_mask:0xf')
a('v_mov_b32_dpp v36, v39 quad_perm:[0,1,2,3] row_mask:0x8 bank_mask:0xf')
rnd_bf16('v36', 'v36')
a('v_mov_b32_dpp v37, v36 quad_perm:[2,3,2,3] row_mask:0xf bank_mask:0xf')
a('v_mul_f32 v38, v36, v36')
a('v_mov_b32 v39, 0x3d372713')
a('v_fma_f32 v38, v38, v39, 1.0')
a('v_mul_f32 v38, v38, v36')
a('v_mul_f32 v38, 0xc0135761, v38')
a('v_exp_f32 v38, v38')
a('v_add_f32 v38, 1.0, v38')
a('v_rcp_f32 v38, v38')
a('v_mul_f32 v38, v38, v36')
rnd_bf16('v38', 'v38')
a('v_mul_f32 v38, v38, v37')
a('v_cvt_pk_bf16_f32 v52, v38, v38')
a.label('L_nof2')
a('s_waitcnt vmcnt(0)')
stamp(8)
OUT = 56
for t in range(2):
    for r in range(4):
        a('v_and_b32_dpp %s, v52, %s row_newbcast:%d row_mask:0xf bank_mask:0xc' % (v(SA + 8 + 4 * t + r), vM[r], t))
mfma(OUT, SA + 8, WD, None)
mfma(OUT, SA + 12, WD + 4, OUT)
a('s_lshl_b32 %s, %s, 7' % (sT0, sW))
a('s_add_u32 %s, %s, 0x%x' % (sT0, sT0, CL))
a('v_lshl_add_u32 v14, %s, 4, %s' % (vR8, sT0))
a('v_lshl_add_u32 v15, %s, 2, %s' % (vI, vG))
a('v_lshl_add_u32 v15, v15, 2, %s' % vLB)
spin(F_CL, 4, reads=['ds_read_b128 v[24:27], v14'], sleep=1)
stamp(9)
for t in range(4):
    a('v_cvt_pk_bf16_f32 %s, %s, %s' % (v(24 + t), v(24 + t), v(24 + t)))
for t in range(4):
    for r in range(4):
        a('v_and_b32 %s, %s, %s' % (v(FA + 4 * t + r), v(24 + t), vM[r]))
    if t >= 1:
        mfma(28, FA + 4 * (t - 1), WUV + 4 * (t - 1), None if t == 1 else 28)
mfma(28, FA + 12, WUV + 12, 28)
a('s_mov_b64 exec, %s' % mVALID)
for r in range(4):
    a('ds_add_f32 v32, %s offset:%d' % (v(28 + r), CX - LB + 4 * r))
flag_add(F_CX)
spin(F_CX, 4, reads=['ds_read_b32 v24, v15 offset:%d' % (CX - LB)])
stamp(10)
a('v_cvt_pk_bf16_f32 v24, v24, v24')
for t in range(16):
    s = SA + 4 * (t & 1)
    for r in range(4):
        a('v_and_b32_dpp %s, v24, %s row_newbcast:%d row_mask:0xf bank_mask:0x3' % (v(s + r), vM[r], t))
    if t >= 1:
        mfma(OUT, SA + 4 * ((t - 1) & 1), WO + 4 * (t - 1), OUT)
mfma(OUT, SA + 4, WO + 60, OUT)
a('global_store_dwordx4 %s, %s, %s sc1' % (vSPA, v(OUT, 4), pWS))
stamp(11)
a('s_cmp_gt_u32 s2, 63')
a('s_cbranch_scc1 L_sdone')
a('s_lshl_b32 %s, s2, 14' % sT0)
a('s_lshl_b32 %s, %s, 12' % (sT1, sW))
a('s_add_u32 %s, %s, %s' % (sT0, sT0, sT1))
a('s_add_u32 %s, %s, 0x%x' % (sT0, sT0, W_SP))
a('v_add_u32 v14, %s, %s' % (sT0, vL16))
a('v_and_b32 v15, 3, %s' % vLane)
a('v_lshl_add_u32 v15, v15, 4, %s' % vLB)
a('v_lshl_add_u32 v17, %s, 2, %s' % (vCH, vLB))
a('s_lshl_b32 %s, s2, 4' % sT0)
a('v_lshl_add_u32 v19, %s, 1, %s' % (vCH, sT0))
a('v_add_u32 v20, %s, v19' % vLB)
a('ds_read_u16 v21, v20 offset:%d' % (XR - LB))
a('s_mov_b32 s94, 0x000f000f')
a('s_mov_b32 s95, 0x000f000f')
a('s_waitcnt vmcnt(0)')
stamp(12)
Lr = a.newlabel('fin'); Ld = a.newlabel('find')
a.label(Lr)
for k in range(4):
    a('global_load_dwordx4 %s, v14, %s offset:%d sc1' % (v(64 + 4 * k, 4), pWS, 1024 * k))
a('s_waitcnt vmcnt(0)')
a('v_max3_u32 v22, v64, v65, v66')
for k in range(67, 79, 2):
    a('v_max3_u32 v22, v22, %s, %s' % (v(k), v(k + 1)))
a('v_max_u32 v22, v22, v79')
a('v_cmp_eq_u32 vcc, -1, v22')
retry_tail(Lr, Ld, sleep=2)
stamp(13)
a('v_pk_add_f32 v[64:65], v[64:65], v[68:69]')
a('v_pk_add_f32 v[66:67], v[66:67], v[70:71]')
a('v_pk_add_f32 v[72:73], v[72:73], v[76:77]')
a('v_pk_add_f32 v[74:75], v[74:75], v[78:79]')
a('v_pk_add_f32 v[64:65], v[64:65], v[72:73]')
a('v_pk_add_f32 v[66:67], v[66:67], v[74:75]')
for rr in (4, 8):
    for k in range(4):
        a('v_add_f32_dpp %s, %s, %s row_ror:%d row_mask:0xf bank_mask:0xf' % (v(64 + k), v(64 + k), v(64 + k), rr))
a('s_mov_b64 exec, %s' % mT0)
for k in range(4):
    a('ds_add_f32 v15, %s offset:%d' % (v(64 + k), FIN - LB + 4 * k))
a('s_mov_b64 exec, 1')
a('ds_add_rtn_u32 %s, %s, %s offset:%d' % (vF, vLB, vOne, F_FIN - LB))
a('s_mov_b64 exec, 0xff')
a('ds_read_b32 v22, v17 offset:%d' % (FIN - LB))
a('ds_read_b32 v23, v17 offset:%d' % (FIN + 32 - LB))
a('s_waitcnt lgkmcnt(0)')
a('v_readfirstlane_b32 %s, %s' % (sT0, vF))
a('s_cmp_lg_u32 %s, 3' % sT0)
a('s_cbranch_scc1 L_sdone')
rnd_bf16('v22', 'v22')
rnd_bf16('v23', 'v23')
a('v_mul_f32 v24, 0xbfb8aa3b, v23')
a('v_exp_f32 v24, v24')
a('v_add_f32 v24, 1.0, v24')
a('v_rcp_f32 v24, v24')
a('v_mul_f32 v24, v24, v23')
rnd_bf16('v24', 'v24')
a('v_mul_f32 v24, v24, v22')
rnd_bf16('v24', 'v24')
a('v_lshlrev_b32 v21, 16, v21')
a('v_add_f32 v24, v24, v21')
a('v_cvt_pk_bf16_f32 v24, v24, v24')
a('global_store_short v19, v24, %s' % pOUT)
stamp(14)
a.label('L_sdone')
dump_stamps()
a('s_endpgm')

a.label('L_front')
a('s_setprio 2')
a('v_mov_b32 %s, 0x%x' % (vLB, LB))
a('v_mov_b32 %s, 1' % vOne)
masks()
a('s_and_b32 %s, %s, 15' % (sI15, sI))
a('s_lshl4_add_u32 %s, %s, %s' % (sKB, sX, sI15))
a('s_xor_b32 %s, %s, 1' % (sHG, sA))
a('s_mov_b32 %s, 0x200000' % sBudL)
a('s_mov_b32 %s, 8192' % sBudG)
a('s_mov_b32 s92, 0x00ff00ff')
a('s_mov_b32 s93, 0xff00ff00')
a('s_lshl_b32 %s, %s, 9' % (sT0, sW))
a('s_add_u32 %s, %s, 0x%x' % (sT0, sT0, XT))
a('v_lshl_add_u32 v14, %s, 6, %s' % (vR8, sT0))
a('v_and_b32 v22, 1, %s' % vG)
a('v_lshlrev_b32 v22, 4, v22')
a('v_lshl_or_b32 v22, %s, 5, v22' % vCH)
a('v_add_u32 v22, %s, v22' % vLB)
a('v_lshl_add_u32 v23, %s, 5, %s' % (vG, vLB))
a('s_lshl_b32 %s, %s, 4' % (sT0, sHD))
a('s_lshl2_add_u32 %s, %s, %s' % (sT1, sCQ, sW))
a('s_lshl_b32 %s, %s, 7' % (sT1, sT1))
a('s_add_u32 %s, %s, %s' % (sT0, sT0, sT1))
a('s_add_u32 %s, %s, 0x%x' % (sT0, sT0, W_QP))
a('v_and_b32 v24, 1, %s' % vLane)
a('v_lshlrev_b32 v25, 6, v24')
a('v_lshl_or_b32 v25, %s, 4, v25' % vG)
a('v_add_u32 v25, %s, v25' % sT0)
a('v_cmp_eq_u32 %s, 1, v24' % mT0)
a('v_mov_b32 v26, 0xff')
a('s_lshl_b32 %s, %s, 16' % (sT0, sHG))
a('s_lshl_b32 %s, %s, 14' % (sT1, sW))
a('s_add_u32 %s, %s, %s' % (sT0, sT0, sT1))
a('s_add_u32 %s, %s, 0x%x' % (sT0, sT0, W_QP + 4096))
a('v_add_u32 v27, %s, %s' % (sT0, vL16))
a('v_add_u32 v28, 0x2000, v27')
a('v_bfe_u32 v29, %s, 1, 4' % vLane)
a('v_mul_u32_u24 v29, 1040, v29')
a('v_lshrrev_b32 v30, 5, %s' % vLane)
a('v_lshl_add_u32 v29, v30, 8, v29')
a('v_lshl_add_u32 v29, v24, 3, v29')
a('s_lshl_b32 %s, %s, 6' % (sT0, sW))
a('s_add_u32 %s, %s, 0x%x' % (sT0, sT0, QL))
a('v_add_u32 v29, %s, v29' % sT0)
a('s_barrier')
stamp(2)
for k in range(4):
    a('ds_read_b128 %s, v14 offset:%d' % (v(XD + 4 * k, 4), 16 * k))
for t in range(16):
    if t % 4 == 0:
        a('s_waitcnt lgkmcnt(%d)' % (3 - t // 4))
    s = AP + 4 * (t & 1)
    for r in range(4):
        a('v_and_b32 %s, %s, %s' % (v(s + r), v(XD + t), vM[r]))
    if t >= 1:
        a('s_waitcnt vmcnt(%d)' % (20 - (t - 1)))
        mfma(ACCQ, AP + 4 * ((t - 1) & 1), WQ + 4 * (t - 1), None if t == 1 else ACCQ)
a('s_waitcnt vmcnt(5)')
mfma(ACCQ, AP + 4, WQ + 60, ACCQ)
stamp(3)
a('s_mov_b64 exec, %s' % mVALID)
for r in range(4):
    a('ds_add_f32 v22, %s offset:%d' % (v(ACCQ + r), QSUM - LB + 4 * r))
flag_add(F_QS)
a('s_waitcnt vmcnt(0)')
a('v_readfirstlane_b32 %s, v21' % sEp)
a('s_add_u32 %s, %s, 0x01010101' % (sEp, sEp))
a('s_and_b32 %s, %s, 0xff' % (sTag[0], sEp))
a('s_bfe_u32 %s, %s, 0x80008' % (sTag[1], sEp))
a('s_bfe_u32 %s, %s, 0x80010' % (sTag[2], sEp))
a('s_lshr_b32 %s, %s, 24' % (sTag[3], sEp))
spin(F_QS, 8, reads=['ds_read_b128 %s, v23 offset:%d' % (v(QR + 4 * k, 4), QSUM - LB + (k >> 1) * 128 + (k & 1) * 16) for k in range(4)])
stamp(4)
for k in range(8):
    a('v_cvt_pk_bf16_f32 %s, %s, %s' % (v(QB + k), v(QR + 2 * k), v(QR + 2 * k + 1)))
mfma(D2, WUK, QB, None)
mfma(D2 + 4, WUK + 8, QB, None)
mfma(D2, WUK + 4, QB + 4, D2)
mfma(D2 + 4, WUK + 12, QB + 4, D2 + 4)
for r in range(4):
    a('v_cndmask_b32 %s, %s, %s, %s' % (v(D2 + r), v(D2 + r), v(D2 + 4 + r), mT0))
for r in range(4):
    a('v_bfi_b32 %s, v26, %s, %s' % (v(D2 + r), sTag[r], v(D2 + r)))
a('s_mov_b32 exec_lo, 0x00030003')
a('s_mov_b32 exec_hi, 0x00030003')
a('global_store_dwordx4 v25, %s, %s sc1' % (v(D2, 4), pWS))
a('s_mov_b64 exec, -1')
stamp(5)
QF = 32; PV0 = 96; PV1 = 160; ACC = 224; SD = 16
G = 96
a('v_and_b32 v14, 7, %s' % vI)
a('v_lshlrev_b32 v14, 1, v14')
a('v_lshrrev_b32 v15, 3, %s' % vI)
a('v_or_b32 v14, v14, v15')
a('v_lshlrev_b32 v30, 10, %s' % vI)
a('v_lshl_or_b32 v30, %s, 8, v30' % vG)
a('v_lshl_or_b32 v30, v14, 4, v30')
a('s_lshl_b32 %s, %s, 14' % (sT0, sW))
a('v_add_u32 v30, %s, v30' % sT0)
for ks in range(16):
    a('v_xor_b32 %s, %d, v30' % (v(ACC + ks), ks * 16))
TRA = 240
a('v_lshrrev_b32 v14, 2, %s' % vLane)
a('v_and_b32 v15, 7, v14')
a('v_lshlrev_b32 v15, 1, v15')
a('v_lshrrev_b32 v31, 3, v14')
a('v_or_b32 v15, v15, v31')
a('v_bfe_u32 v31, %s, 1, 1' % vLane)
a('s_lshl_b32 %s, %s, 2' % (sT0, sW))
a('v_or_b32 v31, %s, v31' % sT0)
a('v_xor_b32 v15, v15, v31')
a('v_lshlrev_b32 v14, 10, v14')
a('v_lshl_or_b32 v14, v15, 4, v14')
a('v_lshl_or_b32 v24, v24, 3, v14')
a('v_xor_b32 v25, 32, v24')
a('v_add_u32 v31, %s, %s' % (vLB, vL16))
a('s_waitcnt vmcnt(0)')
stamp(6)
Lr = a.newlabel('h2'); Ld = a.newlabel('h2d')
a.label(Lr)
for hh in range(4):
    for half in range(2):
        for dh in range(2):
            n = hh * 4 + half * 2 + dh
            off = (hh & 1) * 4096 - 4096 + dh * 2048 + half * 1024
            a('global_load_dwordx4 %s, %s, %s offset:%d sc1' % (v(G + 4 * n, 4), 'v27' if hh < 2 else 'v28', pWS, off))
a('v_mov_b32 v14, 0')
for p in range(8):
    hh, half = p >> 1, p & 1
    A_, B_ = G + 8 * p, G + 8 * p + 4
    a('s_waitcnt vmcnt(%d)' % (14 - 2 * p))
    for r in range(4):
        a('v_bitop3_b32 v14, v14, %s, %s bitop3:0xf6' % (v(A_ + r), sTag[r]))
        a('v_bitop3_b32 v14, v14, %s, %s bitop3:0xf6' % (v(B_ + r), sTag[r]))
    a('v_pk_add_f32 %s, %s, %s' % (v(A_, 2), v(A_, 2), v(B_, 2)))
    a('v_pk_add_f32 %s, %s, %s' % (v(A_ + 2, 2), v(A_ + 2, 2), v(B_ + 2, 2)))
    a('v_cvt_pk_bf16_f32 %s, %s, %s' % (v(B_), v(A_), v(A_ + 1)))
    a('v_cvt_pk_bf16_f32 %s, %s, %s' % (v(B_ + 1), v(A_ + 2), v(A_ + 3)))
    a('ds_write_b64 v29, %s offset:%d' % (v(B_, 2), half * 512 + hh * 16))
a('v_and_b32 v14, 0xff, v14')
a('v_cmp_ne_u32 vcc, 0, v14')
a('s_waitcnt lgkmcnt(0)')
retry_tail(Lr, Ld, sleep=2)
a('s_mov_b64 exec, 1')
a('ds_add_u32 %s, %s offset:%d' % (vLB, vOne, F_QL - LB))
a('ds_add_u32 %s, %s offset:%d' % (vLB, vOne, F_QOK - LB))
a('s_mov_b64 exec, -1')
stamp(7)
spin(F_QL, 8)
stamp(8)
AF = PV1


def rdq(ks):
    a('ds_read_b128 %s, v31 offset:%d' % (v(QF + 4 * ks, 4), QL - LB + ks * 1040))


def rda(ks):
    a('ds_read_b128 %s, %s' % (v(AF + 4 * ks, 4), v(ACC + ks)))


DEPTH = 7
for ks in range(DEPTH):
    rdq(ks); rda(ks)
for ks in range(16):
    left = min(16, ks + DEPTH) - (ks + 1)
    a('s_waitcnt lgkmcnt(%d)' % (2 * left))
    mfma(SD, AF + 4 * ks, QF + 4 * ks, None if ks == 0 else SD)
    if ks + DEPTH < 16:
        rdq(ks + DEPTH); rda(ks + DEPTH)


def tr_read(t, sg, tau, part):
    base = (PV0 if t == 0 else PV1) + (sg * 8 + tau) * 4 + 2 * part
    k, e = tau >> 1, tau & 1
    areg = ('v24', 'v25') if t == 0 else ('v26', 'v27')
    a('ds_read_b64_tr_b16 %s, %s offset:%d' % (v(base, 2), areg[e], (2 * sg + part) * 16384 + k * 256))


for sg in range(2):
    for tau in range(8):
        tr_read(0, sg, tau, 0); tr_read(0, sg, tau, 1)
for ks in range(16):
    a('v_add_u32 %s, %s, %s' % (v(ACC + ks), sK64, v(ACC + ks)))
a('v_add_u32 v26, %s, v24' % sK64)
a('v_add_u32 v27, %s, v25' % sK64)


def round_scores(d):
    if MIMIC:
        for r in (0, 2):
            a('v_cvt_pk_bf16_f32 %s, %s, %s' % (v(d + r + 1), v(d + r), v(d + r + 1)))
        for r in (0, 2):
            a('v_lshlrev_b32 %s, 16, %s' % (v(d + r), v(d + r + 1)))
            a('v_and_b32 %s, 0xffff0000, %s' % (v(d + r + 1), v(d + r + 1)))
    for r in range(4):
        a('v_mul_f32 %s, 0x3db504f3, %s' % (v(d + r), v(d + r)))
    if MIMIC:
        for r in (0, 2):
            a('v_cvt_pk_bf16_f32 %s, %s, %s' % (v(d + r + 1), v(d + r), v(d + r + 1)))
        for r in (0, 2):
            a('v_lshlrev_b32 %s, 16, %s' % (v(d + r), v(d + r + 1)))
            a('v_and_b32 %s, 0xffff0000, %s' % (v(d + r + 1), v(d + r + 1)))


round_scores(SD)
a('v_max3_f32 v14, %s, %s, %s' % (v(SD), v(SD + 1), v(SD + 2)))
a('v_max_f32 v14, v14, %s' % v(SD + 3))
a('v_lshl_add_u32 v28, %s, 2, %s' % (vI, vLB))
a('s_lshr_b32 %s, %s, 1' % (sT0, sW))
a('s_lshl_b32 %s, %s, 11' % (sT0, sT0))
a('s_and_b32 %s, %s, 1' % (sT1, sW))
a('s_lshl3_add_u32 %s, %s, %s' % (sT0, sT1, sT0))
a('v_add_u32 v29, %s, v31' % sT0)
a('s_lshl_b32 %s, %s, 21' % (sT0, sHG))
a('s_lshl_b32 %s, %s, 15' % (sT1, sW))
a('s_add_u32 %s, %s, %s' % (sT0, sT0, sT1))
a('s_lshl_b32 %s, %s, 8' % (sT1, sKB))
a('s_add_u32 %s, %s, %s' % (sT0, sT0, sT1))
a('s_add_u32 %s, %s, 0x%x' % (sT0, sT0, W_OP))
a('v_lshlrev_b32 v30, 19, %s' % vG)
a('v_lshl_or_b32 v30, %s, 4, v30' % vI)
a('v_add_u32 v30, %s, v30' % sT0)
spin(F_H1, 4)
stamp(9)
for ks in range(15):
    rda(ks)
for ks in range(16):
    a('s_waitcnt lgkmcnt(%d)' % (14 if ks == 0 else 15 - ks))
    mfma(SD + 4, AF + 4 * ks, QF + 4 * ks, None if ks == 0 else SD + 4)
    if ks == 0:
        rda(15)
round_scores(SD + 4)
a('v_max3_f32 v14, v14, %s, %s' % (v(SD + 4), v(SD + 5)))
a('v_max3_f32 v14, v14, %s, %s' % (v(SD + 6), v(SD + 7)))
a('ds_max_f32 v28, v14 offset:%d' % (MX - LB))
flag_add(F_MX)
spin(F_MX, 4, reads=['ds_read_b32 v14, v28 offset:%d' % (MX - LB)])
stamp(10)
a('v_mul_f32 v14, 0xbfb8aa3b, v14')
a('v_mov_b32 v15, 0x3fb8aa3b')
for r in range(8):
    a('v_fma_f32 %s, %s, v15, v14' % (v(SD + r), v(SD + r)))
for r in range(8):
    a('v_exp_f32 %s, %s' % (v(SD + r), v(SD + r)))
PF = QF
for r in range(4):
    a('v_cvt_pk_bf16_f32 %s, %s, %s' % (v(48 + r), v(SD + 2 * r), v(SD + 2 * r + 1)))
a('ds_write_b64 v29, v[48:49] offset:%d' % (PL - LB))
a('ds_write_b64 v29, v[50:51] offset:%d' % (PL - LB + 1024))
a('v_pk_add_f32 %s, %s, %s' % (v(SD, 2), v(SD, 2), v(SD + 2, 2)))
a('v_pk_add_f32 %s, %s, %s' % (v(SD + 4, 2), v(SD + 4, 2), v(SD + 6, 2)))
a('v_pk_add_f32 %s, %s, %s' % (v(SD, 2), v(SD, 2), v(SD + 4, 2)))
a('v_add_f32 v14, %s, %s' % (v(SD), v(SD + 1)))
a('ds_add_f32 v28, v14 offset:%d' % (LS - LB))
flag_add(F_P)
spin(F_P, 4, reads=['ds_read_b128 %s, v31 offset:%d' % (v(PF + 4 * k, 4), PL - LB + 1024 * k) for k in range(4)]
     + ['ds_read_b32 v16, v28 offset:%d' % (MX - LB), 'ds_read_b32 v17, v28 offset:%d' % (LS - LB)])
stamp(11)
n = 0
for sg in range(2):
    for tau in range(8):
        mfma(ACC + 4 * tau, PF + 4 * (sg * 2 + 0), PV0 + (sg * 8 + tau) * 4, None if sg == 0 else ACC + 4 * tau)
        tr_read(1, sg, tau, 0); tr_read(1, sg, tau, 1)
a('s_cmp_lg_u32 %s, 0' % sW)
a('s_cbranch_scc1 L_nostat')
a('s_lshr_b32 %s, %s, 3' % (sT0, sKB))
a('s_and_b32 %s, %s, 3' % (sT1, sKB))
a('s_lshl2_add_u32 %s, %s, %s' % (sT0, sT0, sT1))
a('s_bfe_u32 %s, %s, 0x10002' % (sT1, sKB))
a('s_lshl1_add_u32 %s, %s, %s' % (sT0, sT0, sT1))
a('s_lshl_b32 %s, %s, 3' % (sT0, sT0))
a('s_lshl_b32 %s, %s, 14' % (sT1, sHG))
a('s_add_u32 %s, %s, %s' % (sT0, sT0, sT1))
a('s_add_u32 %s, %s, 0x%x' % (sT0, sT0, W_ST))
a('v_lshl_add_u32 v14, %s, 10, %s' % (vI, sT0))
a('s_mov_b64 exec, 0xffff')
a('global_store_dwordx2 v14, v[16:17], %s sc1' % pWS)
a('s_mov_b64 exec, -1')
a.label('L_nostat')
for sg in range(2):
    for tau in range(8):
        idx = sg * 8 + tau
        a('s_waitcnt lgkmcnt(%d)' % min(15, 30 - 2 * idx))
        mfma(ACC + 4 * tau, PF + 4 * (sg * 2 + 1), PV1 + idx * 4, ACC + 4 * tau)
OB = 64
for u in range(4):
    for r in range(4):
        a('v_cvt_pk_bf16_f32 %s, %s, %s' % (v(OB + 4 * r + u), v(ACC + 8 * u + r), v(ACC + 8 * u + 4 + r)))
for r in range(4):
    a('global_store_dwordx4 v30, %s, %s sc1' % (v(OB + 4 * r, 4), pWS))
    if r < 3:
        a('v_add_u32 v30, 0x20000, v30')
stamp(12)
HD_ = 96; HS = 128; HA = 136; HACC = 144
a('s_lshl2_add_u32 %s, %s, %s' % (sT0, sH, sCQ))
a('s_lshl2_add_u32 %s, %s, %s' % (sT0, sT0, sW))
a('s_lshl_b32 %s, %s, 13' % (sT0, sT0))
a('s_add_u32 %s, %s, 0x%x' % (sT0, sT0, W_OP + 4096))
a('v_add_u32 v24, %s, %s' % (sT0, vL16))
a('s_lshl_b32 %s, %s, 2' % (sT0, sW))
a('v_add_u32 v25, %s, %s' % (sT0, vI))
a('v_and_b32 v25, 15, v25')
a('v_lshl_add_u32 v25, v25, 2, %s' % vG)
a('s_lshl_b32 %s, %s, 10' % (sT0, sH))
a('s_add_u32 %s, %s, 0x%x' % (sT0, sT0, W_ST))
a('v_lshl_add_u32 v25, v25, 4, %s' % sT0)
a('s_waitcnt vmcnt(0)')
stamp(13)
Lr = a.newlabel('h3'); Ld = a.newlabel('h3d')
a.label(Lr)
a('global_load_dwordx4 %s, v25, %s sc1' % (v(HS, 4), pWS))
for t in range(8):
    a('global_load_dwordx4 %s, v24, %s offset:%d sc1' % (v(HD_ + 4 * t, 4), pWS, 1024 * t - 4096))
a('s_waitcnt vmcnt(8)')
a('v_max3_u32 v26, %s, %s, %s' % (v(HS), v(HS + 1), v(HS + 2)))
a('v_max_u32 v26, v26, %s' % v(HS + 3))
a('v_max_f32 v14, %s, %s' % (v(HS), v(HS + 2)))
allreduce('v_max_f32', 'v14', 'v15')
a('v_sub_f32 v16, %s, v14' % v(HS))
a('v_sub_f32 v17, %s, v14' % v(HS + 2))
a('v_mul_f32 v16, 0x3fb8aa3b, v16')
a('v_mul_f32 v17, 0x3fb8aa3b, v17')
a('v_exp_f32 v16, v16')
a('v_exp_f32 v17, v17')
a('v_cmp_eq_u32 %s, -1, v26' % mT1)
a('v_cvt_pk_bf16_f32 v16, v16, v16')
a('v_cvt_pk_bf16_f32 v17, v17, v17')
a('v_and_b32 v18, 0xffff0000, v16')
a('v_and_b32 v19, 0xffff0000, v17')
a('v_mul_f32 v18, v18, %s' % v(HS + 1))
a('v_fmac_f32 v18, v19, %s' % v(HS + 3))
for t in range(8):
    s = HA + 4 * (t & 1)
    for r in range(4):
        a('v_and_b32_dpp %s, %s, %s row_newbcast:%d row_mask:0xf bank_mask:0xf' % (v(s + r), 'v16' if (t & 1) == 0 else 'v17', vM[r], t >> 1))
    if t >= 1:
        a('s_waitcnt vmcnt(%d)' % (7 - (t - 1)))
        mfma(HACC, HA + 4 * ((t - 1) & 1), HD_ + 4 * (t - 1), None if t == 1 else HACC)
a('s_waitcnt vmcnt(0)')
mfma(HACC, HA + 4, HD_ + 28, HACC)
allreduce('v_add_f32', 'v18', 'v15')
a('v_rcp_f32 v18, v18')
a('v_cmp_u_f32 vcc, %s, %s' % (v(HACC), v(HACC)))
a('s_or_b64 vcc, vcc, %s' % mT1)
retry_tail(Lr, Ld, sleep=4)
for r in range(4):
    a('v_mul_f32 %s, %s, v18' % (v(HACC + r), v(HACC + r)))
a('s_mov_b32 exec_lo, -1'); a('s_mov_b32 exec_hi, 0')
for r in range(4):
    a('ds_add_f32 v31, %s offset:%d' % (v(HACC + r), CL - LB + 4 * r))
flag_add(F_CL)
stamp(14)
a('s_cmp_lg_u32 s2, 0')
a('s_cbranch_scc1 L_fdone')
a('s_cmp_lg_u32 %s, 0' % sW)
a('s_cbranch_scc1 L_fdone')
spin(F_CL, 4)
a('v_mov_b32 v14, 0')
a('v_mov_b32 v15, %s' % sEp)
a('s_mov_b64 exec, 1')
a('global_store_dword v14, v15, %s sc1' % pWS)
a.label('L_fdone')
dump_stamps()
a.label('L_end')
a('s_endpgm')
a.label('L_code_end')

hdr = open('cdna_kernels/%s.s.ref' % NAME).read().split('; Override launch geometry')[0]
src = hdr + '; @launch grid=(256,1,1) block=(512,1,1) lds=%d\n' % LDS_BYTES
src += '''.amdgcn_target "amdgcn-amd-amdhsa--gfx950"
.text
.globl {n}_kernel
.p2align 8
.type {n}_kernel,@function
{n}_kernel:
'''.format(n=NAME)
src += a.text()
src += '''.section .rodata,"a"
.p2align 6
.amdhsa_kernel {n}_kernel
  .amdhsa_next_free_vgpr 256
  .amdhsa_next_free_sgpr 102
  .amdhsa_accum_offset 256
  .amdhsa_group_segment_fixed_size 0
  .amdhsa_kernarg_size 104
  .amdhsa_user_sgpr_count 2
  .amdhsa_user_sgpr_kernarg_segment_ptr 1
  .amdhsa_system_sgpr_workgroup_id_x 1
.end_amdhsa_kernel
'''.format(n=NAME)
out = [x for x in sys.argv[1:] if not x.startswith('--')]
open(out[0] if out else 'cdna_kernels/%s.s' % NAME, 'w').write(src)
```

```python
import sys
from asmlib import Asm

NAME = 'recurrent_scan__compressed_kv_cla__geglu_ffn__decode'
STAMPS = '--stamps' in sys.argv
NOPOISON = '--nopoison' in sys.argv
MIMIC = True

W_QP = 0x10000
W_ST = 0x30000
W_FP = 0x38000
W_SP = 0x60000
W_OP = 0x200000
W_STAMP = 0x800000
LB = 131072
QL = 131072
PL = 147712
XT = 151808
XR = 153856
QSUM = 154880
CX = QSUM
CL = QSUM + 2048
FS = CL + 2048
FIN = FS
LS = FS + 2048
FL = LS + 1280
F_QS, F_QL, F_H1, F_MX, F_P, F_CL, F_CX, F_FS, F_FIN, F_QOK, F_L = [FL + 4 * k for k in range(11)]
MX = FL + 64
LDS_BYTES = MX + 64

sWave, sW, sX, sI, sA, sH, sDH, sCQ, sKB, sHG, sI15 = ['s%d' % k for k in range(3, 14)]
sT0, sT1 = 's14', 's15'
pX, pCKV, pWQ, pWUK, pWUV, pWO, pBX, pWG, pWU, pWD, pOUT, pDBG, pWS = ['s[%d:%d]' % (16 + 2 * k, 17 + 2 * k) for k in range(13)]
sT2, sT3, sT4, sT5 = 's42', 's43', 's44', 's45'
sHD = 's46'
sFG1 = 's47'
sTag = ['s48', 's49', 's50', 's51']
sEp = 's52'
sBudL, sBudG = 's53', 's54'
sK64 = 's55'
pB = 's[56:57]'; pBlo, pBhi = 's56', 's57'
pC = 's[58:59]'
mVALID = 's[92:93]'
mT0 = 's[94:95]'; mT1 = 's[96:97]'
vLane, vI, vG, vR8, vCH, vL16, vLB = ['v%d' % k for k in range(1, 8)]
vM = ['v8', 'v9', 'v10', 'v11']
vOne = 'v12'
vF = 'v13'


def v(n, cnt=1):
    return 'v%d' % n if cnt == 1 else 'v[%d:%d]' % (n, n + cnt - 1)


a = Asm()


def stamp(k):
    if STAMPS:
        a('s_memrealtime s[%d:%d]' % (60 + 2 * k, 61 + 2 * k))


def setexec(m):
    if m == -1 or m < 0x80000000:
        a('s_mov_b64 exec, %s' % (hex(m) if m > 64 else str(m)))
    else:
        a('s_mov_b32 exec_lo, 0x%x' % (m & 0xffffffff))
        a('s_mov_b32 exec_hi, 0x%x' % (m >> 32))


def flag_add(*flags):
    a('s_mov_b64 exec, 1')
    for f in flags:
        a('ds_add_u32 %s, %s offset:%d' % (vLB, vOne, f - LB))
    a('s_mov_b64 exec, -1')


def spin(flag, target, reads=(), sleep=0):
    L = a.newlabel('spin'); D = a.newlabel('spind')
    a.label(L)
    a('ds_read_b32 %s, %s offset:%d' % (vF, vLB, flag - LB))
    for r in reads:
        a(r)
    a('s_waitcnt lgkmcnt(0)')
    a('v_readfirstlane_b32 %s, %s' % (sT0, vF))
    a('s_cmp_ge_u32 %s, %d' % (sT0, target))
    a('s_cbranch_scc1 %s' % D)
    if sleep:
        a('s_sleep %d' % sleep)
    a('s_sub_u32 %s, %s, 1' % (sBudL, sBudL))
    a('s_cbranch_scc0 %s' % L)
    a('s_mov_b32 %s, 0' % sBudL)
    a.label(D)


def retry_tail(L, D, sleep=2):
    a('s_cbranch_vccz %s' % D)
    if sleep:
        a('s_sleep %d' % sleep)
    a('s_sub_u32 %s, %s, 1' % (sBudG, sBudG))
    a('s_cbranch_scc0 %s' % L)
    a('s_mov_b32 %s, 0' % sBudG)
    a.label(D)


def rowreduce(op, x):
    for r in (8, 4, 2, 1):
        a('%s_dpp %s, %s, %s row_ror:%d row_mask:0xf bank_mask:0xf' % (op, x, x, x, r))


def crossrow(op, x, t):
    a('v_mov_b32 %s, %s' % (t, x))
    a('v_permlane16_swap_b32 %s, %s' % (x, t))
    a('%s %s, %s, %s' % (op, x, x, t))
    a('v_mov_b32 %s, %s' % (t, x))
    a('v_permlane32_swap_b32 %s, %s' % (x, t))
    a('%s %s, %s, %s' % (op, x, x, t))


def allreduce(op, x, t):
    rowreduce(op, x)
    crossrow(op, x, t)


def rnd_bf16(dst, src):
    a('v_cvt_pk_bf16_f32 %s, %s, %s' % (dst, src, src))
    a('v_and_b32 %s, 0xffff0000, %s' % (dst, dst))


def mfma(d, A, B, c=None):
    a('v_mfma_f32_16x16x32_bf16 %s, %s, %s, %s' % (v(d, 4), v(A, 4), v(B, 4), '0' if c is None else v(c, 4)))


def pkadd(d, x, y):
    a('v_pk_add_f32 %s, %s, %s' % (v(d, 2), v(x, 2), v(y, 2)))


def sum8(d, b):
    pkadd(b, b, b + 2); pkadd(b + 4, b + 4, b + 6); pkadd(b, b, b + 4)
    a('v_add_f32 %s, %s, %s' % (d, v(b), v(b + 1)))


def common_consts():
    a('v_mov_b32 %s, 0x%x' % (vLB, LB))
    a('v_mov_b32 %s, 1' % vOne)
    a('v_and_b32 v14, 1, %s' % vCH)
    a('v_lshlrev_b32 v14, 4, v14')
    a('v_mov_b32 v15, 0xffff')
    a('v_lshlrev_b32 v14, v14, v15')
    a('v_lshrrev_b32 v15, 1, %s' % vCH)
    for r in range(4):
        a('v_cmp_eq_u32 vcc, %d, v15' % r)
        a('v_cndmask_b32 %s, 0, v14, vcc' % vM[r])
    a('s_mov_b32 %s, 0x200000' % sBudL)
    a('s_mov_b32 %s, 8192' % sBudG)
    a('s_mov_b32 s92, 0x00ff00ff')
    a('s_mov_b32 s93, 0xff00ff00')


def st_addr(dst):
    a('s_lshr_b32 %s, %s, 3' % (sT0, sKB))
    a('s_and_b32 %s, %s, 3' % (sT1, sKB))
    a('s_lshl2_add_u32 %s, %s, %s' % (sT0, sT0, sT1))
    a('s_bfe_u32 %s, %s, 0x10002' % (sT1, sKB))
    a('s_lshl1_add_u32 %s, %s, %s' % (sT0, sT0, sT1))
    a('s_lshl_b32 %s, %s, 3' % (sT0, sT0))
    a('s_lshl_b32 %s, %s, 14' % (sT1, sHG))
    a('s_add_u32 %s, %s, %s' % (sT0, sT0, sT1))
    a('s_add_u32 %s, %s, 0x%x' % (sT0, sT0, W_ST))
    a('v_lshl_add_u32 %s, %s, 10, %s' % (dst, vI, sT0))


def part_waddr(dst, base):
    a('v_and_b32 %s, 1, %s' % (dst, vG))
    a('v_lshlrev_b32 %s, 4, %s' % (dst, dst))
    a('v_lshl_or_b32 %s, %s, 5, %s' % (dst, vCH, dst))
    a('v_lshrrev_b32 v15, 5, %s' % vLane)
    a('v_lshl_or_b32 %s, v15, 8, %s' % (dst, dst))
    a('s_lshl_b32 %s, %s, 9' % (sT0, sW))
    a('s_add_u32 %s, %s, 0x%x' % (sT0, sT0, base))
    a('v_add_u32 %s, %s, %s' % (dst, sT0, dst))


def dump_stamps():
    if not STAMPS:
        return
    a('s_memtime s[90:91]')
    a('s_waitcnt lgkmcnt(0)')
    a('s_sub_u32 s90, s90, s100')
    a('s_mov_b64 exec, -1')
    a('v_mov_b32 v14, 0')
    for k in range(16):
        a('v_writelane_b32 v14, s%d, %d' % (60 + 2 * k, k))
    a('s_lshl_b32 %s, s2, 3' % sT0)
    a('s_add_u32 %s, %s, %s' % (sT0, sT0, sWave))
    a('s_lshl_b32 %s, %s, 6' % (sT0, sT0))
    a('s_add_u32 %s, %s, 0x%x' % (sT0, sT0, W_STAMP))
    a('v_lshl_add_u32 v15, %s, 2, %s' % (vLane, sT0))
    a('s_mov_b64 exec, 0xffff')
    a('global_store_dword v15, v14, %s' % pWS)


X4 = 52
a('s_cmpk_gt_u32 s2, 255')
a('s_cbranch_scc1 L_end')
a('s_load_dwordx16 s[16:31], s[0:1], 0')
a('s_load_dwordx8 s[32:39], s[0:1], 64')
a('s_load_dwordx2 s[40:41], s[0:1], 96')
a('s_getpc_b64 %s' % pC)
a.label('L_pc')
a('v_lshlrev_b32 v14, 7, v0')
a('v_min_u32 v14, L_code_end-L_pc-4, v14')
a('global_load_dword v63, v14, %s nt' % pC)
stamp(0)
if STAMPS:
    a('s_memtime s[100:101]')
    for k in range(1, 16):
        a('s_mov_b32 s%d, 0' % (60 + 2 * k))
a('v_lshrrev_b32 v14, 6, v0')
a('v_and_b32 %s, 63, v0' % vLane)
a('v_readfirstlane_b32 %s, v14' % sWave)
a('s_and_b32 %s, s2, 7' % sX)
a('s_lshr_b32 %s, s2, 3' % sI)
a('s_lshr_b32 %s, s2, 7' % sA)
a('s_bfe_u32 %s, s2, 0x10006' % sT0)
a('s_lshl1_add_u32 %s, %s, %s' % (sT0, sX, sT0))
a('s_lshl4_add_u32 %s, %s, %s' % (sH, sA, sT0))
a('s_bfe_u32 %s, s2, 0x10005' % sDH)
a('s_lshl1_add_u32 %s, %s, %s' % (sHD, sH, sDH))
a('s_lshl_b32 %s, %s, 7' % (sHD, sHD))
a('s_and_b32 %s, %s, 3' % (sW, sWave))
a('v_lshrrev_b32 %s, 3, %s' % (vR8, vLane))
a('v_and_b32 %s, 7, %s' % (vCH, vLane))
a('v_lshlrev_b32 v16, 13, %s' % vR8)
a('v_lshl_or_b32 v16, %s, 4, v16' % vCH)
a('v_lshlrev_b32 %s, 4, %s' % (vL16, vLane))
a('s_mov_b32 %s, 0x10000' % sK64)
a('s_lshl_b32 %s, %s, 20' % (sT0, sW))
a('s_add_u32 %s, %s, %s' % (sT0, sT0, sHD))
a('v_add_u32 v17, %s, v16' % sT0)
a('v_and_b32 %s, 15, %s' % (vI, vLane))
a('v_lshrrev_b32 %s, 4, %s' % (vG, vLane))
a('s_and_b32 %s, %s, 3' % (sCQ, sI))
a('s_and_b32 %s, %s, 15' % (sI15, sI))
a('s_lshl4_add_u32 %s, %s, %s' % (sKB, sX, sI15))
a('s_xor_b32 %s, %s, 1' % (sHG, sA))
a('s_cmp_lt_u32 %s, 4' % sWave)
a('s_waitcnt lgkmcnt(0)')
a('global_load_dwordx4 %s, %s, %s nt' % (v(X4, 4), vL16, pX))
a('s_cbranch_scc1 L_stream')

WQ = 64; WUK = 128; XD = 144; AP = 160; ACCQ = 168; QR = 172; QB = 188; D2 = 196
a('s_lshl_b32 %s, %s, 18' % (sT2, sCQ))
for t in range(16):
    if t % 4 == 0:
        a('v_add_u32 v18, %s, v17' % sT2)
    a('global_load_dwordx4 %s, v18, %s nt' % (v(WQ + 4 * t, 4), pWQ))
    if t % 4 != 3:
        a('v_add_u32 v18, %s, v18' % sK64)
    elif t < 15:
        a('s_add_u32 %s, %s, 0x40000' % (sT2, sT2))
        a('s_and_b32 %s, %s, 0xc0000' % (sT2, sT2))
a('v_mov_b32 v18, 0')
a('s_lshl2_add_u32 %s, %s, %s' % (sT1, sCQ, sW))
a('s_lshl_b32 %s, %s, 18' % (sT1, sT1))
a('s_add_u32 %s, %s, %s' % (sT1, sT1, sHD))
a('v_lshlrev_b32 v19, 13, %s' % vI)
a('v_lshl_or_b32 v19, %s, 4, v19' % vG)
a('v_add_u32 v19, %s, v19' % sT1)
a('v_add_u32 v20, 0x20000, v19')
a('global_load_dwordx4 %s, v19, %s nt' % (v(WUK + 0, 4), pWUK))
a('global_load_dwordx4 %s, v19, %s offset:64 nt' % (v(WUK + 4, 4), pWUK))
a('global_load_dwordx4 %s, v20, %s nt' % (v(WUK + 8, 4), pWUK))
a('global_load_dwordx4 %s, v20, %s offset:64 nt' % (v(WUK + 12, 4), pWUK))
a('global_load_dword v21, v18, %s sc1' % pWS)
stamp(1)
a('s_branch L_front')

a.label('L_stream')
XF = 24; PZ = 40
vSPA = 'v18'; vFPA = 'v19'
common_consts()
a('s_lshl_b32 %s, %s, 18' % (sT0, sW))
a('s_lshl_b32 %s, s2, 6' % sT1)
a('s_add_u32 %s, %s, %s' % (sT0, sT0, sT1))
a('s_add_u32 %s, %s, 0x%x' % (sT0, sT0, W_SP))
a('v_lshlrev_b32 %s, 14, %s' % (vSPA, vI))
a('v_lshl_or_b32 %s, %s, 4, %s' % (vSPA, vG, vSPA))
a('v_add_u32 %s, %s, %s' % (vSPA, sT0, vSPA))
a('s_min_u32 %s, %s, 13' % (sT2, sI15))
a('s_mul_i32 %s, %s, 14' % (sFG1, sA))
a('s_add_u32 %s, %s, %s' % (sFG1, sFG1, sT2))
a('s_lshl_b32 %s, %s, 12' % (sT0, sFG1))
a('s_lshl_b32 %s, %s, 6' % (sT1, sX))
a('s_add_u32 %s, %s, %s' % (sT0, sT0, sT1))
a('s_add_u32 %s, %s, 0x%x' % (sT0, sT0, W_FP))
a('v_bfe_u32 v14, %s, 2, 3' % vLane)
a('v_lshlrev_b32 v14, 9, v14')
a('v_and_b32 %s, 3, %s' % (vFPA, vLane))
a('v_lshl_or_b32 %s, %s, 4, v14' % (vFPA, vFPA))
a('v_add_u32 %s, %s, %s' % (vFPA, sT0, vFPA))
a('s_cmp_ge_u32 %s, 2' % sW)
a('s_cbranch_scc1 L_poison')
a('v_mov_b32 v44, 0')
a('v_mov_b32 v45, 0xff800000')
a('v_lshl_add_u32 v49, %s, 2, %s' % (vI, vLB))
a('ds_write_b32 v49, v44 offset:%d' % (FL - LB))
a('ds_write_b32 v49, v45 offset:%d' % (MX - LB))
a('v_add_u32 v48, %s, %s' % (vLB, vL16))
a('v_lshlrev_b32 v35, 9, %s' % vG)
a('v_add_u32 v35, v49, v35')
a('s_waitcnt vmcnt(0)')
stamp(13)
a('ds_write_b128 v48, %s offset:%d' % (v(X4, 4), XR - LB))
for k in range(4):
    a('v_lshlrev_b32 %s, 16, %s' % (v(XF + 2 * k), v(X4 + k)))
    a('v_and_b32 %s, 0xffff0000, %s' % (v(XF + 2 * k + 1), v(X4 + k)))
pkadd(32, XF, XF + 2); pkadd(36, XF + 4, XF + 6); pkadd(32, 32, 36)
a('v_add_f32 v32, v32, v33')
allreduce('v_add_f32', 'v32', 'v33')
a('v_mul_f32 v32, 0x3b000000, v32')
for k in range(8):
    a('v_sub_f32 %s, %s, v32' % (v(36 + k), v(XF + k)))
rnd_bf16('v32', 'v32')
a('v_mul_f32 v34, v36, v36')
a('v_mul_f32 v33, v37, v37')
for k in range(2, 8, 2):
    a('v_fmac_f32 v34, %s, %s' % (v(36 + k), v(36 + k)))
    a('v_fmac_f32 v33, %s, %s' % (v(37 + k), v(37 + k)))
a('v_add_f32 v34, v34, v33')
fill = []
for k in range(8):
    fill.append('v_sub_f32 %s, %s, v32' % (v(XF + k), v(XF + k)))
for k in range(0, 8, 2):
    fill.append('v_cvt_pk_bf16_f32 %s, %s, %s' % (v(XF + k + 1), v(XF + k), v(XF + k + 1)))
for k in range(0, 8, 2):
    fill.append('v_lshlrev_b32 %s, 16, %s' % (v(XF + k), v(XF + k + 1)))
    fill.append('v_and_b32 %s, 0xffff0000, %s' % (v(XF + k + 1), v(XF + k + 1)))
for r in (8, 4, 2, 1):
    a(fill.pop(0)); a(fill.pop(0))
    a('v_add_f32_dpp v34, v34, v34 row_ror:%d row_mask:0xf bank_mask:0xf' % r)
a('v_mov_b32 v33, v34')
a(fill.pop(0)); a(fill.pop(0))
a('v_permlane16_swap_b32 v34, v33')
a('v_add_f32 v34, v34, v33')
a('v_mov_b32 v33, v34')
a(fill.pop(0)); a(fill.pop(0))
a('v_permlane32_swap_b32 v34, v33')
a('v_add_f32 v34, v34, v33')
a('v_mul_f32 v34, 0x3b000000, v34')
rnd_bf16('v34', 'v34')
a('v_add_f32 v34, 0x3727c5ac, v34')
rnd_bf16('v34', 'v34')
a('v_sqrt_f32 v34, v34')
a(fill.pop(0)); a(fill.pop(0))
rnd_bf16('v34', 'v34')
a('v_rcp_f32 v34, v34')
while fill:
    a(fill.pop(0))
for k in range(8):
    a('v_mul_f32 %s, %s, v34' % (v(XF + k), v(XF + k)))
for k in range(8):
    a('v_cvt_pk_bf16_f32 %s, %s, %s' % (v(XF + k), v(XF + k), v(XF + k)))
    a('ds_write_b32 v35, %s offset:%d' % (v(XF + k), XT - LB + 64 * k))
a('s_branch L_dmaprep')
a.label('L_poison')
if not NOPOISON:
    for k in range(4):
        a('v_mov_b32 %s, -1' % v(PZ + k))
    a('s_lshl_b32 %s, %s, 21' % (sT0, sHG))
    a('s_lshl_b32 %s, %s, 18' % (sT1, sW))
    a('s_add_u32 %s, %s, %s' % (sT0, sT0, sT1))
    a('s_lshl_b32 %s, %s, 8' % (sT1, sKB))
    a('s_add_u32 %s, %s, %s' % (sT0, sT0, sT1))
    a('s_add_u32 %s, %s, 0x%x' % (sT0, sT0, W_OP - 2 * 0x40000))
    a('v_lshlrev_b32 v17, 19, %s' % vG)
    a('v_lshl_or_b32 v17, %s, 4, v17' % vI)
    a('v_add_u32 v17, %s, v17' % sT0)
    a('s_mov_b32 %s, 8' % sT2)
    a.label('L_ploop')
    a('global_store_dwordx4 v17, %s, %s sc1' % (v(PZ, 4), pWS))
    a('v_add_u32 v17, 0x8000, v17')
    a('s_sub_u32 %s, %s, 1' % (sT2, sT2))
    a('s_cmp_lg_u32 %s, 0' % sT2)
    a('s_cbranch_scc1 L_ploop')
    a('v_add_u32 v17, 0xfff80000, %s' % vSPA)
    a('global_store_dwordx4 %s, %s, %s sc1' % (vSPA, v(PZ, 4), pWS))
    a('global_store_dwordx4 v17, %s, %s sc1' % (v(PZ, 4), pWS))
    st_addr('v17')
    a('s_cmp_lg_u32 %s, 2' % sW)
    a('s_cbranch_scc1 L_nost')
    setexec(0xffff)
    a('global_store_dwordx2 v17, %s, %s sc1' % (v(PZ, 2), pWS))
    a('s_cmp_gt_u32 %s, 13' % sI15)
    a('s_cbranch_scc1 L_nost')
    setexec(0xffffffff)
    a('global_store_dwordx4 %s, %s, %s sc1' % (vFPA, v(PZ, 4), pWS))
    a.label('L_nost')
    setexec(-1)
a.label('L_dmaprep')
DA = 20
a('s_and_b32 %s, %s, 1' % (sT0, sW))
a('s_lshr_b32 %s, %s, 1' % (sT1, sW))
a('s_lshl3_add_u32 %s, %s, %s' % (sT0, sT0, sT1))
a('s_lshl_b32 %s, %s, 4' % (sT0, sT0))
a('v_xor_b32 %s, %s, %s' % (v(DA), sT0, vL16))
a('v_xor_b32 %s, 32, %s' % (v(DA + 1), v(DA)))
a('v_xor_b32 %s, 64, %s' % (v(DA + 2), v(DA)))
a('v_xor_b32 %s, 0x60, %s' % (v(DA + 3), v(DA)))
a('s_lshl_b32 %s, %s, 17' % (sT0, sKB))
a('s_lshl_b32 %s, %s, 12' % (sT1, sW))
a('s_add_u32 %s, %s, %s' % (sT0, sT0, sT1))
a('s_add_u32 %s, s18, %s' % (pBlo, sT0))
a('s_addc_u32 %s, s19, 0' % pBhi)
a('s_mov_b32 m0, %s' % sT1)
a('s_waitcnt lgkmcnt(0)')
stamp(1)
a('s_barrier')
stamp(2)


def dma_block():
    for q in range(4):
        a('global_load_lds_dwordx4 %s, %s offset:%d nt' % (v(DA + q), pB, 1024 * q))
    a('s_add_u32 %s, %s, 0x4000' % (pBlo, pBlo))
    a('s_addc_u32 %s, %s, 0' % (pBhi, pBhi))
    a('s_add_u32 m0, m0, 0x4000')


GU = 64; WUV = 80; WD = 96; WO = 104; FA = 168
dma_block()
a('s_waitcnt vmcnt(4)')
flag_add(F_QS)
stamp(3)
dma_block()
a('s_lshr_b32 %s, %s, 1' % (sT0, sX))
a('s_lshl_b32 %s, %s, 9' % (sT0, sT0))
a('s_and_b32 %s, %s, 1' % (sT1, sX))
a('s_lshl_b32 %s, %s, 5' % (sT1, sT1))
a('s_add_u32 %s, %s, %s' % (sT0, sT0, sT1))
a('s_lshr_b32 %s, %s, 1' % (sT1, sW))
a('s_lshl4_add_u32 %s, %s, %s' % (sT0, sT1, sT0))
a('s_add_u32 %s, %s, 0x%x' % (sT0, sT0, XT))
a('v_lshl_add_u32 v14, %s, 6, %s' % (vR8, sT0))
a('ds_read_b128 v[24:27], v14')
for _ in range(4):
    dma_block()
a('s_waitcnt vmcnt(8)')
flag_add(F_QL)
stamp(4)
dma_block()
dma_block()
a('s_bitcmp1_b32 %s, 0' % sW)
a('s_cselect_b64 %s, %s, %s' % (pB, pWU, pWG))
a('s_lshr_b32 %s, %s, 1' % (sT1, sW))
a('s_lshl1_add_u32 %s, %s, %s' % (sT0, sX, sT1))
a('s_mul_i32 %s, %s, %d' % (sT0, sT0, 32 * 3584))
a('s_lshl_b32 %s, %s, 7' % (sT1, sFG1))
a('s_add_u32 %s, %s, %s' % (sT0, sT0, sT1))
a('v_mul_u32_u24 v14, 3584, %s' % vR8)
a('v_lshl_add_u32 v14, %s, 4, v14' % vCH)
a('v_add_u32 v14, %s, v14' % sT0)
for t in range(4):
    a('global_load_dwordx4 %s, v14, %s nt' % (v(GU + 4 * t, 4), pB))
    if t < 3:
        a('v_add_u32 v14, %d, v14' % (8 * 3584))
a('s_lshr_b32 %s, %s, 1' % (sT0, sW))
a('s_lshl_b32 %s, %s, 5' % (sT0, sT0))
a('s_lshl2_add_u32 %s, %s, %s' % (sT0, sCQ, sT0))
a('s_and_b32 %s, %s, 1' % (sT1, sW))
a('s_add_u32 %s, %s, %s' % (sT0, sT0, sT1))
a('s_lshl_b32 %s, %s, 16' % (sT0, sT0))
a('s_add_u32 %s, %s, %s' % (sT0, sT0, sHD))
a('v_add_u32 v14, %s, v16' % sT0)
a('v_add_u32 v15, 0x20000, v14')
a('global_load_dwordx4 %s, v14, %s nt' % (v(WUV + 0, 4), pWUV))
a('global_load_dwordx4 %s, v15, %s nt' % (v(WUV + 4, 4), pWUV))
a('v_add_u32 v14, 0x100000, v14')
a('v_add_u32 v15, 0x100000, v15')
a('global_load_dwordx4 %s, v14, %s nt' % (v(WUV + 8, 4), pWUV))
a('global_load_dwordx4 %s, v15, %s nt' % (v(WUV + 12, 4), pWUV))
a('s_waitcnt vmcnt(8)')
flag_add(F_H1)
stamp(5)
a('s_mul_i32 %s, %s, 14' % (sT3, sHG))
a('s_min_u32 %s, %s, 13' % (sT2, sI15))
a('s_add_u32 %s, %s, %s' % (sT3, sT3, sT2))
a('s_lshl3_add_u32 %s, %s, %s' % (sT3, sT3, sX))
a('s_lshl_b32 %s, %s, 13' % (sT0, sT3))
a('s_lshl_b32 %s, %s, 8' % (sT1, sW))
a('s_add_u32 %s, %s, %s' % (sT0, sT0, sT1))
a('v_lshlrev_b32 v17, 10, %s' % vG)
a('v_lshl_or_b32 v17, %s, 4, v17' % vI)
a('v_add_u32 v14, %s, v17' % sT0)
a('v_add_u32 v15, 0x1000, v14')
a('global_load_dwordx4 %s, v14, %s nt' % (v(WD + 0, 4), pWD))
a('global_load_dwordx4 %s, v15, %s nt' % (v(WD + 4, 4), pWD))
a('s_lshl_b32 %s, %s, 9' % (sT0, sHD))
a('s_add_u32 %s, %s, %s' % (sT0, sT0, sT1))
a('s_add_u32 %s, %s, 0x1000' % (sT0, sT0))
a('v_add_u32 v14, %s, v17' % sT0)


def wo_pair(p):
    a('global_load_dwordx4 %s, v14, %s offset:-4096 nt' % (v(WO + 8 * p, 4), pWO))
    a('global_load_dwordx4 %s, v14, %s nt' % (v(WO + 8 * p + 4, 4), pWO))
    if p < 7:
        a('v_add_u32 v14, 0x2000, v14')


for p in range(3):
    wo_pair(p)
a('s_waitcnt lgkmcnt(0)')
for t in range(4):
    for r in range(4):
        a('v_and_b32 %s, %s, %s' % (v(FA + 4 * t + r), v(24 + t), vM[r]))
part_waddr('v32', CX)
a('s_and_b32 %s, %s, 1' % (sT0, sW))
a('s_lshr_b32 %s, %s, 1' % (sT1, sW))
a('s_lshl1_add_u32 %s, %s, %s' % (sT0, sT0, sT1))
a('s_sub_u32 %s, %s, %s' % (sT0, sT0, sW))
a('s_lshl_b32 %s, %s, 9' % (sT0, sT0))
a('v_add_u32 v33, %s, v32' % sT0)
a('v_bfe_u32 v34, %s, 2, 3' % vLane)
a('v_lshlrev_b32 v34, 5, v34')
a('v_and_b32 v35, 1, %s' % vLane)
a('v_lshl_or_b32 v34, v35, 4, v34')
a('v_bfe_u32 v35, %s, 1, 1' % vLane)
a('v_lshl_or_b32 v34, v35, 10, v34')
a('v_add_u32 v34, %s, v34' % vLB)
a('s_waitcnt vmcnt(12)')
for t in range(4):
    mfma(28, FA + 4 * t, GU + 4 * t, None if t == 0 else 28)
wo_pair(3)
a('s_mov_b64 exec, %s' % mVALID)
a('ds_write_b128 v33, v[28:31] offset:%d' % (FS - CX))
a('s_mov_b64 exec, 1')
a('ds_add_rtn_u32 %s, %s, %s offset:%d' % (vF, vLB, vOne, F_FS - LB))
a('s_mov_b64 exec, -1')
for k in range(4):
    a('ds_read_b128 %s, v34 offset:%d' % (v(36 + 4 * k, 4), FS - LB + 256 * k))
a('s_waitcnt lgkmcnt(0)')
a('v_readfirstlane_b32 %s, %s' % (sT0, vF))
a('s_cmp_lg_u32 %s, 3' % sT0)
a('s_cbranch_scc1 L_nofp')
a('s_cmp_gt_u32 %s, 13' % sI15)
a('s_cbranch_scc1 L_nofp')
pkadd(36, 36, 40); pkadd(38, 38, 42); pkadd(44, 44, 48); pkadd(46, 46, 50); pkadd(36, 36, 44); pkadd(38, 38, 46)
setexec(0xffffffff)
a('global_store_dwordx4 %s, v[36:39], %s sc1' % (vFPA, pWS))
setexec(-1)
a.label('L_nofp')
for p in range(4, 8):
    wo_pair(p)
stamp(6)
SA = 184
for k in range(16):
    a('v_mov_b32 %s, 0' % v(SA + k))
a('v_mov_b32 v52, 0')
a('s_cmp_gt_u32 %s, 13' % sI15)
a('s_cbranch_scc1 L_nof2')
spin(F_QOK, 4, sleep=2)
a('s_lshl_b32 %s, %s, 9' % (sT0, sT3))
a('s_add_u32 %s, %s, 0x%x' % (sT0, sT0, W_FP))
a('v_and_b32 v14, 0x1f0, %s' % vL16)
a('v_add_u32 v14, %s, v14' % sT0)
a('s_waitcnt vmcnt(0)')
stamp(7)
Lr = a.newlabel('fhop'); Ld = a.newlabel('fhopd')
a.label(Lr)
a('global_load_dwordx4 v[36:39], v14, %s sc1' % pWS)
a('s_waitcnt vmcnt(0)')
a('v_max3_u32 v15, v36, v37, v38')
a('v_max_u32 v15, v15, v39')
a('v_cmp_eq_u32 vcc, -1, v15')
retry_tail(Lr, Ld, sleep=4)
for rr in (4, 8):
    for k in range(4):
        a('v_add_f32_dpp %s, %s, %s row_ror:%d row_mask:0xf bank_mask:0xf' % (v(36 + k), v(36 + k), v(36 + k), rr))
for k in range(4):
    a('v_mov_b32 %s, %s' % (v(40 + k), v(36 + k)))
for k in range(4):
    a('v_permlane16_swap_b32 %s, %s' % (v(36 + k), v(40 + k)))
for k in range(4):
    a('v_add_f32 %s, %s, %s' % (v(36 + k), v(36 + k), v(40 + k)))
a('v_mov_b32_dpp v36, v37 quad_perm:[0,1,2,3] row_mask:0x2 bank_mask:0xf')
a('v_mov_b32_dpp v36, v38 quad_perm:[0,1,2,3] row_mask:0x4 bank_mask:0xf')
a('v_mov_b32_dpp v36, v39 quad_perm:[0,1,2,3] row_mask:0x8 bank_mask:0xf')
rnd_bf16('v36', 'v36')
a('v_mov_b32_dpp v37, v36 quad_perm:[2,3,2,3] row_mask:0xf bank_mask:0xf')
a('v_mul_f32 v38, v36, v36')
a('v_mov_b32 v39, 0x3d372713')
a('v_fma_f32 v38, v38, v39, 1.0')
a('v_mul_f32 v38, v38, v36')
a('v_mul_f32 v38, 0xc0135761, v38')
a('v_exp_f32 v38, v38')
a('v_add_f32 v38, 1.0, v38')
a('v_rcp_f32 v38, v38')
a('v_mul_f32 v38, v38, v36')
rnd_bf16('v38', 'v38')
a('v_mul_f32 v38, v38, v37')
a('v_cvt_pk_bf16_f32 v52, v38, v38')
a.label('L_nof2')
a('s_waitcnt vmcnt(0)')
stamp(8)
OUT = 56
for t in range(2):
    for r in range(4):
        a('v_and_b32_dpp %s, v52, %s row_newbcast:%d row_mask:0xf bank_mask:0xc' % (v(SA + 8 + 4 * t + r), vM[r], t))
mfma(OUT, SA + 8, WD, None)
mfma(OUT, SA + 12, WD + 4, OUT)
a('s_lshl_b32 %s, %s, 7' % (sT0, sW))
a('s_add_u32 %s, %s, 0x%x' % (sT0, sT0, CL))
a('v_lshl_add_u32 v14, %s, 4, %s' % (vR8, sT0))
a('v_lshl_add_u32 v15, %s, 2, %s' % (vI, vG))
a('v_lshlrev_b32 v15, 2, v15')
a('v_add_u32 v15, 0x%x, v15' % CX)
a('s_lshl_b32 %s, s2, 14' % sT0)
a('s_lshl_b32 %s, %s, 12' % (sT1, sW))
a('s_add_u32 %s, %s, %s' % (sT0, sT0, sT1))
a('s_add_u32 %s, %s, 0x%x' % (sT0, sT0, W_SP))
a('v_add_u32 v60, %s, %s' % (sT0, vL16))
a('v_and_b32 v61, 3, %s' % vLane)
a('v_lshl_add_u32 v61, %s, 2, v61' % vG)
a('v_lshlrev_b32 v61, 4, v61')
a('s_lshl_b32 %s, %s, 8' % (sT0, sW))
a('s_add_u32 %s, %s, 0x%x' % (sT0, sT0, FIN))
a('v_add_u32 v61, %s, v61' % sT0)
a('v_lshlrev_b32 v62, 2, %s' % vLane)
a('v_add_u32 v62, 0x%x, v62' % FIN)
a('s_lshl_b32 %s, s2, 4' % sT0)
a('s_and_b32 %s, %s, 0x3f0' % (sT0, sT0))
a('v_lshl_add_u32 v19, %s, 1, %s' % (vCH, sT0))
a('v_add_u32 v20, %s, v19' % vLB)
a('ds_read_u16 v21, v20 offset:%d' % (XR - LB))
a('s_mov_b32 s94, 0x000f000f')
a('s_mov_b32 s95, 0x000f000f')
spin(F_CL, 4, reads=['ds_read_b128 %s, v14 offset:%d' % (v(36 + 4 * k, 4), 512 * k) for k in range(4)], sleep=1)
stamp(9)
pkadd(36, 36, 40); pkadd(38, 38, 42); pkadd(44, 44, 48); pkadd(46, 46, 50); pkadd(36, 36, 44); pkadd(38, 38, 46)
for t in range(4):
    a('v_cvt_pk_bf16_f32 %s, %s, %s' % (v(24 + t), v(36 + t), v(36 + t)))
for t in range(4):
    for r in range(4):
        a('v_and_b32 %s, %s, %s' % (v(FA + 4 * t + r), v(24 + t), vM[r]))
    if t >= 1:
        mfma(28, FA + 4 * (t - 1), WUV + 4 * (t - 1), None if t == 1 else 28)
mfma(28, FA + 12, WUV + 12, 28)
a('s_mov_b64 exec, %s' % mVALID)
a('ds_write_b128 v32, v[28:31]')
flag_add(F_CX)
spin(F_CX, 4, reads=['ds_read2st64_b32 %s, v15 offset0:%d offset1:%d' % (v(36 + 2 * k, 2), 2 * k, 2 * k + 1) for k in range(4)])
stamp(10)
sum8('v24', 36)
a('v_cvt_pk_bf16_f32 v24, v24, v24')
for t in range(16):
    s = SA + 4 * (t & 1)
    for r in range(4):
        a('v_and_b32_dpp %s, v24, %s row_newbcast:%d row_mask:0xf bank_mask:0x3' % (v(s + r), vM[r], t))
    if t >= 1:
        mfma(OUT, SA + 4 * ((t - 1) & 1), WO + 4 * (t - 1), OUT)
mfma(OUT, SA + 4, WO + 60, OUT)
a('global_store_dwordx4 %s, %s, %s sc1' % (vSPA, v(OUT, 4), pWS))
stamp(11)
a('s_cmp_gt_u32 s2, 63')
a('s_cbranch_scc1 L_sdone')
a('s_waitcnt vmcnt(0)')
stamp(12)
Lr = a.newlabel('fin'); Ld = a.newlabel('find')
a.label(Lr)
for k in range(4):
    a('global_load_dwordx4 %s, v60, %s offset:%d sc1' % (v(64 + 4 * k, 4), pWS, 1024 * k))
a('s_waitcnt vmcnt(0)')
pkadd(64, 64, 68); pkadd(66, 66, 70); pkadd(72, 72, 76); pkadd(74, 74, 78); pkadd(64, 64, 72); pkadd(66, 66, 74)
a('v_cmp_u_f32 vcc, v64, v65')
a('v_cmp_u_f32 %s, v66, v67' % mT1)
for k in range(4):
    a('v_add_f32_dpp %s, %s, %s row_ror:4 row_mask:0xf bank_mask:0xf' % (v(64 + k), v(64 + k), v(64 + k)))
a('s_or_b64 vcc, vcc, %s' % mT1)
retry_tail(Lr, Ld, sleep=2)
for k in range(4):
    a('v_add_f32_dpp %s, %s, %s row_ror:8 row_mask:0xf bank_mask:0xf' % (v(64 + k), v(64 + k), v(64 + k)))
a('s_mov_b64 exec, %s' % mT0)
a('ds_write_b128 v61, v[64:67]')
a('s_mov_b64 exec, 1')
a('ds_add_rtn_u32 %s, %s, %s offset:%d' % (vF, vLB, vOne, F_FIN - LB))
a('s_mov_b64 exec, -1')
a('ds_read2st64_b32 v[22:23], v62 offset0:0 offset1:1')
a('ds_read2st64_b32 v[24:25], v62 offset0:2 offset1:3')
a('s_waitcnt lgkmcnt(0)')
a('v_readfirstlane_b32 %s, %s' % (sT0, vF))
pkadd(22, 22, 24)
a('s_cmp_lg_u32 %s, 3' % sT0)
a('s_cbranch_scc1 L_sdone')
a('v_add_f32 v22, v22, v23')
crossrow('v_add_f32', 'v22', 'v23')
rnd_bf16('v22', 'v22')
a('v_mul_f32 v24, 0xbfb8aa3b, v22')
a('v_exp_f32 v24, v24')
a('v_add_f32 v24, 1.0, v24')
a('v_rcp_f32 v24, v24')
a('v_mul_f32 v24, v24, v22')
rnd_bf16('v24', 'v24')
a('v_lshlrev_b32 v21, 16, v21')
a('v_mul_f32_dpp v24, v24, v22 row_ror:8 row_mask:0xf bank_mask:0xf')
rnd_bf16('v24', 'v24')
a('v_add_f32 v24, v24, v21')
a('v_cvt_pk_bf16_f32 v24, v24, v24')
setexec(0xff)
a('global_store_short v19, v24, %s' % pOUT)
stamp(14)
a.label('L_sdone')
dump_stamps()
a('s_endpgm')

a.label('L_front')
a('s_setprio 2')
common_consts()
a('s_lshl_b32 %s, %s, 9' % (sT0, sW))
a('s_add_u32 %s, %s, 0x%x' % (sT0, sT0, XT))
a('v_lshl_add_u32 v14, %s, 6, %s' % (vR8, sT0))
for k in range(4):
    a('s_add_u32 %s, %s, %d' % (sT0, sCQ, k))
    a('s_and_b32 %s, %s, 3' % (sT0, sT0))
    a('s_lshl_b32 %s, %s, 4' % (sT0, sT0))
    a('v_add_u32 %s, %s, v14' % (v(56 + k), sT0))
part_waddr('v22', QSUM)
a('v_lshrrev_b32 v23, 3, %s' % vI)
a('v_lshl_add_u32 v23, v23, 2, %s' % vG)
a('v_lshl_add_u32 v23, v23, 3, %s' % vCH)
a('v_lshlrev_b32 v23, 2, v23')
a('v_add_u32 v23, 0x%x, v23' % QSUM)
a('s_lshl_b32 %s, %s, 4' % (sT0, sHD))
a('s_lshl2_add_u32 %s, %s, %s' % (sT1, sCQ, sW))
a('s_lshl_b32 %s, %s, 7' % (sT1, sT1))
a('s_add_u32 %s, %s, %s' % (sT0, sT0, sT1))
a('s_add_u32 %s, %s, 0x%x' % (sT0, sT0, W_QP))
a('v_and_b32 v24, 1, %s' % vLane)
a('v_lshlrev_b32 v25, 6, v24')
a('v_lshl_or_b32 v25, %s, 4, v25' % vG)
a('v_add_u32 v25, %s, v25' % sT0)
a('v_cmp_eq_u32 %s, 1, v24' % mT0)
a('v_mov_b32 v26, 0xff')
a('s_barrier')
stamp(2)
for k in range(4):
    a('ds_read_b128 %s, %s' % (v(XD + 4 * k, 4), v(56 + k)))
for t in range(16):
    if t % 4 == 0:
        a('s_waitcnt lgkmcnt(%d)' % (3 - t // 4))
    s = AP + 4 * (t & 1)
    for r in range(4):
        a('v_and_b32 %s, %s, %s' % (v(s + r), v(XD + t), vM[r]))
    if t >= 1:
        a('s_waitcnt vmcnt(%d)' % (20 - (t - 1)))
        mfma(ACCQ, AP + 4 * ((t - 1) & 1), WQ + 4 * (t - 1), None if t == 1 else ACCQ)
a('s_waitcnt vmcnt(5)')
mfma(ACCQ, AP + 4, WQ + 60, ACCQ)
stamp(3)
a('s_mov_b64 exec, %s' % mVALID)
a('ds_write_b128 v22, %s' % v(ACCQ, 4))
flag_add(F_QS)
a('s_waitcnt vmcnt(0)')
a('v_readfirstlane_b32 %s, v21' % sEp)
a('s_add_u32 %s, %s, 0x01010101' % (sEp, sEp))
a('s_and_b32 %s, %s, 0xff' % (sTag[0], sEp))
a('s_bfe_u32 %s, %s, 0x80008' % (sTag[1], sEp))
a('s_bfe_u32 %s, %s, 0x80010' % (sTag[2], sEp))
a('s_lshr_b32 %s, %s, 24' % (sTag[3], sEp))
spin(F_QS, 8, reads=['ds_read2st64_b32 %s, v23 offset0:%d offset1:%d' % (v(QR + 2 * k, 2), 2 * k, 2 * k + 1) for k in range(4)])
stamp(4)
sum8('v14', QR)
a('v_mov_b32_dpp v15, v14 quad_perm:[1,0,3,2] row_mask:0xf bank_mask:0xf')
a('v_cvt_pk_bf16_f32 v14, v14, v15')
for k in range(8):
    a('v_mov_b32_dpp %s, v14 row_newbcast:%d row_mask:0xf bank_mask:0xf' % (v(QB + k), 2 * k))
mfma(D2, WUK, QB, None)
mfma(D2 + 4, WUK + 8, QB, None)
mfma(D2, WUK + 4, QB + 4, D2)
mfma(D2 + 4, WUK + 12, QB + 4, D2 + 4)
a('s_lshl_b32 %s, %s, 16' % (sT0, sHG))
a('s_lshl_b32 %s, %s, 14' % (sT1, sW))
a('s_add_u32 %s, %s, %s' % (sT0, sT0, sT1))
a('s_add_u32 %s, %s, 0x%x' % (sT0, sT0, W_QP + 4096))
a('v_add_u32 v27, %s, %s' % (sT0, vL16))
a('v_add_u32 v28, 0x2000, v27')
for r in range(4):
    a('v_cndmask_b32 %s, %s, %s, %s' % (v(D2 + r), v(D2 + r), v(D2 + 4 + r), mT0))
for r in range(4):
    a('v_bfi_b32 %s, v26, %s, %s' % (v(D2 + r), sTag[r], v(D2 + r)))
setexec(0x0003000300030003)
a('global_store_dwordx4 v25, %s, %s sc1' % (v(D2, 4), pWS))
setexec(-1)
stamp(5)
QF = 32; PV0 = 96; PV1 = 160; ACC = 224; SD = 16
G = 96
a('v_bfe_u32 v29, %s, 1, 4' % vLane)
a('v_mul_u32_u24 v29, 1040, v29')
a('v_lshrrev_b32 v30, 5, %s' % vLane)
a('v_lshl_add_u32 v29, v30, 8, v29')
a('v_lshl_add_u32 v29, v24, 3, v29')
a('s_lshl_b32 %s, %s, 6' % (sT0, sW))
a('s_add_u32 %s, %s, 0x%x' % (sT0, sT0, QL))
a('v_add_u32 v29, %s, v29' % sT0)
a('v_lshlrev_b32 v14, 1, %s' % vCH)
a('v_lshrrev_b32 v15, 3, %s' % vI)
a('v_or_b32 v14, v14, v15')
a('v_lshlrev_b32 v30, 10, %s' % vI)
a('v_lshl_or_b32 v30, %s, 8, v30' % vG)
a('v_lshl_or_b32 v30, v14, 4, v30')
a('s_lshl_b32 %s, %s, 14' % (sT0, sW))
a('v_add_u32 v30, %s, v30' % sT0)
for ks in range(16):
    a('v_xor_b32 %s, %d, v30' % (v(ACC + ks), ks * 16))
a('v_lshrrev_b32 v14, 2, %s' % vLane)
a('v_and_b32 v15, 7, v14')
a('v_lshlrev_b32 v15, 1, v15')
a('v_lshrrev_b32 v31, 3, v14')
a('v_or_b32 v15, v15, v31')
a('v_bfe_u32 v31, %s, 1, 1' % vLane)
a('s_lshl_b32 %s, %s, 2' % (sT0, sW))
a('v_or_b32 v31, %s, v31' % sT0)
a('v_xor_b32 v15, v15, v31')
a('v_lshlrev_b32 v14, 10, v14')
a('v_lshl_or_b32 v14, v15, 4, v14')
a('v_lshl_or_b32 v24, v24, 3, v14')
a('v_xor_b32 v25, 32, v24')
a('v_add_u32 v31, %s, %s' % (vLB, vL16))
a('s_waitcnt vmcnt(0)')
stamp(6)
Lr = a.newlabel('h2'); Ld = a.newlabel('h2d')
a.label(Lr)
for hh in range(4):
    for half in range(2):
        for dh in range(2):
            n = hh * 4 + half * 2 + dh
            off = (hh & 1) * 4096 - 4096 + dh * 2048 + half * 1024
            a('global_load_dwordx4 %s, %s, %s offset:%d sc1' % (v(G + 4 * n, 4), 'v27' if hh < 2 else 'v28', pWS, off))
a('v_mov_b32 v14, 0')
for p in range(8):
    hh, half = p >> 1, p & 1
    A_, B_ = G + 8 * p, G + 8 * p + 4
    a('s_waitcnt vmcnt(%d)' % (14 - 2 * p))
    for r in range(4):
        a('v_bitop3_b32 v14, v14, %s, %s bitop3:0xf6' % (v(A_ + r), sTag[r]))
        a('v_bitop3_b32 v14, v14, %s, %s bitop3:0xf6' % (v(B_ + r), sTag[r]))
    pkadd(A_, A_, B_); pkadd(A_ + 2, A_ + 2, B_ + 2)
    a('v_cvt_pk_bf16_f32 %s, %s, %s' % (v(B_), v(A_), v(A_ + 1)))
    a('v_cvt_pk_bf16_f32 %s, %s, %s' % (v(B_ + 1), v(A_ + 2), v(A_ + 3)))
    a('ds_write_b64 v29, %s offset:%d' % (v(B_, 2), half * 512 + hh * 16))
a('v_and_b32 v14, 0xff, v14')
a('v_cmp_ne_u32 vcc, 0, v14')
a('s_waitcnt lgkmcnt(0)')
retry_tail(Lr, Ld, sleep=2)
flag_add(F_QL, F_QOK)
stamp(7)
spin(F_QL, 8)
stamp(8)
AF = PV1


def rdq(ks):
    a('ds_read_b128 %s, v31 offset:%d' % (v(QF + 4 * ks, 4), QL - LB + ks * 1040))


def rda(ks):
    a('ds_read_b128 %s, %s' % (v(AF + 4 * ks, 4), v(ACC + ks)))


DEPTH = 7
for ks in range(DEPTH):
    rdq(ks); rda(ks)
for ks in range(16):
    left = min(16, ks + DEPTH) - (ks + 1)
    a('s_waitcnt lgkmcnt(%d)' % (2 * left))
    mfma(SD, AF + 4 * ks, QF + 4 * ks, None if ks == 0 else SD)
    if ks + DEPTH < 16:
        rdq(ks + DEPTH); rda(ks + DEPTH)


def tr_read(t, sg, tau, part):
    base = (PV0 if t == 0 else PV1) + (sg * 8 + tau) * 4 + 2 * part
    k, e = tau >> 1, tau & 1
    areg = ('v24', 'v25') if t == 0 else ('v26', 'v27')
    a('ds_read_b64_tr_b16 %s, %s offset:%d' % (v(base, 2), areg[e], (2 * sg + part) * 16384 + k * 256))


for ks in range(16):
    a('v_add_u32 %s, %s, %s' % (v(ACC + ks), sK64, v(ACC + ks)))
a('v_add_u32 v26, %s, v24' % sK64)
a('v_add_u32 v27, %s, v25' % sK64)


def round_scores(d):
    if MIMIC:
        for r in (0, 2):
            a('v_cvt_pk_bf16_f32 %s, %s, %s' % (v(d + r + 1), v(d + r), v(d + r + 1)))
        for r in (0, 2):
            a('v_lshlrev_b32 %s, 16, %s' % (v(d + r), v(d + r + 1)))
            a('v_and_b32 %s, 0xffff0000, %s' % (v(d + r + 1), v(d + r + 1)))
    for r in range(4):
        a('v_mul_f32 %s, 0x3db504f3, %s' % (v(d + r), v(d + r)))
    if MIMIC:
        for r in (0, 2):
            a('v_cvt_pk_bf16_f32 %s, %s, %s' % (v(d + r + 1), v(d + r), v(d + r + 1)))
        for r in (0, 2):
            a('v_lshlrev_b32 %s, 16, %s' % (v(d + r), v(d + r + 1)))
            a('v_and_b32 %s, 0xffff0000, %s' % (v(d + r + 1), v(d + r + 1)))


spin(F_H1, 4)
stamp(9)
for ks in range(15):
    rda(ks)
round_scores(SD)
a('v_max3_f32 v14, %s, %s, %s' % (v(SD), v(SD + 1), v(SD + 2)))
a('v_max_f32 v14, v14, %s' % v(SD + 3))
a('v_lshl_add_u32 v28, %s, 2, %s' % (vI, vLB))
trs = [(sg, tau, part) for sg in range(2) for tau in range(8) for part in range(2)]
for ks in range(16):
    a('s_waitcnt lgkmcnt(14)')
    mfma(SD + 4, AF + 4 * ks, QF + 4 * ks, None if ks == 0 else SD + 4)
    if ks == 0:
        rda(15)
    else:
        tr_read(0, *trs.pop(0))
a('s_lshr_b32 %s, %s, 1' % (sT0, sW))
a('s_lshl_b32 %s, %s, 11' % (sT0, sT0))
a('s_and_b32 %s, %s, 1' % (sT1, sW))
a('s_lshl3_add_u32 %s, %s, %s' % (sT0, sT1, sT0))
a('v_add_u32 v29, %s, v31' % sT0)
a('v_mov_b32 v15, 0x3fb8aa3b')
round_scores(SD + 4)
a('v_max3_f32 v14, v14, %s, %s' % (v(SD + 4), v(SD + 5)))
a('v_max3_f32 v14, v14, %s, %s' % (v(SD + 6), v(SD + 7)))
a('ds_max_f32 v28, v14 offset:%d' % (MX - LB))
flag_add(F_MX)
spin(F_MX, 4, reads=['ds_read_b32 v52, v28 offset:%d' % (MX - LB)])
stamp(10)
for _ in range(9):
    tr_read(0, *trs.pop(0))
a('v_mul_f32 v14, 0xbfb8aa3b, v52')
for r in range(8):
    a('v_fma_f32 %s, %s, v15, v14' % (v(SD + r), v(SD + r)))
for r in range(8):
    a('v_exp_f32 %s, %s' % (v(SD + r), v(SD + r)))
PF = QF
for r in range(4):
    a('v_cvt_pk_bf16_f32 %s, %s, %s' % (v(48 + r), v(SD + 2 * r), v(SD + 2 * r + 1)))
a('ds_write_b64 v29, v[48:49] offset:%d' % (PL - LB))
a('ds_write_b64 v29, v[50:51] offset:%d' % (PL - LB + 1024))
flag_add(F_P)
while trs:
    tr_read(0, *trs.pop(0))
sum8('v14', SD)
a('v_mul_u32_u24 v15, 80, %s' % vI)
a('v_add_u32 v54, 0x%x, v15' % LS)
a('v_lshl_add_u32 v15, %s, 2, v54' % vG)
a('s_lshl_b32 %s, %s, 4' % (sT0, sW))
a('v_add_u32 v15, %s, v15' % sT0)
a('ds_write_b32 v15, v14')
flag_add(F_L)
spin(F_P, 4, reads=['ds_read_b128 %s, v31 offset:%d' % (v(PF + 4 * k, 4), PL - LB + 1024 * k) for k in range(4)])
stamp(11)
fill = []
fill += ['s_lshl_b32 %s, %s, 21' % (sT0, sHG), 's_lshl_b32 %s, %s, 15' % (sT1, sW), 's_add_u32 %s, %s, %s' % (sT0, sT0, sT1),
         's_lshl_b32 %s, %s, 8' % (sT1, sKB), 's_add_u32 %s, %s, %s' % (sT0, sT0, sT1), 's_add_u32 %s, %s, 0x%x' % (sT0, sT0, W_OP),
         'v_lshlrev_b32 v30, 19, %s' % vG, 'v_lshl_or_b32 v30, %s, 4, v30' % vI, 'v_add_u32 v30, %s, v30' % sT0,
         'v_add_u32 v16, 0x20000, v30', 'v_add_u32 v17, 0x40000, v30', 'v_add_u32 v18, 0x60000, v30']
for sg in range(2):
    for tau in range(8):
        mfma(ACC + 4 * tau, PF + 4 * (sg * 2 + 0), PV0 + (sg * 8 + tau) * 4, None if sg == 0 else ACC + 4 * tau)
        tr_read(1, sg, tau, 0); tr_read(1, sg, tau, 1)
        if fill:
            a(fill.pop(0))
for sg in range(2):
    for tau in range(8):
        idx = sg * 8 + tau
        a('s_waitcnt lgkmcnt(%d)' % min(15, 30 - 2 * idx))
        mfma(ACC + 4 * tau, PF + 4 * (sg * 2 + 1), PV1 + idx * 4, ACC + 4 * tau)
OB = 64
for u in range(4):
    for r in range(4):
        a('v_cvt_pk_bf16_f32 %s, %s, %s' % (v(OB + 4 * r + u), v(ACC + 8 * u + r), v(ACC + 8 * u + 4 + r)))
for r, ar in enumerate(('v30', 'v16', 'v17', 'v18')):
    a('global_store_dwordx4 %s, %s, %s sc1' % (ar, v(OB + 4 * r, 4), pWS))
a('s_cmp_lg_u32 %s, 0' % sW)
a('s_cbranch_scc1 L_nostat')
spin(F_L, 4, reads=['ds_read_b128 %s, v54 offset:%d' % (v(96 + 4 * k, 4), 16 * k) for k in range(4)])
for k in range(0, 8, 2):
    pkadd(96 + k, 96 + k, 104 + k)
sum8('v53', 96)
st_addr('v14')
setexec(0xffff)
a('global_store_dwordx2 v14, v[52:53], %s sc1' % pWS)
setexec(-1)
a.label('L_nostat')
stamp(12)
HD_ = 96; HS = 128; HA = 136; HACC = 144
a('s_lshl2_add_u32 %s, %s, %s' % (sT0, sH, sCQ))
a('s_lshl2_add_u32 %s, %s, %s' % (sT0, sT0, sW))
a('s_lshl_b32 %s, %s, 13' % (sT0, sT0))
a('s_add_u32 %s, %s, 0x%x' % (sT0, sT0, W_OP + 4096))
a('v_add_u32 v24, %s, %s' % (sT0, vL16))
a('s_lshl_b32 %s, %s, 2' % (sT0, sW))
a('v_add_u32 v25, %s, %s' % (sT0, vI))
a('v_and_b32 v25, 15, v25')
a('v_lshl_add_u32 v25, v25, 2, %s' % vG)
a('s_lshl_b32 %s, %s, 10' % (sT0, sH))
a('s_add_u32 %s, %s, 0x%x' % (sT0, sT0, W_ST))
a('v_lshl_add_u32 v25, v25, 4, %s' % sT0)
a('s_lshl_b32 %s, %s, 9' % (sT0, sW))
a('v_add_u32 v31, %s, v31' % sT0)
a('s_waitcnt vmcnt(0)')
stamp(13)
Lr = a.newlabel('h3'); Ld = a.newlabel('h3d')
a.label(Lr)
a('global_load_dwordx4 %s, v25, %s sc1' % (v(HS, 4), pWS))
for t in range(8):
    a('global_load_dwordx4 %s, v24, %s offset:%d sc1' % (v(HD_ + 4 * t, 4), pWS, 1024 * t - 4096))
a('s_waitcnt vmcnt(8)')
a('v_max_f32 v14, %s, %s' % (v(HS), v(HS + 2)))
a('v_max3_u32 v26, %s, %s, %s' % (v(HS), v(HS + 1), v(HS + 2)))
a('v_max_u32 v26, v26, %s' % v(HS + 3))
allreduce('v_max_f32', 'v14', 'v15')
a('v_sub_f32 v16, %s, v14' % v(HS))
a('v_sub_f32 v17, %s, v14' % v(HS + 2))
a('v_mul_f32 v16, 0x3fb8aa3b, v16')
a('v_mul_f32 v17, 0x3fb8aa3b, v17')
a('v_exp_f32 v16, v16')
a('v_exp_f32 v17, v17')
a('v_cmp_eq_u32 %s, -1, v26' % mT1)
a('v_cvt_pk_bf16_f32 v16, v16, v16')
a('v_cvt_pk_bf16_f32 v17, v17, v17')
a('v_and_b32 v18, 0xffff0000, v16')
a('v_and_b32 v19, 0xffff0000, v17')
a('v_mul_f32 v18, v18, %s' % v(HS + 1))
a('v_fmac_f32 v18, v19, %s' % v(HS + 3))
for t in range(8):
    s = HA + 4 * (t & 1)
    for r in range(4):
        a('v_and_b32_dpp %s, %s, %s row_newbcast:%d row_mask:0xf bank_mask:0xf' % (v(s + r), 'v16' if (t & 1) == 0 else 'v17', vM[r], t >> 1))
    if t < 4:
        a('v_add_f32_dpp v18, v18, v18 row_ror:%d row_mask:0xf bank_mask:0xf' % (8 >> t))
    if t >= 1:
        a('s_waitcnt vmcnt(%d)' % (7 - (t - 1)))
        mfma(HACC, HA + 4 * ((t - 1) & 1), HD_ + 4 * (t - 1), None if t == 1 else HACC)
a('s_waitcnt vmcnt(0)')
mfma(HACC, HA + 4, HD_ + 28, HACC)
crossrow('v_add_f32', 'v18', 'v15')
a('v_rcp_f32 v18, v18')
a('v_cmp_u_f32 vcc, %s, %s' % (v(HACC), v(HACC)))
for r in range(4):
    a('v_mul_f32 %s, %s, v18' % (v(HACC + r), v(HACC + r)))
a('s_or_b64 vcc, vcc, %s' % mT1)
retry_tail(Lr, Ld, sleep=4)
setexec(0xffffffff)
a('ds_write_b128 v31, %s offset:%d' % (v(HACC, 4), CL - LB))
flag_add(F_CL)
stamp(14)
a('s_cmp_lg_u32 s2, 0')
a('s_cbranch_scc1 L_fdone')
a('s_cmp_lg_u32 %s, 0' % sW)
a('s_cbranch_scc1 L_fdone')
spin(F_CL, 4)
a('v_mov_b32 v14, 0')
a('v_mov_b32 v15, %s' % sEp)
a('s_mov_b64 exec, 1')
a('global_store_dword v14, v15, %s sc1' % pWS)
a.label('L_fdone')
dump_stamps()
a.label('L_end')
a('s_endpgm')
a.label('L_code_end')

hdr = open('cdna_kernels/%s.s.ref' % NAME).read().split('; Override launch geometry')[0]
src = hdr + '; @launch grid=(256,1,1) block=(512,1,1) lds=%d\n' % LDS_BYTES
src += '''.amdgcn_target "amdgcn-amd-amdhsa--gfx950"
.text
.globl {n}_kernel
.p2align 8
.type {n}_kernel,@function
{n}_kernel:
'''.format(n=NAME)
src += a.text()
src += '''.section .rodata,"a"
.p2align 6
.amdhsa_kernel {n}_kernel
  .amdhsa_next_free_vgpr 256
  .amdhsa_next_free_sgpr 102
  .amdhsa_accum_offset 256
  .amdhsa_group_segment_fixed_size 0
  .amdhsa_kernarg_size 104
  .amdhsa_user_sgpr_count 2
  .amdhsa_user_sgpr_kernarg_segment_ptr 1
  .amdhsa_system_sgpr_workgroup_id_x 1
.end_amdhsa_kernel
'''.format(n=NAME)
out = [x for x in sys.argv[1:] if not x.startswith('--')]
open(out[0] if out else 'cdna_kernels/%s.s' % NAME, 'w').write(src)
print('LDS', LDS_BYTES)
```

```python
import sys
from asmlib import Asm

NAME = 'recurrent_scan__compressed_kv_cla__geglu_ffn__decode'
STAMPS = '--stamps' in sys.argv
MIMIC = True


def opt(name, default):
    for x in sys.argv:
        if x.startswith('--%s=' % name):
            return int(x.split('=')[1])
    return default


W1 = opt('w1', 4)
GATE3 = opt('gate3', 1)
P0 = opt('p0', 1)
XNT = opt('xnt', 0)
GO_AT = opt('go', 8)

W_QP = 0x10000
W_ST = 0x30000
W_FP = 0x38000
W_SP = 0x60000
W_C3 = 0x1000
W_F3 = 0x3000
W_OP = 0x200000
W_STAMP = 0x800000
LB = 131072
QL = 131072
PL = 147712
XT = 151808
XR = 153856
QSUM = 154880
CX = QSUM
CL = QSUM + 2048
FS = CL + 2048
FIN = FS
LS = FS + 2048
FL = LS + 1280
F_QS, F_QL, F_H1, F_MX, F_P, F_CL, F_CX, F_FS, F_FIN, F_XT, F_GO, F_H0, F_OP = [FL + 4 * k for k in range(13)]
MX = FL + 64
ML = MX + 64
LDS_BYTES = ML + 32

sWave, sW, sX, sI, sA, sH, sDH, sCQ, sKB, sHG, sI15 = ['s%d' % k for k in range(3, 14)]
sT0, sT1 = 's14', 's15'
pX, pCKV, pWQ, pWUK, pWUV, pWO, pBX, pWG, pWU, pWD, pOUT, pDBG, pWS = ['s[%d:%d]' % (16 + 2 * k, 17 + 2 * k) for k in range(13)]
sT2, sT3, sT4, sT5 = 's42', 's43', 's44', 's45'
sHD = 's46'
sFG1 = 's47'
sTag = ['s48', 's49', 's50', 's51']
sEp = 's52'
sBudL, sBudG = 's53', 's54'
sK64 = 's55'
pB = 's[56:57]'; pBlo, pBhi = 's56', 's57'
pC = 's[58:59]'
mVALID = 's[92:93]'
mT0 = 's[94:95]'
sTodo = 's96'; sDum = 's97'; sEpRaw = 's98'
vLane, vI, vG, vR8, vCH, vL16, vLB = ['v%d' % k for k in range(1, 8)]
vM = ['v8', 'v9', 'v10', 'v11']
vOne = 'v12'
vF = 'v13'


def v(n, cnt=1):
    return 'v%d' % n if cnt == 1 else 'v[%d:%d]' % (n, n + cnt - 1)


a = Asm()


def stamp(k):
    if STAMPS:
        a('s_memrealtime s[%d:%d]' % (60 + 2 * k, 61 + 2 * k))


def setexec(m):
    if m == -1 or m < 0x80000000:
        a('s_mov_b64 exec, %s' % (hex(m) if m > 64 else str(m)))
    else:
        a('s_mov_b32 exec_lo, 0x%x' % (m & 0xffffffff))
        a('s_mov_b32 exec_hi, 0x%x' % (m >> 32))


def flag_add(*flags):
    a('s_mov_b64 exec, 1')
    for f in flags:
        a('ds_add_u32 %s, %s offset:%d' % (vLB, vOne, f - LB))
    a('s_mov_b64 exec, -1')


def spin(flag, target, reads=(), sleep=0):
    L = a.newlabel('spin'); D = a.newlabel('spind')
    a.label(L)
    a('ds_read_b32 %s, %s offset:%d' % (vF, vLB, flag - LB))
    for r in reads:
        a(r)
    a('s_waitcnt lgkmcnt(0)')
    a('v_readfirstlane_b32 %s, %s' % (sT0, vF))
    a('s_cmp_ge_u32 %s, %d' % (sT0, target))
    a('s_cbranch_scc1 %s' % D)
    if sleep:
        a('s_sleep %d' % sleep)
    a('s_sub_u32 %s, %s, 1' % (sBudL, sBudL))
    a('s_cbranch_scc0 %s' % L)
    a('s_mov_b32 %s, 0' % sBudL)
    a.label(D)


def retry_tail(L, D, sleep=2):
    a('s_cbranch_vccz %s' % D)
    if sleep:
        a('s_sleep %d' % sleep)
    a('s_sub_u32 %s, %s, 1' % (sBudG, sBudG))
    a('s_cbranch_scc0 %s' % L)
    a('s_mov_b32 %s, 0' % sBudG)
    a.label(D)


def dppop(op, x, ctl):
    a('%s_dpp %s, %s, %s %s row_mask:0xf bank_mask:0xf' % (op, x, x, x, ctl))


def crossrow(op, x, t):
    a('v_mov_b32 %s, %s' % (t, x))
    a('v_permlane16_swap_b32 %s, %s' % (x, t))
    a('%s %s, %s, %s' % (op, x, x, t))
    a('v_mov_b32 %s, %s' % (t, x))
    a('v_permlane32_swap_b32 %s, %s' % (x, t))
    a('%s %s, %s, %s' % (op, x, x, t))


def allreduce(op, x, t):
    for r in (8, 4, 2, 1):
        dppop(op, x, 'row_ror:%d' % r)
    crossrow(op, x, t)


def rnd_bf16(dst, src):
    a('v_cvt_pk_bf16_f32 %s, %s, %s' % (dst, src, src))
    a('v_and_b32 %s, 0xffff0000, %s' % (dst, dst))


def mfma(d, A, B, c=None):
    a('v_mfma_f32_16x16x32_bf16 %s, %s, %s, %s' % (v(d, 4), v(A, 4), v(B, 4), '0' if c is None else v(c, 4)))


def pkadd(d, x, y):
    a('v_pk_add_f32 %s, %s, %s' % (v(d, 2), v(x, 2), v(y, 2)))


def sum8(d, b):
    pkadd(b, b, b + 2); pkadd(b + 4, b + 4, b + 6); pkadd(b, b, b + 4)
    a('v_add_f32 %s, %s, %s' % (d, v(b), v(b + 1)))


def common_consts():
    a('v_and_b32 v14, 1, %s' % vCH)
    a('v_lshlrev_b32 v14, 4, v14')
    a('v_mov_b32 v15, 0xffff')
    a('v_lshlrev_b32 v14, v14, v15')
    a('v_lshrrev_b32 v15, 1, %s' % vCH)
    a('v_cmp_eq_u32 vcc, 0, v15')
    a('v_cmp_eq_u32 s[92:93], 1, v15')
    a('v_cmp_eq_u32 s[94:95], 2, v15')
    a('v_cndmask_b32 %s, 0, v14, vcc' % vM[0])
    a('v_cmp_eq_u32 vcc, 3, v15')
    a('v_cndmask_b32 %s, 0, v14, s[92:93]' % vM[1])
    a('v_cndmask_b32 %s, 0, v14, s[94:95]' % vM[2])
    a('v_cndmask_b32 %s, 0, v14, vcc' % vM[3])
    a('s_mov_b32 s92, 0x00ff00ff')
    a('s_mov_b32 s93, 0xff00ff00')


def part_waddr(dst, base):
    a('v_and_b32 %s, 1, %s' % (dst, vG))
    a('v_lshlrev_b32 %s, 4, %s' % (dst, dst))
    a('v_lshl_or_b32 %s, %s, 5, %s' % (dst, vCH, dst))
    a('v_lshrrev_b32 v15, 5, %s' % vLane)
    a('v_lshl_or_b32 %s, v15, 8, %s' % (dst, dst))
    a('s_lshl_b32 %s, %s, 9' % (sT0, sW))
    a('s_add_u32 %s, %s, 0x%x' % (sT0, sT0, base))
    a('v_add_u32 %s, %s, %s' % (dst, sT0, dst))


def make_tags():
    a('s_add_u32 %s, %s, 0x01010101' % (sEp, sEpRaw))
    a('s_and_b32 %s, %s, 0xff' % (sTag[0], sEp))
    a('s_bfe_u32 %s, %s, 0x80008' % (sTag[1], sEp))
    a('s_bfe_u32 %s, %s, 0x80010' % (sTag[2], sEp))
    a('s_lshr_b32 %s, %s, 24' % (sTag[3], sEp))


def tag4(b, vmask):
    for r in range(4):
        a('v_bfi_b32 %s, %s, %s, %s' % (v(b + r), vmask, sTag[r], v(b + r)))


def chk4(acc, b, first=False):
    for r in range(4):
        if first and r == 0:
            a('v_xor_b32 %s, %s, %s' % (acc, sTag[0], v(b)))
        else:
            a('v_bitop3_b32 %s, %s, %s, %s bitop3:0xf6' % (acc, acc, v(b + r), sTag[r]))


def dump_stamps():
    if not STAMPS:
        return
    a('s_memtime s[90:91]')
    a('s_waitcnt lgkmcnt(0)')
    a('s_sub_u32 s90, s90, s100')
    a('s_mov_b64 exec, -1')
    a('v_mov_b32 v14, 0')
    for k in range(16):
        a('v_writelane_b32 v14, s%d, %d' % (60 + 2 * k, k))
    a('s_lshl_b32 %s, s2, 3' % sT0)
    a('s_add_u32 %s, %s, %s' % (sT0, sT0, sWave))
    a('s_lshl_b32 %s, %s, 6' % (sT0, sT0))
    a('s_add_u32 %s, %s, 0x%x' % (sT0, sT0, W_STAMP))
    a('v_lshl_add_u32 v15, %s, 2, %s' % (vLane, sT0))
    a('s_mov_b64 exec, 0xffff')
    a('global_store_dword v15, v14, %s' % pWS)


X4 = 52
a('s_cmpk_gt_u32 s2, 255')
a('s_cbranch_scc1 L_end')
a('s_load_dwordx16 s[16:31], s[0:1], 0')
a('s_load_dwordx8 s[32:39], s[0:1], 64')
a('s_load_dwordx2 s[40:41], s[0:1], 96')
stamp(0)
if STAMPS:
    a('s_memtime s[100:101]')
    for k in range(1, 16):
        a('s_mov_b32 s%d, 0' % (60 + 2 * k))
a('v_lshrrev_b32 v14, 6, v0')
a('v_and_b32 %s, 63, v0' % vLane)
a('v_readfirstlane_b32 %s, v14' % sWave)
a('v_mov_b32 %s, 0x%x' % (vLB, LB))
a('v_and_b32 %s, 15, %s' % (vI, vLane))
a('v_mov_b32 v44, 0')
a('v_mov_b32 v45, 0xff800000')
a('v_lshl_add_u32 v49, %s, 2, %s' % (vI, vLB))
a('ds_write_b32 v49, v44 offset:%d' % (FL - LB))
a('ds_write_b32 v49, v45 offset:%d' % (MX - LB))
a('s_and_b32 %s, s2, 7' % sX)
a('s_lshr_b32 %s, s2, 3' % sI)
a('s_lshr_b32 %s, s2, 7' % sA)
a('s_bfe_u32 %s, s2, 0x10006' % sT0)
a('s_lshl1_add_u32 %s, %s, %s' % (sT0, sX, sT0))
a('s_lshl4_add_u32 %s, %s, %s' % (sH, sA, sT0))
a('s_bfe_u32 %s, s2, 0x10005' % sDH)
a('s_lshl1_add_u32 %s, %s, %s' % (sHD, sH, sDH))
a('s_lshl_b32 %s, %s, 7' % (sHD, sHD))
a('s_and_b32 %s, %s, 3' % (sW, sWave))
a('v_lshrrev_b32 %s, 3, %s' % (vR8, vLane))
a('v_and_b32 %s, 7, %s' % (vCH, vLane))
a('v_lshlrev_b32 v16, 13, %s' % vR8)
a('v_lshl_or_b32 v16, %s, 4, v16' % vCH)
a('v_lshlrev_b32 %s, 4, %s' % (vL16, vLane))
a('s_mov_b32 %s, 0x10000' % sK64)
a('s_and_b32 %s, %s, 3' % (sCQ, sI))
a('s_lshl_b32 %s, %s, 20' % (sT0, sW))
a('s_add_u32 %s, %s, %s' % (sT0, sT0, sHD))
a('v_add_u32 v17, %s, v16' % sT0)
a('s_lshl_b32 %s, %s, 18' % (sT2, sCQ))
a('v_add_u32 v18, %s, v17' % sT2)
a('v_lshrrev_b32 %s, 4, %s' % (vG, vLane))
a('v_mov_b32 %s, 1' % vOne)
a('s_and_b32 %s, %s, 15' % (sI15, sI))
a('s_lshl4_add_u32 %s, %s, %s' % (sKB, sX, sI15))
a('s_xor_b32 %s, %s, 1' % (sHG, sA))
a('s_mov_b32 %s, 0x200000' % sBudL)
a('s_movk_i32 %s, 8192' % sBudG)
a('s_getpc_b64 %s' % pC)
a.label('L_pc')
a('s_lshl2_add_u32 %s, %s, %s' % (sT3, sI, sW))
a('s_lshl_b32 %s, %s, 7' % (sT3, sT3))
a('s_min_u32 %s, %s, L_code_end-L_pc-4' % (sT3, sT3))
a('s_cmp_lg_u32 %s, 0' % sWave)
a('s_waitcnt lgkmcnt(0)')
a('s_cbranch_scc1 L_nox')
a('global_load_dwordx4 %s, %s, %s%s' % (v(X4, 4), vL16, pX, ' nt' if XNT else ''))
a.label('L_nox')
a('s_load_dword %s, %s, 0' % (sEpRaw, pWS))
a('s_load_dword %s, %s, %s' % (sDum, pC, sT3))
a('s_barrier')
a('s_cmp_lt_u32 %s, 4' % sWave)
a('s_cbranch_scc1 L_stream')

WQ = 64; WUK = 128; XD = 144; AP = 160; ACCQ = 168; QR = 172; QB = 188; D2 = 196
a('s_setprio 3')
for t in range(16):
    if t % 4 == 0 and t:
        a('v_add_u32 v18, %s, v17' % sT2)
    a('global_load_dwordx4 %s, v18, %s nt' % (v(WQ + 4 * t, 4), pWQ))
    if t % 4 != 3:
        a('v_add_u32 v18, %s, v18' % sK64)
    elif t < 15:
        a('s_add_u32 %s, %s, 0x40000' % (sT2, sT2))
        a('s_and_b32 %s, %s, 0xc0000' % (sT2, sT2))
    if t == 3:
        a('s_lshl2_add_u32 %s, %s, %s' % (sT1, sCQ, sW))
        a('s_lshl_b32 %s, %s, 18' % (sT1, sT1))
        a('s_add_u32 %s, %s, %s' % (sT1, sT1, sHD))
        a('v_lshlrev_b32 v19, 4, %s' % vR8)
        a('v_xor_b32 v19, v19, v16')
        a('v_add_u32 v19, %s, v19' % sT1)
        a('s_lshl_b32 %s, %s, 12' % (sT1, sW))
        a('s_add_u32 m0, %s, 0x%x' % (sT1, QL))
        for k in range(4):
            a('global_load_lds_dwordx4 v19, %s offset:%d nt' % (pWUK, 1024 * k))
            if k < 3:
                a('v_add_u32 v19, %d, v19' % (65536 - 1024))
    if t == GO_AT - 1:
        flag_add(F_GO)
stamp(1)
a('s_branch L_front')

a.label('L_stream')
XF = 24
vSPA = 'v18'; vFPA = 'v19'
a('s_cmp_lg_u32 %s, 0' % sW)
a('s_cbranch_scc1 L_sprep')
a('s_setprio 3')
a('v_add_u32 v48, %s, %s' % (vLB, vL16))
a('v_lshlrev_b32 v35, 9, %s' % vG)
a('v_add_u32 v35, v49, v35')
a('s_waitcnt vmcnt(0)')
stamp(3)
for k in range(4):
    a('v_lshlrev_b32 %s, 16, %s' % (v(XF + 2 * k), v(X4 + k)))
    a('v_and_b32 %s, 0xffff0000, %s' % (v(XF + 2 * k + 1), v(X4 + k)))
pkadd(32, XF, XF + 2); pkadd(36, XF + 4, XF + 6); pkadd(32, 32, 36)
a('v_add_f32 v32, v32, v33')
a('ds_write_b128 v48, %s offset:%d' % (v(X4, 4), XR - LB))
allreduce('v_add_f32', 'v32', 'v33')
a('v_mul_f32 v32, 0x3b000000, v32')
for k in range(8):
    a('v_sub_f32 %s, %s, v32' % (v(36 + k), v(XF + k)))
rnd_bf16('v32', 'v32')
a('v_mul_f32 v34, v36, v36')
a('v_mul_f32 v33, v37, v37')
for k in range(2, 8, 2):
    a('v_fmac_f32 v34, %s, %s' % (v(36 + k), v(36 + k)))
    a('v_fmac_f32 v33, %s, %s' % (v(37 + k), v(37 + k)))
a('v_add_f32 v34, v34, v33')
fill = []
for k in range(8):
    fill.append('v_sub_f32 %s, %s, v32' % (v(XF + k), v(XF + k)))
for k in range(0, 8, 2):
    fill.append('v_cvt_pk_bf16_f32 %s, %s, %s' % (v(XF + k + 1), v(XF + k), v(XF + k + 1)))
for k in range(0, 8, 2):
    fill.append('v_lshlrev_b32 %s, 16, %s' % (v(XF + k), v(XF + k + 1)))
    fill.append('v_and_b32 %s, 0xffff0000, %s' % (v(XF + k + 1), v(XF + k + 1)))
for r in (8, 4, 2, 1):
    a(fill.pop(0)); a(fill.pop(0))
    dppop('v_add_f32', 'v34', 'row_ror:%d' % r)
a('v_mov_b32 v33, v34')
a(fill.pop(0)); a(fill.pop(0))
a('v_permlane16_swap_b32 v34, v33')
a('v_add_f32 v34, v34, v33')
a('v_mov_b32 v33, v34')
a(fill.pop(0)); a(fill.pop(0))
a('v_permlane32_swap_b32 v34, v33')
a('v_add_f32 v34, v34, v33')
a('v_mul_f32 v34, 0x3b000000, v34')
rnd_bf16('v34', 'v34')
a('v_add_f32 v34, 0x3727c5ac, v34')
rnd_bf16('v34', 'v34')
a('v_sqrt_f32 v34, v34')
a(fill.pop(0)); a(fill.pop(0))
rnd_bf16('v34', 'v34')
a('v_rcp_f32 v34, v34')
while fill:
    a(fill.pop(0))
for k in range(8):
    a('v_mul_f32 %s, %s, v34' % (v(XF + k), v(XF + k)))
for k in range(8):
    a('v_cvt_pk_bf16_f32 %s, %s, %s' % (v(XF + k), v(XF + k), v(XF + k)))
    a('ds_write_b32 v35, %s offset:%d' % (v(XF + k), XT - LB + 64 * k))
flag_add(F_XT)
a('s_setprio %d' % P0)
a.label('L_sprep')
common_consts()
a('s_lshl_b32 %s, %s, 18' % (sT0, sW))
a('s_lshl_b32 %s, s2, 6' % sT1)
a('s_add_u32 %s, %s, %s' % (sT0, sT0, sT1))
a('s_add_u32 %s, %s, 0x%x' % (sT0, sT0, W_SP))
a('v_lshlrev_b32 %s, 14, %s' % (vSPA, vI))
a('v_lshl_or_b32 %s, %s, 4, %s' % (vSPA, vG, vSPA))
a('v_add_u32 %s, %s, %s' % (vSPA, sT0, vSPA))
DA = 44
a('s_and_b32 %s, %s, 1' % (sT0, sW))
a('s_lshr_b32 %s, %s, 1' % (sT1, sW))
a('s_lshl3_add_u32 %s, %s, %s' % (sT0, sT0, sT1))
a('s_lshl_b32 %s, %s, 4' % (sT0, sT0))
a('v_xor_b32 %s, %s, %s' % (v(DA), sT0, vL16))
a('v_xor_b32 %s, 32, %s' % (v(DA + 1), v(DA)))
a('v_xor_b32 %s, 64, %s' % (v(DA + 2), v(DA)))
a('v_xor_b32 %s, 0x60, %s' % (v(DA + 3), v(DA)))
a('s_lshl_b32 %s, %s, 17' % (sT0, sKB))
a('s_lshl_b32 %s, %s, 12' % (sT1, sW))
a('s_add_u32 %s, %s, %s' % (sT0, sT0, sT1))
a('s_add_u32 %s, s18, %s' % (pBlo, sT0))
a('s_addc_u32 %s, s19, 0' % pBhi)
a('s_mov_b32 m0, %s' % sT1)
stamp(1)
spin(F_GO, 4, sleep=1)
stamp(2)
make_tags()
a('s_lshl2_add_u32 %s, %s, %s' % (sT0, sI15, sW))
a('s_cmp_lg_u32 %s, 1' % sT0)
a('s_cbranch_scc1 L_noinit')
a('s_lshl3_add_u32 %s, %s, %s' % (sT0, sHG, sX))
a('s_lshl_b32 %s, %s, 8' % (sT0, sT0))
a('s_add_u32 %s, %s, 0x%x' % (sT0, sT0, W_C3))
a('v_lshl_add_u32 v14, %s, 13, %s' % (vLane, sT0))
a('v_sub_u32 v15, %s, %s' % (sEp, vLane))
a('s_mov_b64 exec, 3')
a('global_store_dword v14, v15, %s sc1' % pWS)
a('s_mov_b64 exec, -1')
a.label('L_noinit')


def dma_block():
    for q in range(4):
        a('global_load_lds_dwordx4 %s, %s offset:%d nt' % (v(DA + q), pB, 1024 * q))
    a('s_add_u32 %s, %s, 0x4000' % (pBlo, pBlo))
    a('s_addc_u32 %s, %s, 0' % (pBhi, pBhi))
    a('s_add_u32 m0, m0, 0x4000')


GU = 64; WUV = 80; WD = 96; WO = 104; FA = 168
for _ in range(6):
    dma_block()
a('s_waitcnt vmcnt(8)')
flag_add(F_H0)
stamp(4)
dma_block()
dma_block()
a('v_mov_b32 v53, 0xff')
a('s_min_u32 %s, %s, 13' % (sT2, sI15))
a('s_mul_i32 %s, %s, 14' % (sFG1, sA))
a('s_add_u32 %s, %s, %s' % (sFG1, sFG1, sT2))
a('s_bitcmp1_b32 %s, 0' % sW)
a('s_cselect_b64 %s, %s, %s' % (pB, pWU, pWG))
a('s_lshr_b32 %s, %s, 1' % (sT1, sW))
a('s_lshl1_add_u32 %s, %s, %s' % (sT0, sX, sT1))
a('s_mul_i32 %s, %s, %d' % (sT0, sT0, 32 * 3584))
a('s_lshl_b32 %s, %s, 7' % (sT1, sFG1))
a('s_add_u32 %s, %s, %s' % (sT0, sT0, sT1))
a('v_mul_u32_u24 v14, 3584, %s' % vR8)
a('v_lshl_add_u32 v14, %s, 4, v14' % vCH)
a('v_add_u32 v14, %s, v14' % sT0)
a('s_setprio 0')
ntail = [0]


def tload(txt, W):
    a('s_waitcnt vmcnt(%d)' % (W - 1))
    if ntail[0] == W1 - 1:
        flag_add(F_H1)
        stamp(5)
    a(txt)
    ntail[0] += 1


for t in range(4):
    tload('global_load_dwordx4 %s, v14, %s nt' % (v(GU + 4 * t, 4), pB), W1)
    if t < 3:
        a('v_add_u32 v14, %d, v14' % (8 * 3584))
a('s_lshr_b32 %s, %s, 1' % (sT0, sW))
a('s_lshl_b32 %s, %s, 5' % (sT0, sT0))
a('s_lshl2_add_u32 %s, %s, %s' % (sT0, sCQ, sT0))
a('s_and_b32 %s, %s, 1' % (sT1, sW))
a('s_add_u32 %s, %s, %s' % (sT0, sT0, sT1))
a('s_lshl_b32 %s, %s, 16' % (sT0, sT0))
a('s_add_u32 %s, %s, %s' % (sT0, sT0, sHD))
a('v_add_u32 v14, %s, v16' % sT0)
a('v_add_u32 v15, 0x20000, v14')
tload('global_load_dwordx4 %s, v14, %s nt' % (v(WUV + 0, 4), pWUV), W1)
tload('global_load_dwordx4 %s, v15, %s nt' % (v(WUV + 4, 4), pWUV), W1)
a('v_add_u32 v14, 0x100000, v14')
a('v_add_u32 v15, 0x100000, v15')
tload('global_load_dwordx4 %s, v14, %s nt' % (v(WUV + 8, 4), pWUV), W1)
tload('global_load_dwordx4 %s, v15, %s nt' % (v(WUV + 12, 4), pWUV), W1)
a('s_mul_i32 %s, %s, 14' % (sT3, sHG))
a('s_add_u32 %s, %s, %s' % (sT3, sT3, sT2))
a('s_lshl3_add_u32 %s, %s, %s' % (sT3, sT3, sX))
a('s_lshl_b32 %s, %s, 13' % (sT0, sT3))
a('s_lshl_b32 %s, %s, 8' % (sT1, sW))
a('s_add_u32 %s, %s, %s' % (sT0, sT0, sT1))
a('v_lshlrev_b32 v17, 10, %s' % vG)
a('v_lshl_or_b32 v17, %s, 4, v17' % vI)
a('v_add_u32 v14, %s, v17' % sT0)
a('v_add_u32 v15, 0x1000, v14')
tload('global_load_dwordx4 %s, v14, %s nt' % (v(WD + 0, 4), pWD), W1)
tload('global_load_dwordx4 %s, v15, %s nt' % (v(WD + 4, 4), pWD), W1)
a('s_lshl_b32 %s, %s, 9' % (sT0, sHD))
a('s_add_u32 %s, %s, %s' % (sT0, sT0, sT1))
a('s_add_u32 %s, %s, 0x1000' % (sT0, sT0))
a('v_add_u32 v17, %s, v17' % sT0)
a('s_lshl_b32 %s, %s, 14' % (sT4, sCQ))


def wo_pair(p, W=None):
    a('v_add_u32 v14, %s, v17' % sT4)
    if W:
        a('s_waitcnt vmcnt(%d)' % max(W - 2, 0))
    a('global_load_dwordx4 %s, v14, %s offset:-4096 nt' % (v(WO + 8 * p, 4), pWO))
    a('global_load_dwordx4 %s, v14, %s nt' % (v(WO + 8 * p + 4, 4), pWO))
    if p < 7:
        a('s_add_u32 %s, %s, 0x2000' % (sT4, sT4))
        a('s_and_b32 %s, %s, 0xe000' % (sT4, sT4))


a('s_lshr_b32 %s, %s, 1' % (sT0, sX))
a('s_lshl_b32 %s, %s, 9' % (sT0, sT0))
a('s_and_b32 %s, %s, 1' % (sT1, sX))
a('s_lshl_b32 %s, %s, 5' % (sT1, sT1))
a('s_add_u32 %s, %s, %s' % (sT0, sT0, sT1))
a('s_lshr_b32 %s, %s, 1' % (sT1, sW))
a('s_lshl4_add_u32 %s, %s, %s' % (sT0, sT1, sT0))
a('s_add_u32 %s, %s, 0x%x' % (sT0, sT0, XT))
a('v_lshl_add_u32 v15, %s, 6, %s' % (vR8, sT0))
spin(F_XT, 1, reads=['ds_read_b128 v[24:27], v15'])
wo_pair(0, W1)
for t in range(4):
    for r in range(4):
        a('v_and_b32 %s, %s, %s' % (v(FA + 4 * t + r), v(24 + t), vM[r]))
part_waddr('v32', CX)
a('s_and_b32 %s, %s, 1' % (sT0, sW))
a('s_lshr_b32 %s, %s, 1' % (sT1, sW))
a('s_lshl1_add_u32 %s, %s, %s' % (sT0, sT0, sT1))
a('s_sub_u32 %s, %s, %s' % (sT0, sT0, sW))
a('s_lshl_b32 %s, %s, 9' % (sT0, sT0))
a('v_add_u32 v33, %s, v32' % sT0)
a('v_bfe_u32 v36, %s, 2, 3' % vLane)
a('v_lshlrev_b32 v34, 5, v36')
a('v_and_b32 v35, 1, %s' % vLane)
a('v_lshl_or_b32 v34, v35, 4, v34')
a('v_bfe_u32 v35, %s, 1, 1' % vLane)
a('v_lshl_or_b32 v34, v35, 10, v34')
a('v_add_u32 v34, %s, v34' % vLB)
a('s_lshl_b32 %s, %s, 12' % (sT0, sFG1))
a('s_lshl_b32 %s, %s, 6' % (sT1, sX))
a('s_add_u32 %s, %s, %s' % (sT0, sT0, sT1))
a('s_add_u32 %s, %s, 0x%x' % (sT0, sT0, W_FP))
a('v_lshlrev_b32 v36, 9, v36')
a('v_and_b32 %s, 3, %s' % (vFPA, vLane))
a('v_lshl_or_b32 %s, %s, 4, v36' % (vFPA, vFPA))
a('v_add_u32 %s, %s, %s' % (vFPA, sT0, vFPA))
a('s_waitcnt vmcnt(8)')
for t in range(4):
    mfma(28, FA + 4 * t, GU + 4 * t, None if t == 0 else 28)
wo_pair(1, W1)
a('s_mov_b64 exec, %s' % mVALID)
a('ds_write_b128 v33, v[28:31] offset:%d' % (FS - CX))
a('s_mov_b64 exec, 1')
a('ds_add_rtn_u32 %s, %s, %s offset:%d' % (vF, vLB, vOne, F_FS - LB))
a('s_mov_b64 exec, -1')
for k in range(4):
    a('ds_read_b128 %s, v34 offset:%d' % (v(36 + 4 * k, 4), FS - LB + 256 * k))
a('s_waitcnt lgkmcnt(0)')
a('v_readfirstlane_b32 %s, %s' % (sT0, vF))
a('s_cmp_lg_u32 %s, 3' % sT0)
a('s_cbranch_scc1 L_nofp')
a('s_cmp_gt_u32 %s, 13' % sI15)
a('s_cbranch_scc1 L_nofp')
pkadd(36, 36, 40); pkadd(38, 38, 42); pkadd(44, 44, 48); pkadd(46, 46, 50); pkadd(36, 36, 44); pkadd(38, 38, 46)
tag4(36, 'v53')
setexec(0xffffffff)
a('global_store_dwordx4 %s, v[36:39], %s sc1' % (vFPA, pWS))
setexec(-1)
a.label('L_nofp')
stamp(6)
SA = 184
for k in range(16):
    a('v_mov_b32 %s, 0' % v(SA + k))
a('v_mov_b32 v52, 0')
a('s_lshl_b32 %s, %s, 7' % (sT0, sW))
a('s_add_u32 %s, %s, 0x%x' % (sT0, sT0, CL))
a('v_lshl_add_u32 v54, %s, 4, %s' % (vR8, sT0))
a('s_lshl_b32 %s, %s, 2' % (sT0, sCQ))
a('v_add_u32 v55, %s, %s' % (sT0, vI))
a('v_and_b32 v55, 15, v55')
a('v_lshl_add_u32 v55, v55, 2, %s' % vG)
a('v_lshlrev_b32 v55, 2, v55')
a('v_add_u32 v55, 0x%x, v55' % CX)
a('s_lshl_b32 %s, s2, 14' % sT0)
a('s_lshl_b32 %s, %s, 12' % (sT1, sW))
a('s_add_u32 %s, %s, %s' % (sT0, sT0, sT1))
a('s_add_u32 %s, %s, 0x%x' % (sT0, sT0, W_SP))
a('v_add_u32 v60, %s, %s' % (sT0, vL16))
a('v_and_b32 v61, 3, %s' % vLane)
a('v_lshl_add_u32 v61, %s, 2, v61' % vG)
a('v_lshlrev_b32 v61, 4, v61')
a('s_lshl_b32 %s, %s, 8' % (sT0, sW))
a('s_add_u32 %s, %s, 0x%x' % (sT0, sT0, FIN))
a('v_add_u32 v61, %s, v61' % sT0)
a('v_lshlrev_b32 v62, 2, %s' % vLane)
a('v_add_u32 v62, 0x%x, v62' % FIN)
a('s_lshl_b32 %s, s2, 4' % sT0)
a('s_and_b32 %s, %s, 0x3f0' % (sT0, sT0))
a('v_lshl_add_u32 v63, %s, 1, %s' % (vCH, sT0))
a('v_add_u32 v20, %s, v63' % vLB)
a('ds_read_u16 v21, v20 offset:%d' % (XR - LB))
a('s_mov_b32 s94, 0x000f000f')
a('s_mov_b32 s95, 0x000f000f')
if STAMPS:
    a('s_waitcnt vmcnt(0)')
stamp(7)
spin(F_OP, 4, sleep=2)
for p in range(2, 8):
    wo_pair(p)
a('s_cmp_gt_u32 %s, 13' % sI15)
a('s_cbranch_scc1 L_nof2')
a('s_lshl_b32 %s, %s, 9' % (sT0, sT3))
a('s_add_u32 %s, %s, 0x%x' % (sT0, sT0, W_FP))
a('v_and_b32 v14, 0x1f0, %s' % vL16)
a('v_add_u32 v14, %s, v14' % sT0)
Lr = a.newlabel('fhop'); Ld = a.newlabel('fhopd')
a.label(Lr)
a('global_load_dwordx4 v[36:39], v14, %s sc1' % pWS)
a('s_waitcnt vmcnt(0)')
chk4('v15', 36, True)
a('v_and_b32 v15, 0xff, v15')
a('v_cmp_ne_u32 vcc, 0, v15')
retry_tail(Lr, Ld, sleep=12)
for rr in (4, 8):
    for k in range(4):
        dppop('v_add_f32', v(36 + k), 'row_ror:%d' % rr)
for k in range(4):
    a('v_mov_b32 %s, %s' % (v(40 + k), v(36 + k)))
for k in range(4):
    a('v_permlane16_swap_b32 %s, %s' % (v(36 + k), v(40 + k)))
for k in range(4):
    a('v_add_f32 %s, %s, %s' % (v(36 + k), v(36 + k), v(40 + k)))
a('v_mov_b32_dpp v36, v37 quad_perm:[0,1,2,3] row_mask:0x2 bank_mask:0xf')
a('v_mov_b32_dpp v36, v38 quad_perm:[0,1,2,3] row_mask:0x4 bank_mask:0xf')
a('v_mov_b32_dpp v36, v39 quad_perm:[0,1,2,3] row_mask:0x8 bank_mask:0xf')
rnd_bf16('v36', 'v36')
a('v_mov_b32_dpp v37, v36 quad_perm:[2,3,2,3] row_mask:0xf bank_mask:0xf')
a('v_mul_f32 v38, v36, v36')
a('v_mov_b32 v39, 0x3d372713')
a('v_fma_f32 v38, v38, v39, 1.0')
a('v_mul_f32 v38, v38, v36')
a('v_mul_f32 v38, 0xc0135761, v38')
a('v_exp_f32 v38, v38')
a('v_add_f32 v38, 1.0, v38')
a('v_rcp_f32 v38, v38')
a('v_mul_f32 v38, v38, v36')
rnd_bf16('v38', 'v38')
a('v_mul_f32 v38, v38, v37')
a('v_cvt_pk_bf16_f32 v52, v38, v38')
a.label('L_nof2')
a('s_waitcnt vmcnt(0)')
stamp(8)
OUT = 56
for t in range(2):
    for r in range(4):
        a('v_and_b32_dpp %s, v52, %s row_newbcast:%d row_mask:0xf bank_mask:0xc' % (v(SA + 8 + 4 * t + r), vM[r], t))
mfma(OUT, SA + 8, WD, None)
mfma(OUT, SA + 12, WD + 4, OUT)
a('s_setprio 2')
spin(F_CL, 4, reads=['ds_read_b128 v[24:27], %s offset:%d' % (vLB, ML - LB), 'ds_read_b128 v[28:31], %s offset:%d' % (vLB, ML + 16 - LB)]
     + ['ds_read_b128 %s, v54 offset:%d' % (v(36 + 4 * k, 4), 512 * k) for k in range(4)], sleep=1)
stamp(9)
a('v_max3_f32 v14, v24, v25, v26')
a('v_max_f32 v14, v14, v27')
for k in range(4):
    a('v_sub_f32 %s, %s, v14' % (v(24 + k), v(24 + k)))
for k in range(4):
    a('v_exp_f32 %s, %s' % (v(24 + k), v(24 + k)))
a('v_mul_f32 v14, v24, v28')
a('v_mul_f32 v15, v25, v29')
a('v_fmac_f32 v14, v26, v30')
a('v_fmac_f32 v15, v27, v31')
a('v_add_f32 v14, v14, v15')
a('v_rcp_f32 v14, v14')
for t in range(4):
    a('v_mul_f32 %s, v24, %s' % (v(36 + t), v(36 + t)))
for k in range(1, 4):
    for t in range(4):
        a('v_fmac_f32 %s, %s, %s' % (v(36 + t), v(24 + k), v(36 + 4 * k + t)))
for t in range(4):
    a('v_mul_f32 %s, v14, %s' % (v(36 + t), v(36 + t)))
for t in range(4):
    a('v_cvt_pk_bf16_f32 %s, %s, %s' % (v(24 + t), v(36 + t), v(36 + t)))
for t in range(4):
    for r in range(4):
        a('v_and_b32 %s, %s, %s' % (v(FA + 4 * t + r), v(24 + t), vM[r]))
    if t >= 1:
        mfma(28, FA + 4 * (t - 1), WUV + 4 * (t - 1), None if t == 1 else 28)
mfma(28, FA + 12, WUV + 12, 28)
a('s_mov_b64 exec, %s' % mVALID)
a('ds_write_b128 v32, v[28:31]')
flag_add(F_CX)
spin(F_CX, 4, reads=['ds_read2st64_b32 %s, v55 offset0:%d offset1:%d' % (v(36 + 2 * k, 2), 2 * k, 2 * k + 1) for k in range(4)])
stamp(10)
sum8('v24', 36)
a('v_cvt_pk_bf16_f32 v24, v24, v24')
for t in range(16):
    s = SA + 4 * (t & 1)
    for r in range(4):
        a('v_and_b32_dpp %s, v24, %s row_newbcast:%d row_mask:0xf bank_mask:0x3' % (v(s + r), vM[r], t))
    if t >= 1:
        mfma(OUT, SA + 4 * ((t - 1) & 1), WO + 4 * (t - 1), OUT)
mfma(OUT, SA + 4, WO + 60, OUT)
tag4(OUT, 'v53')
a('global_store_dwordx4 %s, %s, %s sc1' % (vSPA, v(OUT, 4), pWS))
stamp(11)
a('s_cmp_gt_u32 s2, 63')
a('s_cbranch_scc1 L_sdone')
a('s_waitcnt vmcnt(0)')
stamp(12)
Lr = a.newlabel('fin'); Ld = a.newlabel('find')
a.label(Lr)
for k in range(4):
    a('global_load_dwordx4 %s, v60, %s offset:%d sc1' % (v(64 + 4 * k, 4), pWS, 1024 * k))
for k in range(4):
    a('s_waitcnt vmcnt(%d)' % (3 - k))
    chk4('v22', 64 + 4 * k, k == 0)
    if k == 1:
        pkadd(64, 64, 68); pkadd(66, 66, 70)
a('v_and_b32 v22, 0xff, v22')
a('v_cmp_ne_u32 vcc, 0, v22')
pkadd(72, 72, 76); pkadd(74, 74, 78); pkadd(64, 64, 72); pkadd(66, 66, 74)
retry_tail(Lr, Ld, sleep=4)
stamp(13)
for rr in (4, 8):
    for k in range(4):
        dppop('v_add_f32', v(64 + k), 'row_ror:%d' % rr)
a('s_mov_b64 exec, %s' % mT0)
a('ds_write_b128 v61, v[64:67]')
a('s_mov_b64 exec, 1')
a('ds_add_rtn_u32 %s, %s, %s offset:%d' % (vF, vLB, vOne, F_FIN - LB))
a('s_mov_b64 exec, -1')
a('ds_read2st64_b32 v[22:23], v62 offset0:0 offset1:1')
a('ds_read2st64_b32 v[24:25], v62 offset0:2 offset1:3')
a('s_waitcnt lgkmcnt(0)')
a('v_readfirstlane_b32 %s, %s' % (sT0, vF))
pkadd(22, 22, 24)
a('s_cmp_lg_u32 %s, 3' % sT0)
a('s_cbranch_scc1 L_sdone')
a('v_add_f32 v22, v22, v23')
crossrow('v_add_f32', 'v22', 'v23')
rnd_bf16('v22', 'v22')
a('v_mul_f32 v24, 0xbfb8aa3b, v22')
a('v_exp_f32 v24, v24')
a('v_add_f32 v24, 1.0, v24')
a('v_rcp_f32 v24, v24')
a('v_mul_f32 v24, v24, v22')
rnd_bf16('v24', 'v24')
a('v_lshlrev_b32 v21, 16, v21')
a('v_mul_f32_dpp v24, v24, v22 row_ror:8 row_mask:0xf bank_mask:0xf')
rnd_bf16('v24', 'v24')
a('v_add_f32 v24, v24, v21')
a('v_cvt_pk_bf16_f32 v24, v24, v24')
setexec(0xff)
a('global_store_short v63, v24, %s' % pOUT)
stamp(14)
a('s_cmp_lg_u32 s2, 0')
a('s_cbranch_scc1 L_sdone')
a('v_mov_b32 v14, 0')
a('v_mov_b32 v15, %s' % sEp)
a('s_mov_b64 exec, 1')
a('global_store_dword v14, v15, %s sc1' % pWS)
a.label('L_sdone')
dump_stamps()
a('s_endpgm')

a.label('L_front')
common_consts()
a('s_lshl_b32 %s, %s, 9' % (sT0, sW))
a('s_add_u32 %s, %s, 0x%x' % (sT0, sT0, XT))
a('v_lshl_add_u32 v14, %s, 6, %s' % (vR8, sT0))
for k in range(4):
    a('s_add_u32 %s, %s, %d' % (sT0, sCQ, k))
    a('s_and_b32 %s, %s, 3' % (sT0, sT0))
    a('s_lshl_b32 %s, %s, 4' % (sT0, sT0))
    a('v_add_u32 %s, %s, v14' % (v(56 + k), sT0))
spin(F_XT, 1, reads=['ds_read_b128 %s, %s' % (v(XD + 4 * k, 4), v(56 + k)) for k in range(4)])
stamp(2)
make_tags()
fill = []


def run_fill(n):
    for _ in range(n):
        if fill:
            a(fill.pop(0))


part_waddr('v22', QSUM)
a('v_lshrrev_b32 v23, 3, %s' % vI)
a('v_lshl_add_u32 v23, v23, 2, %s' % vG)
a('v_lshl_add_u32 v23, v23, 3, %s' % vCH)
a('v_lshlrev_b32 v23, 2, v23')
a('v_add_u32 v23, 0x%x, v23' % QSUM)
a('v_xor_b32 v20, %s, %s' % (vG, vCH))
a('v_lshlrev_b32 v20, 4, v20')
a('v_lshl_or_b32 v20, %s, 7, v20' % vI)
a('s_lshl_b32 %s, %s, 12' % (sT0, sW))
a('s_add_u32 %s, %s, 0x%x' % (sT0, sT0, QL))
a('v_add_u32 v20, %s, v20' % sT0)
a('v_xor_b32 v21, 64, v20')
a('s_lshl_b32 %s, %s, 4' % (sT0, sHD))
a('s_lshl2_add_u32 %s, %s, %s' % (sT1, sCQ, sW))
a('s_lshl_b32 %s, %s, 7' % (sT1, sT1))
a('s_add_u32 %s, %s, %s' % (sT0, sT0, sT1))
a('s_add_u32 %s, %s, 0x%x' % (sT0, sT0, W_QP))
a('v_and_b32 v24, 1, %s' % vLane)
a('v_lshlrev_b32 v25, 6, v24')
a('v_lshl_or_b32 v25, %s, 4, v25' % vG)
a('v_add_u32 v25, %s, v25' % sT0)
a('v_cmp_eq_u32 %s, 1, v24' % mT0)
a('v_mov_b32 v26, 0xff')
for t in range(16):
    s = AP + 4 * (t & 1)
    for r in range(4):
        a('v_and_b32 %s, %s, %s' % (v(s + r), v(XD + t), vM[r]))
    if t >= 1:
        a('s_waitcnt vmcnt(%d)' % (15 - (t - 1) + (4 if t - 1 < 4 else 0)))
        mfma(ACCQ, AP + 4 * ((t - 1) & 1), WQ + 4 * (t - 1), None if t == 1 else ACCQ)
    if t == 5:
        a('ds_read_b128 %s, v20' % v(WUK, 4))
        a('ds_read_b128 %s, v21' % v(WUK + 4, 4))
        a('ds_read_b128 %s, v20 offset:2048' % v(WUK + 8, 4))
        a('ds_read_b128 %s, v21 offset:2048' % v(WUK + 12, 4))
a('s_waitcnt vmcnt(0)')
mfma(ACCQ, AP + 4, WQ + 60, ACCQ)
stamp(3)
a('s_lshl_b32 %s, %s, 16' % (sT0, sHG))
a('s_lshl_b32 %s, %s, 14' % (sT1, sW))
a('s_add_u32 %s, %s, %s' % (sT0, sT0, sT1))
a('s_add_u32 %s, %s, 0x%x' % (sT0, sT0, W_QP + 4096))
a('v_add_u32 v27, %s, %s' % (sT0, vL16))
a('v_add_u32 v28, 0x2000, v27')
a('s_mov_b64 exec, %s' % mVALID)
a('ds_write_b128 v22, %s' % v(ACCQ, 4))
flag_add(F_QS)
spin(F_QS, 4, reads=['ds_read2st64_b32 %s, v23 offset0:%d offset1:%d' % (v(QR + 2 * k, 2), 2 * k, 2 * k + 1) for k in range(4)])
stamp(4)
sum8('v14', QR)
a('v_mov_b32_dpp v15, v14 quad_perm:[1,0,3,2] row_mask:0xf bank_mask:0xf')
a('v_cvt_pk_bf16_f32 v14, v14, v15')
for k in range(8):
    a('v_mov_b32_dpp %s, v14 row_newbcast:%d row_mask:0xf bank_mask:0xf' % (v(QB + k), 2 * k))
mfma(D2, WUK, QB, None)
mfma(D2 + 4, WUK + 8, QB, None)
mfma(D2, WUK + 4, QB + 4, D2)
mfma(D2 + 4, WUK + 12, QB + 4, D2 + 4)
a('v_bfe_u32 v29, %s, 1, 4' % vLane)
a('v_mul_u32_u24 v29, 1040, v29')
a('v_lshrrev_b32 v30, 5, %s' % vLane)
a('v_lshl_add_u32 v29, v30, 8, v29')
a('v_lshl_add_u32 v29, v24, 3, v29')
a('s_lshl_b32 %s, %s, 6' % (sT0, sW))
a('s_add_u32 %s, %s, 0x%x' % (sT0, sT0, QL))
a('v_add_u32 v29, %s, v29' % sT0)
for r in range(4):
    a('v_cndmask_b32 %s, %s, %s, %s' % (v(D2 + r), v(D2 + r), v(D2 + 4 + r), mT0))
tag4(D2, 'v26')
setexec(0x0003000300030003)
a('global_store_dwordx4 v25, %s, %s sc1' % (v(D2, 4), pWS))
setexec(-1)
stamp(5)
QF = 32; PV0 = 96; PV1 = 160; ACC = 224; SD = 16
G = 32; AF0 = PV0; AF1 = PV1
a('v_lshlrev_b32 v14, 1, %s' % vCH)
a('v_lshrrev_b32 v15, 3, %s' % vI)
a('v_or_b32 v14, v14, v15')
a('v_lshlrev_b32 v30, 10, %s' % vI)
a('v_lshl_or_b32 v30, %s, 8, v30' % vG)
a('v_lshl_or_b32 v30, v14, 4, v30')
a('s_lshl_b32 %s, %s, 14' % (sT0, sW))
a('v_add_u32 v30, %s, v30' % sT0)
for ks in range(16):
    a('v_xor_b32 %s, %d, v30' % (v(ACC + ks), ks * 16))
a('v_lshrrev_b32 v14, 2, %s' % vLane)
a('v_and_b32 v15, 7, v14')
a('v_lshlrev_b32 v15, 1, v15')
a('v_lshrrev_b32 v31, 3, v14')
a('v_or_b32 v15, v15, v31')
a('v_bfe_u32 v31, %s, 1, 1' % vLane)
a('s_lshl_b32 %s, %s, 2' % (sT0, sW))
a('v_or_b32 v31, %s, v31' % sT0)
a('v_xor_b32 v15, v15, v31')
a('v_lshlrev_b32 v14, 10, v14')
a('v_lshl_or_b32 v14, v15, 4, v14')
a('v_lshl_or_b32 v24, v24, 3, v14')
a('v_xor_b32 v25, 32, v24')
a('v_add_u32 v31, %s, %s' % (vLB, vL16))
a('s_mov_b32 %s, 63' % sTodo)
a('s_waitcnt vmcnt(0)')
stamp(6)
a.label('L_h2')
for hh in range(4):
    a('s_bitcmp0_b32 %s, %d' % (sTodo, hh))
    a('s_cbranch_scc1 L_h2i%d' % hh)
    for half in range(2):
        for dh in range(2):
            n = hh * 4 + half * 2 + dh
            off = (hh & 1) * 4096 - 4096 + dh * 2048 + half * 1024
            a('global_load_dwordx4 %s, %s, %s offset:%d sc1' % (v(G + 4 * n, 4), 'v27' if hh < 2 else 'v28', pWS, off))
    a.label('L_h2i%d' % hh)
a('s_bitcmp1_b32 %s, 4' % sTodo)
a('s_cbranch_scc1 L_h2f')
a('s_waitcnt vmcnt(0)')
a('s_branch L_h2g')
a.label('L_h2f')
spin(F_H0, 4)
for ks in range(16):
    a('ds_read_b128 %s, %s' % (v(AF0 + 4 * ks, 4), v(ACC + ks)))
    a('v_add_u32 %s, %s, %s' % (v(ACC + ks), sK64, v(ACC + ks)))
a('s_bitset0_b32 %s, 4' % sTodo)
a('s_waitcnt vmcnt(14)')
a.label('L_h2g')


def try_af1(lbl):
    a('s_bitcmp0_b32 %s, 5' % sTodo)
    a('s_cbranch_scc1 %s' % lbl)
    a('ds_read_b32 %s, %s offset:%d' % (vF, vLB, F_H1 - LB))
    a('s_waitcnt lgkmcnt(0)')
    a('v_readfirstlane_b32 %s, %s' % (sT0, vF))
    a('s_cmp_lt_u32 %s, 4' % sT0)
    a('s_cbranch_scc1 %s' % lbl)
    for ks in range(16):
        a('ds_read_b128 %s, %s' % (v(AF1 + 4 * ks, 4), v(ACC + ks)))
    a('s_bitset0_b32 %s, 5' % sTodo)
    a.label(lbl)


try_af1('L_h2w')
for hh in range(4):
    a('s_bitcmp0_b32 %s, %d' % (sTodo, hh))
    a('s_cbranch_scc1 L_h2p%d' % hh)
    for half in range(2):
        p = hh * 2 + half
        A_, B_ = G + 8 * p, G + 8 * p + 4
        a('s_waitcnt vmcnt(%d)' % (14 - 2 * p))
        chk4('v14', A_, half == 0)
        chk4('v14', B_)
        pkadd(A_, A_, B_); pkadd(A_ + 2, A_ + 2, B_ + 2)
        if half == 1:
            a('v_and_b32 v14, 0xff, v14')
            a('v_cmp_ne_u32 vcc, 0, v14')
        a('v_cvt_pk_bf16_f32 %s, %s, %s' % (v(B_), v(A_), v(A_ + 1)))
        a('v_cvt_pk_bf16_f32 %s, %s, %s' % (v(B_ + 1), v(A_ + 2), v(A_ + 3)))
        a('ds_write_b64 v29, %s offset:%d' % (v(B_, 2), half * 512 + hh * 16))
    a('s_cbranch_vccnz L_h2p%d' % hh)
    a('s_bitset0_b32 %s, %d' % (sTodo, hh))
    a.label('L_h2p%d' % hh)
a('s_and_b32 %s, %s, 15' % (sT0, sTodo))
a('s_cbranch_scc0 L_h2d')
a('s_waitcnt lgkmcnt(0)')
a('s_sleep 6')
a('s_sub_u32 %s, %s, 1' % (sBudG, sBudG))
a('s_cbranch_scc0 L_h2')
a('s_mov_b32 %s, 0' % sBudG)
a.label('L_h2d')
flag_add(F_QL)
stamp(7)
try_af1('L_h2w2')
spin(F_QL, 4)
stamp(8)
for ks in range(16):
    a('ds_read_b128 %s, v31 offset:%d' % (v(QF + 4 * ks, 4), QL - LB + ks * 1040))
a('s_bitcmp0_b32 %s, 5' % sTodo)
a('s_cbranch_scc1 L_haveaf1')
spin(F_H1, 4)
for ks in range(16):
    a('ds_read_b128 %s, %s' % (v(AF1 + 4 * ks, 4), v(ACC + ks)))
a.label('L_haveaf1')
stamp(9)


def tr_read(t, sg, tau, part):
    base = (PV0 if t == 0 else PV1) + (sg * 8 + tau) * 4 + 2 * part
    k, e = tau >> 1, tau & 1
    areg = ('v24', 'v25') if t == 0 else ('v26', 'v27')
    a('ds_read_b64_tr_b16 %s, %s offset:%d' % (v(base, 2), areg[e], (2 * sg + part) * 16384 + k * 256))


a('v_add_u32 v26, %s, v24' % sK64)
a('v_add_u32 v27, %s, v25' % sK64)


def round_scores(d):
    if MIMIC:
        for r in (0, 2):
            a('v_cvt_pk_bf16_f32 %s, %s, %s' % (v(d + r + 1), v(d + r), v(d + r + 1)))
        for r in (0, 2):
            a('v_lshlrev_b32 %s, 16, %s' % (v(d + r), v(d + r + 1)))
            a('v_and_b32 %s, 0xffff0000, %s' % (v(d + r + 1), v(d + r + 1)))
    for r in range(4):
        a('v_mul_f32 %s, 0x3db504f3, %s' % (v(d + r), v(d + r)))
    for r in (0, 2):
        a('v_cvt_pk_bf16_f32 %s, %s, %s' % (v(d + r + 1), v(d + r), v(d + r + 1)))
    for r in (0, 2):
        a('v_lshlrev_b32 %s, 16, %s' % (v(d + r), v(d + r + 1)))
        a('v_and_b32 %s, 0xffff0000, %s' % (v(d + r + 1), v(d + r + 1)))


trs = [(sg, tau, part) for sg in range(2) for tau in range(8) for part in range(2)]
fill = ['v_lshl_add_u32 v28, %s, 2, %s' % (vI, vLB),
        's_lshr_b32 %s, %s, 1' % (sT0, sW), 's_lshl_b32 %s, %s, 11' % (sT0, sT0), 's_and_b32 %s, %s, 1' % (sT1, sW),
        's_lshl3_add_u32 %s, %s, %s' % (sT0, sT1, sT0), 'v_add_u32 v29, %s, v31' % sT0, 'v_mov_b32 v15, 0x3fb8aa3b',
        'v_mul_u32_u24 v240, 80, %s' % vI, 'v_add_u32 v240, 0x%x, v240' % LS, 'v_lshl_add_u32 v241, %s, 2, v240' % vG,
        's_lshl_b32 %s, %s, 4' % (sT0, sW), 'v_add_u32 v241, %s, v241' % sT0,
        's_lshl3_add_u32 %s, %s, %s' % (sT3, sHG, sX), 's_lshl_b32 %s, %s, 8' % (sT3, sT3), 's_add_u32 %s, %s, 0x%x' % (sT3, sT3, W_C3),
        'v_mov_b32 v30, %s' % sT3]
for ks in range(16):
    a('s_waitcnt lgkmcnt(%d)' % (15 - ks))
    mfma(SD, AF0 + 4 * ks, QF + 4 * ks, None if ks == 0 else SD)
    run_fill(1)
assert not fill
if GATE3:
    a('s_cmp_lg_u32 %s, 1' % sW)
    a('s_cbranch_scc1 L_noat')
    a('s_mov_b64 exec, 1')
    a('global_atomic_add v0, v30, %s, %s sc0 sc1' % (vOne, pWS))
    a('s_mov_b64 exec, -1')
    a.label('L_noat')
import io
_save = a.emit
_buf = []
a.emit = lambda t: _buf.append(t)
round_scores(SD)
a('v_max3_f32 v14, %s, %s, %s' % (v(SD), v(SD + 1), v(SD + 2)))
a('v_max_f32 v14, v14, %s' % v(SD + 3))
a.emit = _save
fill = _buf
for ks in range(16):
    mfma(SD + 4, AF1 + 4 * ks, QF + 4 * ks, None if ks == 0 else SD + 4)
    tr_read(0, *trs.pop(0)); tr_read(0, *trs.pop(0))
    if ks >= 3:
        run_fill(2)
assert not fill
round_scores(SD + 4)
a('v_max3_f32 v14, v14, %s, %s' % (v(SD + 4), v(SD + 5)))
a('v_max3_f32 v14, v14, %s, %s' % (v(SD + 6), v(SD + 7)))
a('ds_max_f32 v28, v14 offset:%d' % (MX - LB))
flag_add(F_MX)
spin(F_MX, 4, reads=['ds_read_b32 v52, v28 offset:%d' % (MX - LB)])
stamp(10)
a('v_mul_f32 v14, 0xbfb8aa3b, v52')
for r in range(8):
    a('v_fma_f32 %s, %s, v15, v14' % (v(SD + r), v(SD + r)))
for r in range(8):
    a('v_exp_f32 %s, %s' % (v(SD + r), v(SD + r)))
PF = QF
for r in range(4):
    a('v_cvt_pk_bf16_f32 %s, %s, %s' % (v(48 + r), v(SD + 2 * r), v(SD + 2 * r + 1)))
a('ds_write_b64 v29, v[48:49] offset:%d' % (PL - LB))
a('ds_write_b64 v29, v[50:51] offset:%d' % (PL - LB + 1024))
sum8('v14', SD)
a('ds_write_b32 v241, v14')
flag_add(F_P)
LR = 64
spin(F_P, 4, reads=['ds_read_b128 %s, v31 offset:%d' % (v(PF + 4 * k, 4), PL - LB + 1024 * k) for k in range(4)]
     + ['ds_read_b128 %s, v240 offset:%d' % (v(LR + 4 * k, 4), 16 * k) for k in range(4)])
stamp(11)
fill = []
for k in range(0, 8, 2):
    fill.append('v_pk_add_f32 %s, %s, %s' % (v(LR + k, 2), v(LR + k, 2), v(LR + 8 + k, 2)))
fill += ['v_pk_add_f32 %s, %s, %s' % (v(LR, 2), v(LR, 2), v(LR + 2, 2)), 'v_pk_add_f32 %s, %s, %s' % (v(LR + 4, 2), v(LR + 4, 2), v(LR + 6, 2)),
         'v_pk_add_f32 %s, %s, %s' % (v(LR, 2), v(LR, 2), v(LR + 4, 2)), 'v_add_f32 v53, %s, %s' % (v(LR), v(LR + 1)),
         'v_mov_b32 v14, 0xffff', 'v_bfi_b32 v52, v14, %s, v52' % sEp, 's_lshr_b32 %s, %s, 16' % (sT5, sEp),
         'v_mov_b32 v14, 0xfff', 'v_bfi_b32 v53, v14, %s, v53' % sT5,
         's_and_b32 %s, %s, 0x63' % (sT0, sKB), 's_and_b32 %s, %s, 3' % (sT1, sKB), 's_mul_i32 %s, %s, 7' % (sT1, sT1),
         's_add_u32 %s, %s, %s' % (sT0, sT0, sT1), 's_bfe_u32 %s, %s, 0x30002' % (sT1, sKB), 's_add_u32 %s, %s, %s' % (sT0, sT0, sT1),
         's_lshl_b32 %s, %s, 3' % (sT0, sT0), 's_lshl_b32 %s, %s, 14' % (sT1, sHG), 's_add_u32 %s, %s, %s' % (sT0, sT0, sT1),
         's_add_u32 %s, %s, 0x%x' % (sT0, sT0, W_ST), 'v_lshl_add_u32 v14, %s, 10, %s' % (vI, sT0)]
n = 0
for sg in range(2):
    for tau in range(8):
        mfma(ACC + 4 * tau, PF + 4 * (sg * 2 + 0), PV0 + (sg * 8 + tau) * 4, None if sg == 0 else ACC + 4 * tau)
        tr_read(1, sg, tau, 0); tr_read(1, sg, tau, 1)
        run_fill(3)
        n += 1
        if n == 8:
            assert not fill
            a('s_cmp_lg_u32 %s, 0' % sW)
            a('s_cbranch_scc1 L_nostat')
            setexec(0xffff)
            a('global_store_dwordx2 v14, v[52:53], %s sc1' % pWS)
            setexec(-1)
            a.label('L_nostat')
            fill = ['s_lshl_b32 %s, %s, 21' % (sT0, sHG), 's_lshl_b32 %s, %s, 15' % (sT1, sW), 's_add_u32 %s, %s, %s' % (sT0, sT0, sT1),
                    's_lshl_b32 %s, %s, 8' % (sT1, sKB), 's_add_u32 %s, %s, %s' % (sT0, sT0, sT1), 's_add_u32 %s, %s, 0x%x' % (sT0, sT0, W_OP),
                    'v_lshlrev_b32 v30, 19, %s' % vG, 'v_lshl_or_b32 v30, %s, 4, v30' % vI, 'v_add_u32 v30, %s, v30' % sT0,
                    'v_add_u32 v16, 0x20000, v30', 'v_add_u32 v17, 0x40000, v30', 'v_add_u32 v18, 0x60000, v30',
                    'v_mul_u32_u24 v56, 37, %s' % vI, 'v_add_u32 v56, %s, v56' % sTag[0], 'v_and_b32 v56, 0xff, v56', 'v_lshl_or_b32 v56, v56, 15, v56',
                    'v_lshrrev_b32 v57, 2, v56', 'v_lshrrev_b32 v58, 4, v56', 'v_lshrrev_b32 v59, 6, v56', 'v_mov_b32 v60, 0x10001',
                    's_lshl2_add_u32 %s, %s, %s' % (sT0, sH, sCQ), 's_lshl2_add_u32 %s, %s, %s' % (sT0, sT0, sW), 's_lshl_b32 %s, %s, 13' % (sT0, sT0),
                    's_add_u32 %s, %s, 0x%x' % (sT0, sT0, W_OP + 4096), 'v_add_u32 v61, %s, %s' % (sT0, vL16),
                    's_lshl2_add_u32 %s, %s, %s' % (sT0, sH, sW), 's_lshl_b32 %s, %s, 8' % (sT0, sT0), 's_add_u32 %s, %s, 0x%x' % (sT0, sT0, W_ST),
                    'v_lshl_add_u32 v62, %s, 3, %s' % (vG, vCH), 'v_lshl_add_u32 v62, v62, 3, %s' % sT0,
                    's_lshl_b32 %s, %s, 9' % (sT0, sW), 'v_add_u32 v63, %s, v31' % sT0]
for sg in range(2):
    for tau in range(8):
        idx = sg * 8 + tau
        a('s_waitcnt lgkmcnt(%d)' % min(15, 30 - 2 * idx))
        mfma(ACC + 4 * tau, PF + 4 * (sg * 2 + 1), PV1 + idx * 4, ACC + 4 * tau)
        run_fill(1)
assert not fill
OB = 64
for u in range(4):
    for r in range(4):
        a('v_cvt_pk_bf16_f32 %s, %s, %s' % (v(OB + 4 * r + u), v(ACC + 8 * u + r), v(ACC + 8 * u + 4 + r)))
    for r in range(4):
        a('v_bfi_b32 %s, v60, %s, %s' % (v(OB + 4 * r + u), v(56 + u), v(OB + 4 * r + u)))
for r, ar in enumerate(('v30', 'v16', 'v17', 'v18')):
    a('global_store_dwordx4 %s, %s, %s sc1' % (ar, v(OB + 4 * r, 4), pWS))
stamp(12)
HD_ = 96; HS = 128; HA = 136; HACC = 168
flag_add(F_OP)
if GATE3:
    a('s_cmp_lg_u32 %s, 1' % sW)
    a('s_cbranch_scc1 L_nolast')
    a('s_waitcnt vmcnt(4)')
    a('v_readfirstlane_b32 %s, v0' % sT0)
    a('s_sub_u32 %s, %s, %s' % (sT0, sT0, sEp))
    a('s_cmp_lg_u32 %s, 15' % sT0)
    a('s_cbranch_scc1 L_nolast')
    a('s_add_u32 %s, %s, 0x%x' % (sT3, sT3, W_F3 - W_C3))
    a('v_mov_b32 v14, %s' % sT3)
    a('v_mov_b32 v15, %s' % sEp)
    a('s_mov_b64 exec, 1')
    a('global_store_dword v14, v15, %s sc1' % pWS)
    a('s_mov_b64 exec, -1')
    a.label('L_nolast')
    a('s_lshl2_add_u32 %s, %s, %s' % (sT0, sA, sW))
    a('s_lshl_b32 %s, %s, 9' % (sT0, sT0))
    a('s_add_u32 %s, %s, 0x%x' % (sT0, sT0, W_F3))
    a('v_and_b32 v19, 1, %s' % vLane)
    a('v_lshl_add_u32 v19, v19, 8, %s' % sT0)
    a('s_movk_i32 %s, 64' % sT4)
    a.label('L_f3')
    a('global_load_dword v20, v19, %s sc1' % pWS)
    a('s_waitcnt vmcnt(0)')
    a('v_cmp_ne_u32 vcc, %s, v20' % sEp)
    a('s_cbranch_vccz L_f3d')
    a('s_sub_u32 %s, %s, 1' % (sT4, sT4))
    a('s_cbranch_scc0 L_f3')
    a.label('L_f3d')
else:
    a('s_waitcnt vmcnt(0)')
stamp(13)
a('s_branch L_h3')
a.label('L_st')
a('s_sleep 6')
a('s_sub_u32 %s, %s, 1' % (sBudG, sBudG))
a('s_cbranch_scc1 L_h3x')
a('global_load_dwordx2 %s, v62, %s sc1' % (v(HS, 2), pWS))
a('s_waitcnt vmcnt(0)')
a('v_xor_b32 v14, %s, %s' % (sEp, v(HS)))
a('v_xor_b32 v15, %s, %s' % (sT5, v(HS + 1)))
a('v_and_b32 v14, 0xffff, v14')
a('v_and_b32 v15, 0xfff, v15')
a('v_or_b32 v14, v14, v15')
a('v_cmp_ne_u32 vcc, 0, v14')
a('s_cbranch_vccnz L_st')
a.label('L_h3')
a('global_load_dwordx2 %s, v62, %s sc1' % (v(HS, 2), pWS))
for t in range(8):
    a('global_load_dwordx4 %s, v61, %s offset:%d sc1' % (v(HD_ + 4 * t, 4), pWS, 1024 * t - 4096))
a('s_waitcnt vmcnt(8)')
a('v_xor_b32 v26, %s, %s' % (sEp, v(HS)))
a('v_xor_b32 v15, %s, %s' % (sT5, v(HS + 1)))
a('v_and_b32 v26, 0xffff, v26')
a('v_and_b32 v15, 0xfff, v15')
a('v_or_b32 v26, v26, v15')
a('v_and_b32 v16, 0xffff0000, %s' % v(HS))
a('v_mul_f32 v16, 0x3fb8aa3b, v16')
a('v_mov_b32 v14, v16')
for r in (4, 2, 1):
    dppop('v_max_f32', 'v14', 'row_ror:%d' % r)
crossrow('v_max_f32', 'v14', 'v15')
a('v_sub_f32 v16, v16, v14')
a('v_exp_f32 v16, v16')
a('v_mov_b32 v27, 0')
a('v_cvt_pk_bf16_f32 v16, v16, v16')
a('v_and_b32 v18, 0xffff0000, v16')
a('v_mul_f32 v18, v18, %s' % v(HS + 1))
for t in range(8):
    for r in range(4):
        a('v_and_b32_dpp %s, v16, %s row_newbcast:%d row_mask:0xf bank_mask:0xf' % (v(HA + 4 * t + r), vM[r], t))
    if t < 3:
        dppop('v_add_f32', 'v18', 'row_ror:%d' % (4 >> t))
crossrow('v_add_f32', 'v18', 'v15')
a('s_lshl_b32 %s, %s, 2' % (sT0, sW))
a('v_add_u32 v15, %s, %s' % (sT0, vLB))
a('s_mov_b64 exec, 1')
a('ds_write_b32 v15, v14 offset:%d' % (ML - LB))
a('ds_write_b32 v15, v18 offset:%d' % (ML + 16 - LB))
a('s_mov_b64 exec, -1')
for t in range(8):
    a('s_waitcnt vmcnt(%d)' % (7 - t))
    mfma(HACC, HA + 4 * t, HD_ + 4 * t, None if t == 0 else HACC)
    for r in range(4):
        a('v_bitop3_b32 v27, v27, %s, %s bitop3:0xf6' % (v(HD_ + 4 * t + r), v(56 + r)))
a('v_and_or_b32 v27, v27, v60, v26')
a('v_cmp_ne_u32 vcc, 0, v27')
a('s_cbranch_vccnz L_st')
a.label('L_h3x')
setexec(0xffffffff)
a('ds_write_b128 v63, %s offset:%d' % (v(HACC, 4), CL - LB))
flag_add(F_CL)
stamp(14)
dump_stamps()
a.label('L_end')
a('s_endpgm')
a.label('L_code_end')

hdr = open('cdna_kernels/%s.s.ref' % NAME).read().split('; Override launch geometry')[0]
src = hdr + '; @launch grid=(256,1,1) block=(512,1,1) lds=%d\n' % LDS_BYTES
src += '''.amdgcn_target "amdgcn-amd-amdhsa--gfx950"
.text
.globl {n}_kernel
.p2align 8
.type {n}_kernel,@function
{n}_kernel:
'''.format(n=NAME)
src += a.text()
src += '''.section .rodata,"a"
.p2align 6
.amdhsa_kernel {n}_kernel
  .amdhsa_next_free_vgpr 256
  .amdhsa_next_free_sgpr 102
  .amdhsa_accum_offset 256
  .amdhsa_group_segment_fixed_size 0
  .amdhsa_kernarg_size 104
  .amdhsa_user_sgpr_count 2
  .amdhsa_user_sgpr_kernarg_segment_ptr 1
  .amdhsa_system_sgpr_workgroup_id_x 1
.end_amdhsa_kernel
'''.format(n=NAME)
out = [x for x in sys.argv[1:] if not x.startswith('--')]
open(out[0] if out else 'cdna_kernels/%s.s' % NAME, 'w').write(src)
print('LDS', LDS_BYTES)
```

```python
import sys
from asmlib import Asm

NAME = 'recurrent_scan__compressed_kv_cla__geglu_ffn__decode'
STAMPS = '--stamps' in sys.argv
MIMIC = True


def opt(name, default):
    for x in sys.argv:
        if x.startswith('--%s=' % name):
            return int(x.split('=')[1])
    return default


W1 = opt('w1', 6)
W2 = opt('w2', 10)
HOLD = opt('hold', 0)
WARMQP = opt('warmqp', 0)
CHK = opt('chk', 2)
DI_AT = opt('di', 8)
HOLDN = opt('holdn', 0)
TOUCH = opt('touch', 0)
SLOWN = opt('slown', 0)
PSLEEP = opt('psleep', 1)
GATE3 = opt('gate3', 1)
P0 = opt('p0', 1)
XNT = opt('xnt', 0)
GO_AT = opt('go', 8)

W_QP = 0x10000
W_ST = 0x30000
W_FP = 0x38000
W_SP = 0x60000
W_C3 = 0x1000
W_F3 = 0x3000
W_OP = 0x200000
W_STAMP = 0x800000
LB = 131072
QL = 131072
PL = 147712
XT = 151808
XR = 153856
QSUM = 154880
CX = QSUM
CL = QSUM + 2048
FS = CL + 2048
FIN = FS
LS = FS + 2048
FL = LS + 1280
F_QS, F_QL, F_H1, F_MX, F_P, F_CL, F_CX, F_FS, F_FIN, F_XT, F_GO, F_H0, F_DI = [FL + 4 * k for k in range(13)]
MX = FL + 64
ML = MX + 64
LDS_BYTES = ML + 32

sWave, sW, sX, sI, sA, sH, sDH, sCQ, sKB, sHG, sI15 = ['s%d' % k for k in range(3, 14)]
sT0, sT1 = 's14', 's15'
pX, pCKV, pWQ, pWUK, pWUV, pWO, pBX, pWG, pWU, pWD, pOUT, pDBG, pWS = ['s[%d:%d]' % (16 + 2 * k, 17 + 2 * k) for k in range(13)]
sT2, sT3, sT4, sT5 = 's42', 's43', 's44', 's45'
sHD = 's46'
sFG1 = 's47'
sTag = ['s48', 's49', 's50', 's51']
sEp = 's52'
sBudL, sBudG = 's53', 's54'
sK64 = 's55'
pB = 's[56:57]'; pBlo, pBhi = 's56', 's57'
pC = 's[58:59]'
mVALID = 's[92:93]'
mT0 = 's[94:95]'
sTodo = 's96'; sDum = 's97'; sEpRaw = 's98'; sMS = 's99'; sFM = 's96'
vLane, vI, vG, vR8, vCH, vL16, vLB = ['v%d' % k for k in range(1, 8)]
vM = ['v8', 'v9', 'v10', 'v11']
vOne = 'v12'
vF = 'v13'


def v(n, cnt=1):
    return 'v%d' % n if cnt == 1 else 'v[%d:%d]' % (n, n + cnt - 1)


a = Asm()


def stamp(k):
    if STAMPS:
        a('s_memrealtime s[%d:%d]' % (60 + 2 * k, 61 + 2 * k))


def setexec(m):
    if m == -1 or m < 0x80000000:
        a('s_mov_b64 exec, %s' % (hex(m) if m > 64 else str(m)))
    else:
        a('s_mov_b32 exec_lo, 0x%x' % (m & 0xffffffff))
        a('s_mov_b32 exec_hi, 0x%x' % (m >> 32))


def flag_add(*flags):
    a('s_mov_b64 exec, 1')
    for f in flags:
        a('ds_add_u32 %s, %s offset:%d' % (vLB, vOne, f - LB))
    a('s_mov_b64 exec, -1')


def spin(flag, target, reads=(), sleep=0):
    L = a.newlabel('spin'); D = a.newlabel('spind')
    a.label(L)
    a('ds_read_b32 %s, %s offset:%d' % (vF, vLB, flag - LB))
    for r in reads:
        a(r)
    a('s_waitcnt lgkmcnt(0)')
    a('v_readfirstlane_b32 %s, %s' % (sT0, vF))
    a('s_cmp_ge_u32 %s, %d' % (sT0, target))
    a('s_cbranch_scc1 %s' % D)
    if sleep:
        a('s_sleep %d' % sleep)
    a('s_sub_u32 %s, %s, 1' % (sBudL, sBudL))
    a('s_cbranch_scc0 %s' % L)
    a('s_mov_b32 %s, 0' % sBudL)
    a.label(D)


def retry_tail(L, D, sleep=2):
    a('s_cbranch_vccz %s' % D)
    if sleep:
        a('s_sleep %d' % sleep)
    a('s_sub_u32 %s, %s, 1' % (sBudG, sBudG))
    a('s_cbranch_scc0 %s' % L)
    a('s_mov_b32 %s, 0' % sBudG)
    a.label(D)


def dppop(op, x, ctl):
    a('%s_dpp %s, %s, %s %s row_mask:0xf bank_mask:0xf' % (op, x, x, x, ctl))


def crossrow(op, x, t):
    a('v_mov_b32 %s, %s' % (t, x))
    a('v_permlane16_swap_b32 %s, %s' % (x, t))
    a('%s %s, %s, %s' % (op, x, x, t))
    a('v_mov_b32 %s, %s' % (t, x))
    a('v_permlane32_swap_b32 %s, %s' % (x, t))
    a('%s %s, %s, %s' % (op, x, x, t))


def allreduce(op, x, t):
    for r in (8, 4, 2, 1):
        dppop(op, x, 'row_ror:%d' % r)
    crossrow(op, x, t)


def rnd_bf16(dst, src):
    a('v_cvt_pk_bf16_f32 %s, %s, %s' % (dst, src, src))
    a('v_and_b32 %s, 0xffff0000, %s' % (dst, dst))


def mfma(d, A, B, c=None):
    a('v_mfma_f32_16x16x32_bf16 %s, %s, %s, %s' % (v(d, 4), v(A, 4), v(B, 4), '0' if c is None else v(c, 4)))


def pkadd(d, x, y):
    a('v_pk_add_f32 %s, %s, %s' % (v(d, 2), v(x, 2), v(y, 2)))


def sum8(d, b):
    pkadd(b, b, b + 2); pkadd(b + 4, b + 4, b + 6); pkadd(b, b, b + 4)
    a('v_add_f32 %s, %s, %s' % (d, v(b), v(b + 1)))


def common_consts():
    a('v_and_b32 v14, 1, %s' % vCH)
    a('v_lshlrev_b32 v14, 4, v14')
    a('v_mov_b32 v15, 0xffff')
    a('v_lshlrev_b32 v14, v14, v15')
    a('v_lshrrev_b32 v15, 1, %s' % vCH)
    a('v_cmp_eq_u32 vcc, 0, v15')
    a('v_cmp_eq_u32 s[92:93], 1, v15')
    a('v_cmp_eq_u32 s[94:95], 2, v15')
    a('v_cndmask_b32 %s, 0, v14, vcc' % vM[0])
    a('v_cmp_eq_u32 vcc, 3, v15')
    a('v_cndmask_b32 %s, 0, v14, s[92:93]' % vM[1])
    a('v_cndmask_b32 %s, 0, v14, s[94:95]' % vM[2])
    a('v_cndmask_b32 %s, 0, v14, vcc' % vM[3])
    a('s_mov_b32 s92, 0x00ff00ff')
    a('s_mov_b32 s93, 0xff00ff00')


def part_waddr(dst, base):
    a('v_and_b32 %s, 1, %s' % (dst, vG))
    a('v_lshlrev_b32 %s, 4, %s' % (dst, dst))
    a('v_lshl_or_b32 %s, %s, 5, %s' % (dst, vCH, dst))
    a('v_lshrrev_b32 v15, 5, %s' % vLane)
    a('v_lshl_or_b32 %s, v15, 8, %s' % (dst, dst))
    a('s_lshl_b32 %s, %s, 9' % (sT0, sW))
    a('s_add_u32 %s, %s, 0x%x' % (sT0, sT0, base))
    a('v_add_u32 %s, %s, %s' % (dst, sT0, dst))


def make_tags():
    a('s_add_u32 %s, %s, 0x01010101' % (sEp, sEpRaw))
    a('s_cmp_eq_u32 %s, 0' % sEp)
    a('s_cselect_b32 %s, 0x01010101, %s' % (sEp, sEp))
    a('s_and_b32 %s, %s, 0xff' % (sTag[0], sEp))
    a('s_bfe_u32 %s, %s, 0x80008' % (sTag[1], sEp))
    a('s_bfe_u32 %s, %s, 0x80010' % (sTag[2], sEp))
    a('s_lshr_b32 %s, %s, 24' % (sTag[3], sEp))


def tag4(b, vmask):
    for r in range(4):
        a('v_bfi_b32 %s, %s, %s, %s' % (v(b + r), vmask, sTag[r], v(b + r)))


def chk4(acc, b, first=False):
    for r in range(4):
        if first and r == 0:
            a('v_xor_b32 %s, %s, %s' % (acc, sTag[0], v(b)))
        else:
            a('v_bitop3_b32 %s, %s, %s, %s bitop3:0xf6' % (acc, acc, v(b + r), sTag[r]))


def dump_stamps():
    if not STAMPS:
        return
    a('s_waitcnt lgkmcnt(0)')
    a('s_mov_b32 s90, s100')
    a('s_mov_b64 exec, -1')
    a('v_mov_b32 v14, 0')
    for k in range(16):
        a('v_writelane_b32 v14, s%d, %d' % (60 + 2 * k, k))
    a('s_lshl_b32 %s, s2, 3' % sT0)
    a('s_add_u32 %s, %s, %s' % (sT0, sT0, sWave))
    a('s_lshl_b32 %s, %s, 6' % (sT0, sT0))
    a('s_add_u32 %s, %s, 0x%x' % (sT0, sT0, W_STAMP))
    a('v_lshl_add_u32 v15, %s, 2, %s' % (vLane, sT0))
    a('s_mov_b64 exec, 0xffff')
    a('global_store_dword v15, v14, %s' % pWS)


X4 = 52
a('s_cmpk_gt_u32 s2, 255')
a('s_cbranch_scc1 L_end')
a('s_load_dwordx16 s[16:31], s[0:1], 0')
a('s_load_dwordx8 s[32:39], s[0:1], 64')
a('s_load_dwordx2 s[40:41], s[0:1], 96')
stamp(0)
if STAMPS:
    a('s_mov_b32 s100, 0')
    for k in range(1, 16):
        a('s_mov_b32 s%d, 0' % (60 + 2 * k))
a('v_lshrrev_b32 v14, 6, v0')
a('v_and_b32 %s, 63, v0' % vLane)
a('v_readfirstlane_b32 %s, v14' % sWave)
a('v_mov_b32 %s, 0x%x' % (vLB, LB))
a('v_and_b32 %s, 15, %s' % (vI, vLane))
a('v_mov_b32 v44, 0')
a('v_mov_b32 v45, 0xff800000')
a('v_lshl_add_u32 v49, %s, 2, %s' % (vI, vLB))
a('ds_write_b32 v49, v44 offset:%d' % (FL - LB))
a('ds_write_b32 v49, v45 offset:%d' % (MX - LB))
a('s_and_b32 %s, s2, 7' % sX)
a('s_lshr_b32 %s, s2, 3' % sI)
a('s_lshr_b32 %s, s2, 7' % sA)
a('s_bfe_u32 %s, s2, 0x10006' % sT0)
a('s_lshl1_add_u32 %s, %s, %s' % (sT0, sX, sT0))
a('s_lshl4_add_u32 %s, %s, %s' % (sH, sA, sT0))
a('s_bfe_u32 %s, s2, 0x10005' % sDH)
a('s_lshl1_add_u32 %s, %s, %s' % (sHD, sH, sDH))
a('s_lshl_b32 %s, %s, 7' % (sHD, sHD))
a('s_and_b32 %s, %s, 3' % (sW, sWave))
a('v_lshrrev_b32 %s, 3, %s' % (vR8, vLane))
a('v_and_b32 %s, 7, %s' % (vCH, vLane))
a('v_lshlrev_b32 v16, 13, %s' % vR8)
a('v_lshl_or_b32 v16, %s, 4, v16' % vCH)
a('v_lshlrev_b32 %s, 4, %s' % (vL16, vLane))
a('s_mov_b32 %s, 0x10000' % sK64)
a('s_and_b32 %s, %s, 3' % (sCQ, sI))
a('s_lshl_b32 %s, %s, 20' % (sT0, sW))
a('s_add_u32 %s, %s, %s' % (sT0, sT0, sHD))
a('v_add_u32 v17, %s, v16' % sT0)
a('s_lshl_b32 %s, %s, 18' % (sT2, sCQ))
a('v_add_u32 v18, %s, v17' % sT2)
a('v_lshrrev_b32 %s, 4, %s' % (vG, vLane))
a('v_mov_b32 %s, 1' % vOne)
a('s_and_b32 %s, %s, 15' % (sI15, sI))
a('s_lshl_b32 %s, %s, 2' % (sKB, sA))
a('s_xor_b32 %s, %s, %s' % (sKB, sKB, sI15))
a('s_lshl4_add_u32 %s, %s, %s' % (sKB, sX, sKB))
a('s_xor_b32 %s, %s, 1' % (sHG, sA))
a('s_mov_b32 %s, 0x200000' % sBudL)
a('s_movk_i32 %s, 8192' % sBudG)
a('s_getpc_b64 %s' % pC)
a.label('L_pc')
a('s_lshl3_add_u32 %s, %s, %s' % (sT3, sI, sWave))
a('s_lshl_b32 %s, %s, 6' % (sT3, sT3))
a('s_min_u32 %s, %s, L_code_end-L_pc-4' % (sT3, sT3))
a('s_cmp_lg_u32 %s, 0' % sWave)
a('s_waitcnt lgkmcnt(0)')
a('s_cbranch_scc1 L_nox')
a('global_load_dwordx4 %s, %s, %s%s' % (v(X4, 4), vL16, pX, ' nt' if XNT else ''))
a.label('L_nox')
a('s_load_dword %s, %s, 0' % (sEpRaw, pWS))
a('s_load_dword %s, %s, %s' % (sDum, pC, sT3))
a('s_barrier')
a('s_cmp_lt_u32 %s, 4' % sWave)
a('s_cbranch_scc1 L_stream')

WQ = 64; WUK = 128; XD = 144; AP = 160; ACCQ = 168; QR = 172; QB = 188; D2 = 196
a('s_setprio 3')
for t in range(16):
    if t % 4 == 0 and t:
        a('v_add_u32 v18, %s, v17' % sT2)
    a('global_load_dwordx4 %s, v18, %s nt' % (v(WQ + 4 * t, 4), pWQ))
    if t % 4 != 3:
        a('v_add_u32 v18, %s, v18' % sK64)
    elif t < 15:
        a('s_add_u32 %s, %s, 0x40000' % (sT2, sT2))
        a('s_and_b32 %s, %s, 0xc0000' % (sT2, sT2))
    if t == 3:
        a('s_lshl2_add_u32 %s, %s, %s' % (sT1, sCQ, sW))
        a('s_lshl_b32 %s, %s, 18' % (sT1, sT1))
        a('s_add_u32 %s, %s, %s' % (sT1, sT1, sHD))
        a('v_lshlrev_b32 v19, 4, %s' % vR8)
        a('v_xor_b32 v19, v19, v16')
        a('v_add_u32 v19, %s, v19' % sT1)
        a('s_lshl_b32 %s, %s, 12' % (sT1, sW))
        a('s_add_u32 m0, %s, 0x%x' % (sT1, QL))
        for k in range(4):
            a('global_load_lds_dwordx4 v19, %s offset:%d nt' % (pWUK, 1024 * k))
            if k < 3:
                a('v_add_u32 v19, %d, v19' % (65536 - 1024))
    if t == GO_AT - 1:
        flag_add(F_GO)
    if t == 3:
        a('s_lshl_b32 %s, %s, 3' % (sT0, sHD))
        a('s_lshl2_add_u32 %s, %s, %s' % (sT1, sCQ, sW))
        a('s_lshl_b32 %s, %s, 6' % (sT1, sT1))
        a('s_add_u32 %s, %s, %s' % (sT0, sT0, sT1))
        a('s_add_u32 %s, %s, 0x%x' % (sT0, sT0, W_QP))
        a('v_lshl_add_u32 v25, %s, 4, %s' % (vG, sT0))
stamp(1)
a('s_branch L_front')

a.label('L_stream')
XF = 24
vSPA = 'v18'; vFPA = 'v19'
a('s_cmp_lg_u32 %s, 0' % sW)
a('s_cbranch_scc1 L_sprep')
a('s_setprio 3')
a('v_add_u32 v48, %s, %s' % (vLB, vL16))
a('v_lshlrev_b32 v35, 9, %s' % vG)
a('v_add_u32 v35, v49, v35')
a('s_waitcnt vmcnt(0)')
stamp(3)
for k in range(4):
    a('v_lshlrev_b32 %s, 16, %s' % (v(XF + 2 * k), v(X4 + k)))
    a('v_and_b32 %s, 0xffff0000, %s' % (v(XF + 2 * k + 1), v(X4 + k)))
pkadd(32, XF, XF + 2); pkadd(36, XF + 4, XF + 6); pkadd(32, 32, 36)
a('v_add_f32 v32, v32, v33')
a('ds_write_b128 v48, %s offset:%d' % (v(X4, 4), XR - LB))
allreduce('v_add_f32', 'v32', 'v33')
a('v_mul_f32 v32, 0x3b000000, v32')
for k in range(8):
    a('v_sub_f32 %s, %s, v32' % (v(36 + k), v(XF + k)))
rnd_bf16('v32', 'v32')
a('v_mul_f32 v34, v36, v36')
a('v_mul_f32 v33, v37, v37')
for k in range(2, 8, 2):
    a('v_fmac_f32 v34, %s, %s' % (v(36 + k), v(36 + k)))
    a('v_fmac_f32 v33, %s, %s' % (v(37 + k), v(37 + k)))
a('v_add_f32 v34, v34, v33')
fill = []
for k in range(8):
    fill.append('v_sub_f32 %s, %s, v32' % (v(XF + k), v(XF + k)))
for k in range(0, 8, 2):
    fill.append('v_cvt_pk_bf16_f32 %s, %s, %s' % (v(XF + k + 1), v(XF + k), v(XF + k + 1)))
for k in range(0, 8, 2):
    fill.append('v_lshlrev_b32 %s, 16, %s' % (v(XF + k), v(XF + k + 1)))
    fill.append('v_and_b32 %s, 0xffff0000, %s' % (v(XF + k + 1), v(XF + k + 1)))
for r in (8, 4, 2, 1):
    a(fill.pop(0)); a(fill.pop(0))
    dppop('v_add_f32', 'v34', 'row_ror:%d' % r)
a('v_mov_b32 v33, v34')
a(fill.pop(0)); a(fill.pop(0))
a('v_permlane16_swap_b32 v34, v33')
a('v_add_f32 v34, v34, v33')
a('v_mov_b32 v33, v34')
a(fill.pop(0)); a(fill.pop(0))
a('v_permlane32_swap_b32 v34, v33')
a('v_add_f32 v34, v34, v33')
a('v_mul_f32 v34, 0x3b000000, v34')
rnd_bf16('v34', 'v34')
a('v_add_f32 v34, 0x3727c5ac, v34')
rnd_bf16('v34', 'v34')
a('v_sqrt_f32 v34, v34')
a(fill.pop(0)); a(fill.pop(0))
rnd_bf16('v34', 'v34')
a('v_rcp_f32 v34, v34')
while fill:
    a(fill.pop(0))
for k in range(8):
    a('v_mul_f32 %s, %s, v34' % (v(XF + k), v(XF + k)))
for k in range(8):
    a('v_cvt_pk_bf16_f32 %s, %s, %s' % (v(XF + k), v(XF + k), v(XF + k)))
    a('ds_write_b32 v35, %s offset:%d' % (v(XF + k), XT - LB + 64 * k))
flag_add(F_XT)
a('s_setprio %d' % P0)
a('s_branch L_sprep2')
a.label('L_sprep')
if TOUCH:
    a('s_mov_b32 %s, 0x200000' % sT0)
    a('s_lshl_b32 %s, %s, 9' % (sT1, sHD))
    a('s_mov_b32 %s, 0x400000' % sT4)
    a('s_lshl_b32 %s, %s, 17' % (sT5, sKB))
    a('s_load_dword %s, %s, %s' % (sDum, pCKV, sT5))
    for p in (pWG, pWU, pWUV, pWD, pOUT):
        a('s_load_dword %s, %s, 0' % (sDum, p))
    a('s_load_dword %s, %s, %s' % (sDum, pWUV, sT0))
    a('s_load_dword %s, %s, %s' % (sDum, pWO, sT1))
    a('s_load_dword %s, %s, %s' % (sDum, pWS, sT0))
    a('s_load_dword %s, %s, %s' % (sDum, pWS, sT4))
a.label('L_sprep2')
common_consts()
a('s_lshl_b32 %s, %s, 18' % (sT0, sW))
a('s_lshl_b32 %s, s2, 6' % sT1)
a('s_add_u32 %s, %s, %s' % (sT0, sT0, sT1))
a('s_add_u32 %s, %s, 0x%x' % (sT0, sT0, W_SP))
a('v_lshlrev_b32 %s, 14, %s' % (vSPA, vI))
a('v_lshl_or_b32 %s, %s, 4, %s' % (vSPA, vG, vSPA))
a('v_add_u32 %s, %s, %s' % (vSPA, sT0, vSPA))
DA = 44
a('s_and_b32 %s, %s, 1' % (sT0, sW))
a('s_lshr_b32 %s, %s, 1' % (sT1, sW))
a('s_lshl3_add_u32 %s, %s, %s' % (sT0, sT0, sT1))
a('s_lshl_b32 %s, %s, 4' % (sT0, sT0))
a('v_xor_b32 %s, %s, %s' % (v(DA), sT0, vL16))
a('v_xor_b32 %s, 32, %s' % (v(DA + 1), v(DA)))
a('v_xor_b32 %s, 64, %s' % (v(DA + 2), v(DA)))
a('v_xor_b32 %s, 0x60, %s' % (v(DA + 3), v(DA)))
a('s_lshl_b32 %s, %s, 17' % (sT0, sKB))
a('s_lshl_b32 %s, %s, 12' % (sT1, sW))
a('s_add_u32 %s, %s, %s' % (sT0, sT0, sT1))
a('s_add_u32 %s, s18, %s' % (pBlo, sT0))
a('s_addc_u32 %s, s19, 0' % pBhi)
a('s_mov_b32 m0, %s' % sT1)
stamp(1)
spin(F_GO, 4, sleep=1)
stamp(2)
make_tags()
a('s_lshl2_add_u32 %s, %s, %s' % (sT0, sI15, sW))
a('s_cmp_lg_u32 %s, 1' % sT0)
a('s_cbranch_scc1 L_noinit')
a('s_lshl3_add_u32 %s, %s, %s' % (sT0, sHG, sX))
a('s_lshl_b32 %s, %s, 8' % (sT0, sT0))
a('s_add_u32 %s, %s, 0x%x' % (sT0, sT0, W_C3))
a('v_lshl_add_u32 v14, %s, 13, %s' % (vLane, sT0))
a('v_sub_u32 v15, %s, %s' % (sEp, vLane))
a('s_mov_b64 exec, 3')
a('global_store_dword v14, v15, %s sc1' % pWS)
a('s_mov_b64 exec, -1')
a.label('L_noinit')


def dma_block():
    for q in range(4):
        a('global_load_lds_dwordx4 %s, %s offset:%d nt' % (v(DA + q), pB, 1024 * q))
    a('s_add_u32 %s, %s, 0x4000' % (pBlo, pBlo))
    a('s_addc_u32 %s, %s, 0' % (pBhi, pBhi))
    a('s_add_u32 m0, m0, 0x4000')


GU = 64; WUV = 80; WD = 96; WO = 104; FA = 168
for _ in range(6):
    dma_block()
a('s_waitcnt vmcnt(8)')
if DI_AT == 6:
    flag_add(F_H0, F_DI)
else:
    flag_add(F_H0)
stamp(4)
dma_block()
if DI_AT == 7:
    flag_add(F_DI)
dma_block()
if DI_AT == 8:
    flag_add(F_DI)
a('s_setprio 0')
a('v_mov_b32 v53, 0xff')
AG = 200; AU = 204; AD = 208; AO = 209
a('s_lshr_b32 %s, %s, 1' % (sT0, sX))
a('s_lshl2_add_u32 %s, %s, %s' % (sT0, sA, sT0))
a('s_mul_i32 %s, %s, 28' % (sT3, sT0))
a('s_and_b32 %s, %s, 1' % (sT0, sX))
a('s_mul_i32 %s, %s, 12' % (sT1, sT0))
a('s_add_u32 %s, %s, %s' % (sT3, sT3, sT1))
a('s_add_u32 %s, %s, %s' % (sT3, sT3, sI15))
a('s_lshl2_add_u32 %s, %s, 12' % (sT0, sT0))
a('s_cmp_lt_u32 %s, %s' % (sI15, sT0))
a('s_cselect_b32 %s, -1, 0' % sFM)
a('s_lshr_b32 %s, %s, 3' % (sFG1, sT3))
a('s_and_b32 %s, %s, 7' % (sMS, sT3))
a('s_bitcmp1_b32 %s, 0' % sW)
a('s_cselect_b64 %s, %s, %s' % (pB, pWU, pWG))
a('s_lshr_b32 %s, %s, 1' % (sT1, sW))
a('s_lshl1_add_u32 %s, %s, %s' % (sT0, sMS, sT1))
a('s_mul_i32 %s, %s, %d' % (sT0, sT0, 32 * 3584))
a('s_lshl_b32 %s, %s, 7' % (sT1, sFG1))
a('s_add_u32 %s, %s, %s' % (sT0, sT0, sT1))
a('v_mul_u32_u24 v14, 3584, %s' % vR8)
a('v_lshl_add_u32 v14, %s, 4, v14' % vCH)
a('v_add_u32 %s, %s, v14' % (v(AG), sT0))
a('v_and_b32 %s, %s, %s' % (v(AG), sFM, v(AG)))
for t in range(1, 4):
    a('v_add_u32 %s, %d, %s' % (v(AG + t), 8 * 3584 * t, v(AG)))
a('v_lshlrev_b32 v17, 10, %s' % vG)
a('v_lshl_or_b32 v17, %s, 4, v17' % vI)
a('s_lshl_b32 %s, %s, 8' % (sT1, sW))
a('s_add_u32 %s, %s, 0x1000' % (sT1, sT1))
a('s_lshl_b32 %s, %s, 9' % (sT0, sHD))
a('s_add_u32 %s, %s, %s' % (sT0, sT0, sT1))
a('v_add_u32 v14, %s, v17' % sT0)
a('s_lshl_b32 %s, %s, 14' % (sT4, sCQ))
for p in range(8):
    a('v_add_u32 %s, %s, v14' % (v(AO + p), sT4))
    if p < 7:
        a('s_add_u32 %s, %s, 0x2000' % (sT4, sT4))
        a('s_and_b32 %s, %s, 0xe000' % (sT4, sT4))
a('s_lshl_b32 %s, %s, 13' % (sT0, sT3))
a('s_add_u32 %s, %s, %s' % (sT0, sT0, sT1))
a('v_add_u32 %s, %s, v17' % (v(AD), sT0))
a('v_and_b32 %s, %s, %s' % (v(AD), sFM, v(AD)))
a('v_or_b32 %s, 0x1000, %s' % (v(AD), v(AD)))
a('s_lshr_b32 %s, %s, 1' % (sT0, sW))
a('s_lshl_b32 %s, %s, 5' % (sT0, sT0))
a('s_lshl2_add_u32 %s, %s, %s' % (sT0, sCQ, sT0))
a('s_and_b32 %s, %s, 1' % (sT1, sW))
a('s_add_u32 %s, %s, %s' % (sT0, sT0, sT1))
a('s_lshl_b32 %s, %s, 16' % (sT0, sT0))
a('s_add_u32 %s, %s, %s' % (sT0, sT0, sHD))
a('v_add_u32 %s, %s, v16' % (v(AU), sT0))
a('v_add_u32 %s, 0x20000, %s' % (v(AU + 1), v(AU)))
a('v_add_u32 %s, 0x100000, %s' % (v(AU + 2), v(AU)))
a('v_add_u32 %s, 0x120000, %s' % (v(AU + 3), v(AU)))


def tl(kind, k):
    if kind == 'g':
        return 'global_load_dwordx4 %s, %s, %s nt' % (v(GU + 4 * k, 4), v(AG + k), pB)
    if kind == 'u':
        return 'global_load_dwordx4 %s, %s, %s nt' % (v(WUV + 4 * k, 4), v(AU + k), pWUV)
    if kind == 'd':
        return 'global_load_dwordx4 %s, %s, %s offset:%d nt' % (v(WD + 4 * k, 4), v(AD), pWD, -4096 + 4096 * k)
    return 'global_load_dwordx4 %s, %s, %s offset:%d nt' % (v(WO + 4 * k, 4), v(AO + (k >> 1)), pWO, -4096 + 4096 * (k & 1))


order = []
wo = list(range(16))
for kind, cnt, per in (('g', 4, 1), ('u', 4, 2), ('d', 2, 2)):
    for k in range(cnt):
        order.append((kind, k))
        for _ in range(per):
            order.append(('o', wo.pop(0)))
assert not wo and len(order) == 26
ntail = [0]


def issue_tail(upto):
    while ntail[0] < upto:
        W = W1 if ntail[0] < max(W1, HOLDN, SLOWN) else W2
        a('s_waitcnt vmcnt(%d)' % (W - 1))
        if ntail[0] == W1 - 1:
            flag_add(F_H1)
            stamp(5)
        if HOLDN and ntail[0] == HOLDN:
            spin(F_QL, 4, sleep=2)
        a(tl(*order[ntail[0]]))
        ntail[0] += 1


issue_tail(W1 + 2)
a('s_lshr_b32 %s, %s, 1' % (sT0, sMS))
a('s_lshl_b32 %s, %s, 9' % (sT0, sT0))
a('s_and_b32 %s, %s, 1' % (sT1, sMS))
a('s_lshl_b32 %s, %s, 5' % (sT1, sT1))
a('s_add_u32 %s, %s, %s' % (sT0, sT0, sT1))
a('s_lshr_b32 %s, %s, 1' % (sT1, sW))
a('s_lshl4_add_u32 %s, %s, %s' % (sT0, sT1, sT0))
a('s_add_u32 %s, %s, 0x%x' % (sT0, sT0, XT))
a('v_lshl_add_u32 v15, %s, 6, %s' % (vR8, sT0))
spin(F_XT, 1, reads=['ds_read_b128 v[24:27], v15'])
issue_tail(12)
for t in range(4):
    for r in range(4):
        a('v_and_b32 %s, %s, %s' % (v(FA + 4 * t + r), v(24 + t), vM[r]))
part_waddr('v32', CX)
a('s_and_b32 %s, %s, 1' % (sT0, sW))
a('s_lshr_b32 %s, %s, 1' % (sT1, sW))
a('s_lshl1_add_u32 %s, %s, %s' % (sT0, sT0, sT1))
a('s_sub_u32 %s, %s, %s' % (sT0, sT0, sW))
a('s_lshl_b32 %s, %s, 9' % (sT0, sT0))
a('v_add_u32 v33, %s, v32' % sT0)
a('v_bfe_u32 v36, %s, 2, 3' % vLane)
a('v_lshlrev_b32 v34, 5, v36')
a('v_and_b32 v35, 1, %s' % vLane)
a('v_lshl_or_b32 v34, v35, 4, v34')
a('v_bfe_u32 v35, %s, 1, 1' % vLane)
a('v_lshl_or_b32 v34, v35, 10, v34')
a('v_add_u32 v34, %s, v34' % vLB)
a('s_lshl_b32 %s, %s, 12' % (sT0, sFG1))
a('s_lshl_b32 %s, %s, 6' % (sT1, sMS))
a('s_add_u32 %s, %s, %s' % (sT0, sT0, sT1))
a('s_add_u32 %s, %s, 0x%x' % (sT0, sT0, W_FP))
a('v_lshlrev_b32 v36, 9, v36')
a('v_and_b32 %s, 3, %s' % (vFPA, vLane))
a('v_lshl_or_b32 %s, %s, 4, v36' % (vFPA, vFPA))
a('v_add_u32 %s, %s, %s' % (vFPA, sT0, vFPA))
issue_tail(16)
a('s_waitcnt vmcnt(9)')
for t in range(4):
    mfma(28, FA + 4 * t, GU + 4 * t, None if t == 0 else 28)
issue_tail(18)
a('s_mov_b64 exec, %s' % mVALID)
a('ds_write_b128 v33, v[28:31] offset:%d' % (FS - CX))
a('s_mov_b64 exec, 1')
a('ds_add_rtn_u32 %s, %s, %s offset:%d' % (vF, vLB, vOne, F_FS - LB))
a('s_mov_b64 exec, -1')
for k in range(4):
    a('ds_read_b128 %s, v34 offset:%d' % (v(36 + 4 * k, 4), FS - LB + 256 * k))
a('s_waitcnt lgkmcnt(0)')
a('v_readfirstlane_b32 %s, %s' % (sT0, vF))
a('s_cmp_lg_u32 %s, 3' % sT0)
a('s_cbranch_scc1 L_nofp')
a('s_cmp_eq_u32 %s, 0' % sFM)
a('s_cbranch_scc1 L_nofp')
pkadd(36, 36, 40); pkadd(38, 38, 42); pkadd(44, 44, 48); pkadd(46, 46, 50); pkadd(36, 36, 44); pkadd(38, 38, 46)
tag4(36, 'v53')
setexec(0xffffffff)
a('global_store_dwordx4 %s, v[36:39], %s sc1' % (vFPA, pWS))
setexec(-1)
a.label('L_nofp')
issue_tail(26)
stamp(6)
SA = 184
for k in range(16):
    a('v_mov_b32 %s, 0' % v(SA + k))
a('v_mov_b32 v52, 0')
a('s_lshl_b32 %s, %s, 7' % (sT0, sW))
a('s_add_u32 %s, %s, 0x%x' % (sT0, sT0, CL))
a('v_lshl_add_u32 v54, %s, 4, %s' % (vR8, sT0))
a('s_lshl_b32 %s, %s, 2' % (sT0, sCQ))
a('v_add_u32 v55, %s, %s' % (sT0, vI))
a('v_and_b32 v55, 15, v55')
a('v_lshl_add_u32 v55, v55, 2, %s' % vG)
a('v_lshlrev_b32 v55, 2, v55')
a('v_add_u32 v55, 0x%x, v55' % CX)
a('s_lshl_b32 %s, s2, 14' % sT0)
a('s_lshl_b32 %s, %s, 12' % (sT1, sW))
a('s_add_u32 %s, %s, %s' % (sT0, sT0, sT1))
a('s_add_u32 %s, %s, 0x%x' % (sT0, sT0, W_SP))
a('v_add_u32 v60, %s, %s' % (sT0, vL16))
a('v_and_b32 v61, 3, %s' % vLane)
a('v_lshl_add_u32 v61, %s, 2, v61' % vG)
a('v_lshlrev_b32 v61, 4, v61')
a('s_lshl_b32 %s, %s, 8' % (sT0, sW))
a('s_add_u32 %s, %s, 0x%x' % (sT0, sT0, FIN))
a('v_add_u32 v61, %s, v61' % sT0)
a('v_lshlrev_b32 v62, 2, %s' % vLane)
a('v_add_u32 v62, 0x%x, v62' % FIN)
a('s_lshl_b32 %s, s2, 4' % sT0)
a('s_and_b32 %s, %s, 0x3f0' % (sT0, sT0))
a('v_lshl_add_u32 v63, %s, 1, %s' % (vCH, sT0))
a('v_add_u32 v20, %s, v63' % vLB)
a('ds_read_u16 v21, v20 offset:%d' % (XR - LB))
a('s_mov_b32 s94, 0x000f000f')
a('s_mov_b32 s95, 0x000f000f')
a('s_waitcnt vmcnt(0)')
stamp(7)
a('s_cmp_eq_u32 %s, 0' % sFM)
a('s_cbranch_scc1 L_nof2')
a('s_lshl_b32 %s, %s, 9' % (sT0, sT3))
a('s_add_u32 %s, %s, 0x%x' % (sT0, sT0, W_FP))
a('v_and_b32 v14, 0x1f0, %s' % vL16)
a('v_add_u32 v14, %s, v14' % sT0)
Lr = a.newlabel('fhop'); Ld = a.newlabel('fhopd')
a.label(Lr)
a('global_load_dwordx4 v[36:39], v14, %s sc1' % pWS)
a('s_waitcnt vmcnt(0)')
chk4('v15', 36, True)
a('v_and_b32 v15, 0xff, v15')
a('v_cmp_ne_u32 vcc, 0, v15')
retry_tail(Lr, Ld, sleep=12)
for rr in (4, 8):
    for k in range(4):
        dppop('v_add_f32', v(36 + k), 'row_ror:%d' % rr)
for k in range(4):
    a('v_mov_b32 %s, %s' % (v(40 + k), v(36 + k)))
for k in range(4):
    a('v_permlane16_swap_b32 %s, %s' % (v(36 + k), v(40 + k)))
for k in range(4):
    a('v_add_f32 %s, %s, %s' % (v(36 + k), v(36 + k), v(40 + k)))
a('v_mov_b32_dpp v36, v37 quad_perm:[0,1,2,3] row_mask:0x2 bank_mask:0xf')
a('v_mov_b32_dpp v36, v38 quad_perm:[0,1,2,3] row_mask:0x4 bank_mask:0xf')
a('v_mov_b32_dpp v36, v39 quad_perm:[0,1,2,3] row_mask:0x8 bank_mask:0xf')
rnd_bf16('v36', 'v36')
a('v_mov_b32_dpp v37, v36 quad_perm:[2,3,2,3] row_mask:0xf bank_mask:0xf')
a('v_mul_f32 v38, v36, v36')
a('v_mov_b32 v39, 0x3d372713')
a('v_fma_f32 v38, v38, v39, 1.0')
a('v_mul_f32 v38, v38, v36')
a('v_mul_f32 v38, 0xc0135761, v38')
a('v_exp_f32 v38, v38')
a('v_add_f32 v38, 1.0, v38')
a('v_rcp_f32 v38, v38')
a('v_mul_f32 v38, v38, v36')
rnd_bf16('v38', 'v38')
a('v_mul_f32 v38, v38, v37')
a('v_cvt_pk_bf16_f32 v52, v38, v38')
a.label('L_nof2')
a('s_waitcnt vmcnt(0)')
stamp(8)
OUT = 56
for t in range(2):
    for r in range(4):
        a('v_and_b32_dpp %s, v52, %s row_newbcast:%d row_mask:0xf bank_mask:0xc' % (v(SA + 8 + 4 * t + r), vM[r], t))
mfma(OUT, SA + 8, WD, None)
mfma(OUT, SA + 12, WD + 4, OUT)
a('s_setprio 2')
spin(F_CL, 4, reads=['ds_read_b128 v[24:27], %s offset:%d' % (vLB, ML - LB), 'ds_read_b128 v[28:31], %s offset:%d' % (vLB, ML + 16 - LB)]
     + ['ds_read_b128 %s, v54 offset:%d' % (v(36 + 4 * k, 4), 512 * k) for k in range(4)], sleep=1)
stamp(9)
a('v_max3_f32 v14, v24, v25, v26')
a('v_max_f32 v14, v14, v27')
for k in range(4):
    a('v_sub_f32 %s, %s, v14' % (v(24 + k), v(24 + k)))
for k in range(4):
    a('v_exp_f32 %s, %s' % (v(24 + k), v(24 + k)))
a('v_mul_f32 v14, v24, v28')
a('v_mul_f32 v15, v25, v29')
a('v_fmac_f32 v14, v26, v30')
a('v_fmac_f32 v15, v27, v31')
a('v_add_f32 v14, v14, v15')
a('v_rcp_f32 v14, v14')
for t in range(4):
    a('v_mul_f32 %s, v24, %s' % (v(36 + t), v(36 + t)))
for k in range(1, 4):
    for t in range(4):
        a('v_fmac_f32 %s, %s, %s' % (v(36 + t), v(24 + k), v(36 + 4 * k + t)))
for t in range(4):
    a('v_mul_f32 %s, v14, %s' % (v(36 + t), v(36 + t)))
for t in range(4):
    a('v_cvt_pk_bf16_f32 %s, %s, %s' % (v(24 + t), v(36 + t), v(36 + t)))
for t in range(4):
    for r in range(4):
        a('v_and_b32 %s, %s, %s' % (v(FA + 4 * t + r), v(24 + t), vM[r]))
    if t >= 1:
        mfma(28, FA + 4 * (t - 1), WUV + 4 * (t - 1), None if t == 1 else 28)
mfma(28, FA + 12, WUV + 12, 28)
a('s_mov_b64 exec, %s' % mVALID)
a('ds_write_b128 v32, v[28:31]')
flag_add(F_CX)
spin(F_CX, 4, reads=['ds_read2st64_b32 %s, v55 offset0:%d offset1:%d' % (v(36 + 2 * k, 2), 2 * k, 2 * k + 1) for k in range(4)])
stamp(10)
sum8('v24', 36)
a('v_cvt_pk_bf16_f32 v24, v24, v24')
for t in range(16):
    s = SA + 4 * (t & 1)
    for r in range(4):
        a('v_and_b32_dpp %s, v24, %s row_newbcast:%d row_mask:0xf bank_mask:0x3' % (v(s + r), vM[r], t))
    if t >= 1:
        mfma(OUT, SA + 4 * ((t - 1) & 1), WO + 4 * (t - 1), OUT)
mfma(OUT, SA + 4, WO + 60, OUT)
tag4(OUT, 'v53')
a('global_store_dwordx4 %s, %s, %s sc1' % (vSPA, v(OUT, 4), pWS))
stamp(11)
a('s_cmp_gt_u32 s2, 63')
a('s_cbranch_scc1 L_sdone')
a('s_waitcnt vmcnt(0)')
stamp(12)
Lr = a.newlabel('fin'); Ld = a.newlabel('find')
a.label(Lr)
for k in range(4):
    a('global_load_dwordx4 %s, v60, %s offset:%d sc1' % (v(64 + 4 * k, 4), pWS, 1024 * k))
for k in range(4):
    a('s_waitcnt vmcnt(%d)' % (3 - k))
    chk4('v22', 64 + 4 * k, k == 0)
    if k == 1:
        pkadd(64, 64, 68); pkadd(66, 66, 70)
a('v_and_b32 v22, 0xff, v22')
a('v_cmp_ne_u32 vcc, 0, v22')
pkadd(72, 72, 76); pkadd(74, 74, 78); pkadd(64, 64, 72); pkadd(66, 66, 74)
retry_tail(Lr, Ld, sleep=4)
stamp(13)
for rr in (4, 8):
    for k in range(4):
        dppop('v_add_f32', v(64 + k), 'row_ror:%d' % rr)
a('s_mov_b64 exec, %s' % mT0)
a('ds_write_b128 v61, v[64:67]')
a('s_mov_b64 exec, 1')
a('ds_add_rtn_u32 %s, %s, %s offset:%d' % (vF, vLB, vOne, F_FIN - LB))
a('s_mov_b64 exec, -1')
a('ds_read2st64_b32 v[22:23], v62 offset0:0 offset1:1')
a('ds_read2st64_b32 v[24:25], v62 offset0:2 offset1:3')
a('s_waitcnt lgkmcnt(0)')
a('v_readfirstlane_b32 %s, %s' % (sT0, vF))
pkadd(22, 22, 24)
a('s_cmp_lg_u32 %s, 3' % sT0)
a('s_cbranch_scc1 L_sdone')
a('v_add_f32 v22, v22, v23')
crossrow('v_add_f32', 'v22', 'v23')
rnd_bf16('v22', 'v22')
a('v_mul_f32 v24, 0xbfb8aa3b, v22')
a('v_exp_f32 v24, v24')
a('v_add_f32 v24, 1.0, v24')
a('v_rcp_f32 v24, v24')
a('v_mul_f32 v24, v24, v22')
rnd_bf16('v24', 'v24')
a('v_lshlrev_b32 v21, 16, v21')
a('v_mul_f32_dpp v24, v24, v22 row_ror:8 row_mask:0xf bank_mask:0xf')
rnd_bf16('v24', 'v24')
a('v_add_f32 v24, v24, v21')
a('v_cvt_pk_bf16_f32 v24, v24, v24')
setexec(0xff)
a('global_store_short v63, v24, %s' % pOUT)
stamp(14)
a('s_cmp_lg_u32 s2, 0')
a('s_cbranch_scc1 L_sdone')
a('v_mov_b32 v14, 0')
a('v_mov_b32 v15, %s' % sEp)
a('s_mov_b64 exec, 1')
a('global_store_dword v14, v15, %s sc1' % pWS)
a.label('L_sdone')
dump_stamps()
a('s_endpgm')

a.label('L_front')
common_consts()
a('s_lshl_b32 %s, %s, 9' % (sT0, sW))
a('s_add_u32 %s, %s, 0x%x' % (sT0, sT0, XT))
a('v_lshl_add_u32 v14, %s, 6, %s' % (vR8, sT0))
for k in range(4):
    a('s_add_u32 %s, %s, %d' % (sT0, sCQ, k))
    a('s_and_b32 %s, %s, 3' % (sT0, sT0))
    a('s_lshl_b32 %s, %s, 4' % (sT0, sT0))
    a('v_add_u32 %s, %s, v14' % (v(56 + k), sT0))
spin(F_XT, 1, reads=['ds_read_b128 %s, %s' % (v(XD + 4 * k, 4), v(56 + k)) for k in range(4)])
stamp(2)
make_tags()
fill = []


def run_fill(n):
    for _ in range(n):
        if fill:
            a(fill.pop(0))


part_waddr('v22', QSUM)
a('v_lshrrev_b32 v23, 3, %s' % vI)
a('v_lshl_add_u32 v23, v23, 2, %s' % vG)
a('v_lshl_add_u32 v23, v23, 3, %s' % vCH)
a('v_lshlrev_b32 v23, 2, v23')
a('v_add_u32 v23, 0x%x, v23' % QSUM)
a('v_and_b32 v14, 3, %s' % vI)
a('v_xor_b32 v20, %s, v14' % vG)
a('v_lshlrev_b32 v20, 4, v20')
a('v_lshl_or_b32 v20, v14, 7, v20')
a('v_lshrrev_b32 v14, 2, %s' % vI)
a('v_lshl_or_b32 v20, v14, 10, v20')
a('s_lshl_b32 %s, %s, 12' % (sT0, sW))
a('s_add_u32 %s, %s, 0x%x' % (sT0, sT0, QL))
a('v_add_u32 v20, %s, v20' % sT0)
a('v_xor_b32 v21, 64, v20')
TP = 208
a('s_lshl_b32 %s, %s, 2' % (sT0, sW))
a('v_add_u32 v14, %s, %s' % (sT0, vG))
a('v_mul_u32_u24 v14, 37, v14')
a('v_add_u32 v14, %s, v14' % sTag[0])
a('v_and_b32 v14, 0xff, v14')
a('v_lshl_or_b32 %s, v14, 15, v14' % v(TP))
for r in range(1, 4):
    a('v_lshrrev_b32 %s, %d, %s' % (v(TP + r), 2 * r, v(TP)))
a('v_not_b32 v14, v14')
for k in range(8):
    a('v_bfe_u32 %s, v14, %d, 1' % (v(TP + 4 + k), k))
    a('v_lshlrev_b32 %s, 16, %s' % (v(TP + 4 + k), v(TP + 4 + k)))
a('v_mov_b32 v26, 0x10001')
a('s_mov_b32 %s, 0x07060302' % sT5)
for t in range(16):
    s = AP + 4 * (t & 1)
    for r in range(4):
        a('v_and_b32 %s, %s, %s' % (v(s + r), v(XD + t), vM[r]))
    if t >= 1:
        a('s_waitcnt vmcnt(%d)' % (15 - (t - 1) + (4 if t - 1 < 4 else 0)))
        mfma(ACCQ, AP + 4 * ((t - 1) & 1), WQ + 4 * (t - 1), None if t == 1 else ACCQ)
    if t == 5:
        a('ds_read_b128 %s, v20' % v(WUK, 4))
        a('ds_read_b128 %s, v21' % v(WUK + 4, 4))
        a('ds_read_b128 %s, v21 offset:512' % v(WUK + 8, 4))
        a('ds_read_b128 %s, v20 offset:512' % v(WUK + 12, 4))
a('s_waitcnt vmcnt(0)')
mfma(ACCQ, AP + 4, WQ + 60, ACCQ)
stamp(3)
a('s_lshl2_add_u32 %s, %s, %s' % (sT0, sHG, sW))
a('s_lshl_b32 %s, %s, 13' % (sT0, sT0))
a('s_add_u32 %s, %s, 0x%x' % (sT0, sT0, W_QP + 4096))
a('v_and_b32 v27, 1, %s' % vG)
a('v_lshlrev_b32 v28, 3, v27')
a('v_lshlrev_b32 v27, 10, v27')
a('v_lshl_or_b32 v27, %s, 4, v27' % vI)
a('v_lshrrev_b32 v24, 5, %s' % vLane)
a('v_lshl_or_b32 v27, v24, 8, v27')
a('v_lshl_or_b32 v28, v24, 8, v28')
a('v_add_u32 v27, %s, v27' % sT0)
a('v_and_b32 v24, 1, %s' % vLane)
a('s_mov_b64 exec, %s' % mVALID)
a('ds_write_b128 v22, %s' % v(ACCQ, 4))
flag_add(F_QS)
spin(F_QS, 4, reads=['ds_read2st64_b32 %s, v23 offset0:%d offset1:%d' % (v(QR + 2 * k, 2), 2 * k, 2 * k + 1) for k in range(4)])
stamp(4)
sum8('v14', QR)
a('v_mov_b32_dpp v15, v14 quad_perm:[1,0,3,2] row_mask:0xf bank_mask:0xf')
a('v_cvt_pk_bf16_f32 v14, v14, v15')
for k in range(8):
    a('v_mov_b32_dpp %s, v14 row_newbcast:%d row_mask:0xf bank_mask:0xf' % (v(QB + k), 2 * k))
mfma(D2, WUK, QB, None)
mfma(D2 + 4, WUK + 8, QB, None)
mfma(D2, WUK + 4, QB + 4, D2)
mfma(D2 + 4, WUK + 12, QB + 4, D2 + 4)
a('v_mul_u32_u24 v29, 1040, %s' % vI)
a('v_add_u32 v29, v28, v29')
a('s_lshl_b32 %s, %s, 6' % (sT0, sW))
a('s_add_u32 %s, %s, 0x%x' % (sT0, sT0, QL))
a('v_add_u32 v29, %s, v29' % sT0)
TC = 244
a('v_mul_u32_u24 v14, 37, %s' % vI)
a('v_add_u32 v14, %s, v14' % sTag[0])
a('v_and_b32 v14, 0xff, v14')
a('v_lshl_or_b32 %s, v14, 15, v14' % v(TC))
for k in range(8):
    a('v_add_u32 %s, %s, %s' % (v(D2 + k), v(TP + 4 + k), v(D2 + k)))
for r in range(4):
    a('v_perm_b32 %s, %s, %s, %s' % (v(D2 + r), v(D2 + 2 * r + 1), v(D2 + 2 * r), sT5))
for r in range(4):
    a('v_bfi_b32 %s, v26, %s, %s' % (v(D2 + r), v(TP + r), v(D2 + r)))
setexec(0x0001000100010001)
a('global_store_dwordx4 v25, %s, %s sc1' % (v(D2, 4), pWS))
setexec(-1)
for r in range(1, 4):
    a('v_lshrrev_b32 %s, %d, %s' % (v(TC + r), 2 * r, v(TC)))
SEL = 248
a('v_mov_b32 v14, 0x3f803f80')
a('v_cndmask_b32 v14, 0, v14, %s' % mVALID)
for r in range(4):
    a('v_and_b32 %s, v14, %s' % (v(SEL + r), vM[r]))
stamp(5)
QF = 32; PV0 = 96; PV1 = 160; ACC = 224; SD = 16
G = 32; AF0 = PV0; AF1 = PV1
a('v_lshlrev_b32 v14, 1, %s' % vCH)
a('v_lshrrev_b32 v15, 3, %s' % vI)
a('v_or_b32 v14, v14, v15')
a('v_lshlrev_b32 v30, 10, %s' % vI)
a('v_lshl_or_b32 v30, %s, 8, v30' % vG)
a('v_lshl_or_b32 v30, v14, 4, v30')
a('s_lshl_b32 %s, %s, 14' % (sT0, sW))
a('v_add_u32 v30, %s, v30' % sT0)
for ks in range(16):
    a('v_xor_b32 %s, %d, v30' % (v(ACC + ks), ks * 16))
a('v_lshrrev_b32 v14, 2, %s' % vLane)
a('v_and_b32 v15, 7, v14')
a('v_lshlrev_b32 v15, 1, v15')
a('v_lshrrev_b32 v31, 3, v14')
a('v_or_b32 v15, v15, v31')
a('v_bfe_u32 v31, %s, 1, 1' % vLane)
a('s_lshl_b32 %s, %s, 2' % (sT0, sW))
a('v_or_b32 v31, %s, v31' % sT0)
a('v_xor_b32 v15, v15, v31')
a('v_lshlrev_b32 v14, 10, v14')
a('v_lshl_or_b32 v14, v15, 4, v14')
a('v_lshl_or_b32 v24, v24, 3, v14')
a('v_xor_b32 v25, 32, v24')
a('v_add_u32 v31, %s, %s' % (vLB, vL16))
a('s_lshl3_add_u32 %s, %s, %s' % (sT3, sHG, sX))
a('s_lshl_b32 %s, %s, 8' % (sT3, sT3))
a('s_add_u32 %s, %s, 0x%x' % (sT3, sT3, W_C3))
a('v_mov_b32 v30, %s' % sT3)
a('s_mov_b32 %s, 63' % sTodo)
spin(F_H0, 4, sleep=1)
for ks in range(16):
    a('ds_read_b128 %s, %s' % (v(AF0 + 4 * ks, 4), v(ACC + ks)))
    a('v_add_u32 %s, %s, %s' % (v(ACC + ks), sK64, v(ACC + ks)))
spin(F_DI, 4, sleep=1)
a('s_waitcnt vmcnt(0)')
stamp(6)
a.label('L_h2')
for hh in range(4):
    a('s_bitcmp0_b32 %s, %d' % (sTodo, hh))
    a('s_cbranch_scc1 L_h2i%d' % hh)
    for dh in range(2):
        a('global_load_dwordx4 %s, v27, %s offset:%d sc1' % (v(G + 16 * hh + 4 * dh, 4), pWS, hh * 2048 + dh * 512 - 4096))
    a.label('L_h2i%d' % hh)
a('s_bitcmp1_b32 %s, 4' % sTodo)
a('s_cbranch_scc1 L_h2f')
a('s_waitcnt vmcnt(0)')
a('s_branch L_h2g')
a.label('L_h2f')
a('s_bitset0_b32 %s, 4' % sTodo)
a('s_waitcnt vmcnt(7)')
a.label('L_h2g')


def try_af1(lbl):
    a('s_bitcmp0_b32 %s, 5' % sTodo)
    a('s_cbranch_scc1 %s' % lbl)
    a('ds_read_b32 %s, %s offset:%d' % (vF, vLB, F_H1 - LB))
    a('s_waitcnt lgkmcnt(0)')
    a('v_readfirstlane_b32 %s, %s' % (sT0, vF))
    a('s_cmp_lt_u32 %s, 4' % sT0)
    a('s_cbranch_scc1 %s' % lbl)
    for ks in range(16):
        a('ds_read_b128 %s, %s' % (v(AF1 + 4 * ks, 4), v(ACC + ks)))
    a('s_bitset0_b32 %s, 5' % sTodo)
    a.label(lbl)


try_af1('L_h2w')
for hh in range(4):
    a('s_bitcmp0_b32 %s, %d' % (sTodo, hh))
    a('s_cbranch_scc1 L_h2p%d' % hh)
    A_, B_, T_ = G + 16 * hh, G + 16 * hh + 4, G + 16 * hh + 8
    a('s_waitcnt vmcnt(%d)' % (7 - 2 * hh))
    mfma(T_, SEL, A_, None)
    a('s_waitcnt vmcnt(%d)' % (6 - 2 * hh))
    mfma(T_ + 4, SEL, B_, None)
    for r in range(4):
        a('v_bitop3_b32 %s, %s, %s, %s bitop3:0x7e' % (v(A_ + r), v(A_ + r), v(B_ + r), v(TC + r)))
    a('v_or3_b32 v14, %s, %s, %s' % (v(A_), v(A_ + 1), v(A_ + 2)))
    a('v_or_b32 v14, v14, %s' % v(A_ + 3))
    a('v_and_b32 v14, 0x10001, v14')
    a('v_cmp_ne_u32 vcc, 0, v14')
    for r in range(4):
        a('v_cvt_pk_bf16_f32 %s, %s, %s' % (v(B_ + r), v(T_ + 2 * r), v(T_ + 2 * r + 1)))
    a('ds_write_b64 v29, %s offset:%d' % (v(B_, 2), hh * 16))
    a('ds_write_b64 v29, %s offset:%d' % (v(B_ + 2, 2), 512 + hh * 16))
    a('s_cbranch_vccnz L_h2p%d' % hh)
    a('s_bitset0_b32 %s, %d' % (sTodo, hh))
    a.label('L_h2p%d' % hh)
a('s_and_b32 %s, %s, 15' % (sT0, sTodo))
a('s_cbranch_scc0 L_h2d')
a('s_waitcnt lgkmcnt(0)')
a('s_sleep 2')
a('s_sub_u32 %s, %s, 1' % (sBudG, sBudG))
a('s_cbranch_scc0 L_h2')
a('s_mov_b32 %s, 0' % sBudG)
a.label('L_h2d')
if STAMPS:
    a('s_sub_u32 s100, 8193, %s' % sBudG)
flag_add(F_QL)
stamp(7)
try_af1('L_h2w2')
spin(F_QL, 4)
stamp(8)
for ks in range(16):
    a('ds_read_b128 %s, v31 offset:%d' % (v(QF + 4 * ks, 4), QL - LB + ks * 1040))
a('s_bitcmp0_b32 %s, 5' % sTodo)
a('s_cbranch_scc1 L_haveaf1')
spin(F_H1, 4)
for ks in range(16):
    a('ds_read_b128 %s, %s' % (v(AF1 + 4 * ks, 4), v(ACC + ks)))
a.label('L_haveaf1')
stamp(9)
if GATE3:
    a('s_cmp_lg_u32 %s, 1' % sW)
    a('s_cbranch_scc1 L_noat')
    a('s_mov_b64 exec, 1')
    a('global_atomic_add v0, v30, %s, %s sc0 sc1' % (vOne, pWS))
    a('s_mov_b64 exec, -1')
    a.label('L_noat')


def tr_read(t, sg, tau, part):
    base = (PV0 if t == 0 else PV1) + (sg * 8 + tau) * 4 + 2 * part
    k, e = tau >> 1, tau & 1
    areg = ('v24', 'v25') if t == 0 else ('v26', 'v27')
    a('ds_read_b64_tr_b16 %s, %s offset:%d' % (v(base, 2), areg[e], (2 * sg + part) * 16384 + k * 256))


a('v_add_u32 v26, %s, v24' % sK64)
a('v_add_u32 v27, %s, v25' % sK64)


def round_scores(d):
    if MIMIC:
        for r in (0, 2):
            a('v_cvt_pk_bf16_f32 %s, %s, %s' % (v(d + r + 1), v(d + r), v(d + r + 1)))
        for r in (0, 2):
            a('v_lshlrev_b32 %s, 16, %s' % (v(d + r), v(d + r + 1)))
            a('v_and_b32 %s, 0xffff0000, %s' % (v(d + r + 1), v(d + r + 1)))
    for r in range(4):
        a('v_mul_f32 %s, 0x3db504f3, %s' % (v(d + r), v(d + r)))
    for r in (0, 2):
        a('v_cvt_pk_bf16_f32 %s, %s, %s' % (v(d + r + 1), v(d + r), v(d + r + 1)))
    for r in (0, 2):
        a('v_lshlrev_b32 %s, 16, %s' % (v(d + r), v(d + r + 1)))
        a('v_and_b32 %s, 0xffff0000, %s' % (v(d + r + 1), v(d + r + 1)))


trs = [(sg, tau, part) for sg in range(2) for tau in range(8) for part in range(2)]
fill = ['v_lshl_add_u32 v28, %s, 2, %s' % (vI, vLB),
        's_lshr_b32 %s, %s, 1' % (sT0, sW), 's_lshl_b32 %s, %s, 11' % (sT0, sT0), 's_and_b32 %s, %s, 1' % (sT1, sW),
        's_lshl3_add_u32 %s, %s, %s' % (sT0, sT1, sT0), 'v_add_u32 v29, %s, v31' % sT0, 'v_mov_b32 v15, 0x3fb8aa3b',
        'v_mul_u32_u24 v240, 80, %s' % vI, 'v_add_u32 v240, 0x%x, v240' % LS, 'v_lshl_add_u32 v241, %s, 2, v240' % vG,
        's_lshl_b32 %s, %s, 4' % (sT0, sW), 'v_add_u32 v241, %s, v241' % sT0]
for ks in range(16):
    a('s_waitcnt lgkmcnt(%d)' % (15 - ks))
    mfma(SD, AF0 + 4 * ks, QF + 4 * ks, None if ks == 0 else SD)
    run_fill(1)
assert not fill
import io
_save = a.emit
_buf = []
a.emit = lambda t: _buf.append(t)
round_scores(SD)
a('v_max3_f32 v14, %s, %s, %s' % (v(SD), v(SD + 1), v(SD + 2)))
a('v_max_f32 v14, v14, %s' % v(SD + 3))
a.emit = _save
fill = _buf
for ks in range(16):
    mfma(SD + 4, AF1 + 4 * ks, QF + 4 * ks, None if ks == 0 else SD + 4)
    tr_read(0, *trs.pop(0)); tr_read(0, *trs.pop(0))
    if ks >= 3:
        run_fill(2)
assert not fill
round_scores(SD + 4)
a('v_max3_f32 v14, v14, %s, %s' % (v(SD + 4), v(SD + 5)))
a('v_max3_f32 v14, v14, %s, %s' % (v(SD + 6), v(SD + 7)))
a('ds_max_f32 v28, v14 offset:%d' % (MX - LB))
flag_add(F_MX)
spin(F_MX, 4, reads=['ds_read_b32 v52, v28 offset:%d' % (MX - LB)])
stamp(10)
a('v_mul_f32 v14, 0xbfb8aa3b, v52')
for r in range(8):
    a('v_fma_f32 %s, %s, v15, v14' % (v(SD + r), v(SD + r)))
for r in range(8):
    a('v_exp_f32 %s, %s' % (v(SD + r), v(SD + r)))
PF = QF
for r in range(4):
    a('v_cvt_pk_bf16_f32 %s, %s, %s' % (v(48 + r), v(SD + 2 * r), v(SD + 2 * r + 1)))
a('ds_write_b64 v29, v[48:49] offset:%d' % (PL - LB))
a('ds_write_b64 v29, v[50:51] offset:%d' % (PL - LB + 1024))
sum8('v14', SD)
a('ds_write_b32 v241, v14')
flag_add(F_P)
LR = 64
spin(F_P, 4, reads=['ds_read_b128 %s, v31 offset:%d' % (v(PF + 4 * k, 4), PL - LB + 1024 * k) for k in range(4)]
     + ['ds_read_b128 %s, v240 offset:%d' % (v(LR + 4 * k, 4), 16 * k) for k in range(4)])
stamp(11)


def last_check(n):
    a('s_cmp_lg_u32 %s, 1' % sW)
    a('s_cbranch_scc1 L_nolast')
    a('s_waitcnt vmcnt(%d)' % n)
    a('v_readfirstlane_b32 %s, v0' % sT4)
    a('s_sub_u32 %s, %s, %s' % (sT4, sT4, sEp))
    a('s_cmp_lg_u32 %s, 15' % sT4)
    a('s_cbranch_scc1 L_nolast')
    a('s_add_u32 %s, %s, 0x%x' % (sT3, sT3, W_F3 - W_C3))
    a('v_mov_b32 v22, %s' % sT3)
    a('v_mov_b32 v23, %s' % sEp)
    a('s_mov_b64 exec, 1')
    a('global_store_dword v22, v23, %s sc1' % pWS)
    a('s_mov_b64 exec, -1')
    a.label('L_nolast')


if GATE3 and CHK == 0:
    last_check(0)
fill = []
for k in range(0, 8, 2):
    fill.append('v_pk_add_f32 %s, %s, %s' % (v(LR + k, 2), v(LR + k, 2), v(LR + 8 + k, 2)))
fill += ['v_pk_add_f32 %s, %s, %s' % (v(LR, 2), v(LR, 2), v(LR + 2, 2)), 'v_pk_add_f32 %s, %s, %s' % (v(LR + 4, 2), v(LR + 4, 2), v(LR + 6, 2)),
         'v_pk_add_f32 %s, %s, %s' % (v(LR, 2), v(LR, 2), v(LR + 4, 2)), 'v_add_f32 v53, %s, %s' % (v(LR), v(LR + 1)),
         'v_mov_b32 v14, 0xffff', 'v_bfi_b32 v52, v14, %s, v52' % sEp, 's_lshr_b32 %s, %s, 16' % (sT5, sEp),
         'v_mov_b32 v14, 0xfff', 'v_bfi_b32 v53, v14, %s, v53' % sT5,
         's_and_b32 %s, %s, 0x63' % (sT0, sKB), 's_and_b32 %s, %s, 3' % (sT1, sKB), 's_mul_i32 %s, %s, 7' % (sT1, sT1),
         's_add_u32 %s, %s, %s' % (sT0, sT0, sT1), 's_bfe_u32 %s, %s, 0x30002' % (sT1, sKB), 's_add_u32 %s, %s, %s' % (sT0, sT0, sT1),
         's_lshl_b32 %s, %s, 3' % (sT0, sT0), 's_lshl_b32 %s, %s, 14' % (sT1, sHG), 's_add_u32 %s, %s, %s' % (sT0, sT0, sT1),
         's_add_u32 %s, %s, 0x%x' % (sT0, sT0, W_ST), 'v_lshl_add_u32 v14, %s, 10, %s' % (vI, sT0)]
n = 0
for sg in range(2):
    for tau in range(8):
        mfma(ACC + 4 * tau, PF + 4 * (sg * 2 + 0), PV0 + (sg * 8 + tau) * 4, None if sg == 0 else ACC + 4 * tau)
        tr_read(1, sg, tau, 0); tr_read(1, sg, tau, 1)
        run_fill(3)
        n += 1
        if n == 8:
            assert not fill
            a('s_cmp_lg_u32 %s, 0' % sW)
            a('s_cbranch_scc1 L_nostat')
            setexec(0xffff)
            a('global_store_dwordx2 v14, v[52:53], %s sc1' % pWS)
            setexec(-1)
            a.label('L_nostat')
            if GATE3 and CHK == 1:
                last_check(0)
            fill = ['s_lshl_b32 %s, %s, 21' % (sT0, sHG), 's_lshl_b32 %s, %s, 15' % (sT1, sW), 's_add_u32 %s, %s, %s' % (sT0, sT0, sT1),
                    's_lshl_b32 %s, %s, 8' % (sT1, sKB), 's_add_u32 %s, %s, %s' % (sT0, sT0, sT1), 's_add_u32 %s, %s, 0x%x' % (sT0, sT0, W_OP),
                    'v_lshlrev_b32 v30, 19, %s' % vG, 'v_lshl_or_b32 v30, %s, 4, v30' % vI, 'v_add_u32 v30, %s, v30' % sT0,
                    'v_add_u32 v16, 0x20000, v30', 'v_add_u32 v17, 0x40000, v30', 'v_add_u32 v18, 0x60000, v30',
                    'v_mul_u32_u24 v56, 37, %s' % vI, 'v_add_u32 v56, %s, v56' % sTag[0], 'v_and_b32 v56, 0xff, v56', 'v_lshl_or_b32 v56, v56, 15, v56',
                    'v_lshrrev_b32 v57, 2, v56', 'v_lshrrev_b32 v58, 4, v56', 'v_lshrrev_b32 v59, 6, v56', 'v_mov_b32 v60, 0x10001',
                    's_lshl2_add_u32 %s, %s, %s' % (sT0, sH, sCQ), 's_lshl2_add_u32 %s, %s, %s' % (sT0, sT0, sW), 's_lshl_b32 %s, %s, 13' % (sT0, sT0),
                    's_add_u32 %s, %s, 0x%x' % (sT0, sT0, W_OP + 4096), 'v_add_u32 v61, %s, %s' % (sT0, vL16),
                    's_lshl2_add_u32 %s, %s, %s' % (sT0, sH, sW), 's_lshl_b32 %s, %s, 8' % (sT0, sT0), 's_add_u32 %s, %s, 0x%x' % (sT0, sT0, W_ST),
                    'v_lshl_add_u32 v62, %s, 3, %s' % (vG, vCH), 'v_lshl_add_u32 v62, v62, 3, %s' % sT0,
                    's_lshl_b32 %s, %s, 9' % (sT0, sW), 'v_add_u32 v63, %s, v31' % sT0]
for sg in range(2):
    for tau in range(8):
        idx = sg * 8 + tau
        a('s_waitcnt lgkmcnt(%d)' % min(15, 30 - 2 * idx))
        mfma(ACC + 4 * tau, PF + 4 * (sg * 2 + 1), PV1 + idx * 4, ACC + 4 * tau)
        run_fill(1)
assert not fill
OB = 64
for u in range(4):
    for r in range(4):
        a('v_cvt_pk_bf16_f32 %s, %s, %s' % (v(OB + 4 * r + u), v(ACC + 8 * u + r), v(ACC + 8 * u + 4 + r)))
    for r in range(4):
        a('v_bfi_b32 %s, v60, %s, %s' % (v(OB + 4 * r + u), v(56 + u), v(OB + 4 * r + u)))
for r, ar in enumerate(('v30', 'v16', 'v17', 'v18')):
    a('global_store_dwordx4 %s, %s, %s sc1' % (ar, v(OB + 4 * r, 4), pWS))
stamp(12)
HD_ = 96; HS = 128; HA = 136; HACC = 168
if GATE3:
    if CHK == 2:
        last_check(4)
    a('s_lshl2_add_u32 %s, %s, %s' % (sT0, sA, sW))
    a('s_lshl_b32 %s, %s, 9' % (sT0, sT0))
    a('s_add_u32 %s, %s, 0x%x' % (sT0, sT0, W_F3))
    a('v_and_b32 v19, 1, %s' % vLane)
    a('v_lshl_add_u32 v19, v19, 8, %s' % sT0)
    a('s_movk_i32 %s, 64' % sT4)
    a.label('L_f3')
    a('global_load_dword v20, v19, %s sc1' % pWS)
    a('s_waitcnt vmcnt(0)')
    a('v_cmp_ne_u32 vcc, %s, v20' % sEp)
    a('s_cbranch_vccz L_f3d')
    if PSLEEP:
        a('s_sleep %d' % PSLEEP)
    a('s_sub_u32 %s, %s, 1' % (sT4, sT4))
    a('s_cbranch_scc0 L_f3')
    a.label('L_f3d')
    if STAMPS:
        a('s_sub_u32 s101, 65, %s' % sT4)
        a('s_lshl_b32 s101, s101, 8')
        a('s_or_b32 s100, s100, s101')
else:
    a('s_waitcnt vmcnt(0)')
stamp(13)
a('s_branch L_h3')
a.label('L_st')
a('s_sleep 6')
a('s_sub_u32 %s, %s, 1' % (sBudG, sBudG))
a('s_cbranch_scc1 L_h3x')
a('global_load_dwordx2 %s, v62, %s sc1' % (v(HS, 2), pWS))
a('s_waitcnt vmcnt(0)')
a('v_xor_b32 v14, %s, %s' % (sEp, v(HS)))
a('v_xor_b32 v15, %s, %s' % (sT5, v(HS + 1)))
a('v_and_b32 v14, 0xffff, v14')
a('v_and_b32 v15, 0xfff, v15')
a('v_or_b32 v14, v14, v15')
a('v_cmp_ne_u32 vcc, 0, v14')
a('s_cbranch_vccnz L_st')
a.label('L_h3')
a('global_load_dwordx2 %s, v62, %s sc1' % (v(HS, 2), pWS))
for t in range(8):
    a('global_load_dwordx4 %s, v61, %s offset:%d sc1' % (v(HD_ + 4 * t, 4), pWS, 1024 * t - 4096))
a('s_waitcnt vmcnt(8)')
a('v_xor_b32 v26, %s, %s' % (sEp, v(HS)))
a('v_xor_b32 v15, %s, %s' % (sT5, v(HS + 1)))
a('v_and_b32 v26, 0xffff, v26')
a('v_and_b32 v15, 0xfff, v15')
a('v_or_b32 v26, v26, v15')
a('v_and_b32 v16, 0xffff0000, %s' % v(HS))
a('v_mul_f32 v16, 0x3fb8aa3b, v16')
a('v_mov_b32 v14, v16')
for r in (4, 2, 1):
    dppop('v_max_f32', 'v14', 'row_ror:%d' % r)
crossrow('v_max_f32', 'v14', 'v15')
a('v_sub_f32 v16, v16, v14')
a('v_exp_f32 v16, v16')
a('v_mov_b32 v27, 0')
a('v_cvt_pk_bf16_f32 v16, v16, v16')
a('v_and_b32 v18, 0xffff0000, v16')
a('v_mul_f32 v18, v18, %s' % v(HS + 1))
for t in range(8):
    for r in range(4):
        a('v_and_b32_dpp %s, v16, %s row_newbcast:%d row_mask:0xf bank_mask:0xf' % (v(HA + 4 * t + r), vM[r], t))
    if t < 3:
        dppop('v_add_f32', 'v18', 'row_ror:%d' % (4 >> t))
crossrow('v_add_f32', 'v18', 'v15')
a('s_lshl_b32 %s, %s, 2' % (sT0, sW))
a('v_add_u32 v15, %s, %s' % (sT0, vLB))
a('s_mov_b64 exec, 1')
a('ds_write_b32 v15, v14 offset:%d' % (ML - LB))
a('ds_write_b32 v15, v18 offset:%d' % (ML + 16 - LB))
a('s_mov_b64 exec, -1')
for t in range(8):
    a('s_waitcnt vmcnt(%d)' % (7 - t))
    mfma(HACC, HA + 4 * t, HD_ + 4 * t, None if t == 0 else HACC)
    for r in range(4):
        a('v_bitop3_b32 v27, v27, %s, %s bitop3:0xf6' % (v(HD_ + 4 * t + r), v(56 + r)))
a('v_and_or_b32 v27, v27, v60, v26')
a('v_cmp_ne_u32 vcc, 0, v27')
a('s_cbranch_vccnz L_st')
a.label('L_h3x')
setexec(0xffffffff)
a('ds_write_b128 v63, %s offset:%d' % (v(HACC, 4), CL - LB))
flag_add(F_CL)
stamp(14)
dump_stamps()
a.label('L_end')
a('s_endpgm')
a.label('L_code_end')

hdr = open('cdna_kernels/%s.s.ref' % NAME).read().split('; Override launch geometry')[0]
src = hdr + '; @launch grid=(256,1,1) block=(512,1,1) lds=%d\n' % LDS_BYTES
src += '''.amdgcn_target "amdgcn-amd-amdhsa--gfx950"
.text
.globl {n}_kernel
.p2align 8
.type {n}_kernel,@function
{n}_kernel:
'''.format(n=NAME)
src += a.text()
src += '''.section .rodata,"a"
.p2align 6
.amdhsa_kernel {n}_kernel
  .amdhsa_next_free_vgpr 256
  .amdhsa_next_free_sgpr 102
  .amdhsa_accum_offset 256
  .amdhsa_group_segment_fixed_size 0
  .amdhsa_kernarg_size 104
  .amdhsa_user_sgpr_count 2
  .amdhsa_user_sgpr_kernarg_segment_ptr 1
  .amdhsa_system_sgpr_workgroup_id_x 1
.end_amdhsa_kernel
'''.format(n=NAME)
out = [x for x in sys.argv[1:] if not x.startswith('--')]
open(out[0] if out else 'cdna_kernels/%s.s' % NAME, 'w').write(src)
print('LDS', LDS_BYTES)
```

```python
import sys
from asmlib import Asm

NAME = 'recurrent_scan__compressed_kv_cla__geglu_ffn__decode'
STAMPS = '--stamps' in sys.argv
MIMIC = True


def opt(name, default):
    for x in sys.argv:
        if x.startswith('--%s=' % name):
            return int(x.split('=')[1])
    return default


W1 = opt('w1', 6)
W2 = opt('w2', 10)
HOLD = opt('hold', 0)
WARMQP = opt('warmqp', 0)
CHK = opt('chk', 2)
DI_AT = opt('di', 8)
HOLDN = opt('holdn', 0)
TOUCH = opt('touch', 0)
SLOWN = opt('slown', 0)
PSLEEP = opt('psleep', 1)
GATE3 = opt('gate3', 1)
P0 = opt('p0', 1)
XNT = opt('xnt', 0)
GO_AT = opt('go', 8)

W_QP = 0x10000
W_ST = 0x30000
W_FP = 0x38000
W_SP = 0x60000
W_C3 = 0x1000
W_F3 = 0x3000
W_OP = 0x200000
W_STAMP = 0x800000
LB = 131072
QL = 131072
PL = 147712
XT = 151808
XR = 153856
QSUM = 154880
CX = QSUM
CL = QSUM + 2048
FS = CL + 2048
FIN = FS
LS = FS + 2048
FL = LS + 1280
F_QS, F_QL, F_H1, F_MX, F_P, F_CL, F_CX, F_FS, F_FIN, F_XT, F_GO, F_H0, F_DI = [FL + 4 * k for k in range(13)]
MX = FL + 64
ML = MX + 64
LDS_BYTES = ML + 32

sWave, sW, sX, sI, sA, sH, sDH, sCQ, sKB, sHG, sI15 = ['s%d' % k for k in range(3, 14)]
sT0, sT1 = 's14', 's15'
pX, pCKV, pWQ, pWUK, pWUV, pWO, pBX, pWG, pWU, pWD, pOUT, pDBG, pWS = ['s[%d:%d]' % (16 + 2 * k, 17 + 2 * k) for k in range(13)]
sT2, sT3, sT4, sT5 = 's42', 's43', 's44', 's45'
sHD = 's46'
sFG1 = 's47'
sTag = ['s48', 's49', 's50', 's51']
sEp = 's52'
sBudL, sBudG = 's53', 's54'
sK64 = 's55'
pB = 's[56:57]'; pBlo, pBhi = 's56', 's57'
pC = 's[58:59]'
mVALID = 's[92:93]'
mT0 = 's[94:95]'
sTodo = 's96'; sDum = 's97'; sEpRaw = 's98'; sMS = 's99'; sFM = 's96'
vLane, vI, vG, vR8, vCH, vL16, vLB = ['v%d' % k for k in range(1, 8)]
vM = ['v8', 'v9', 'v10', 'v11']
vOne = 'v12'
vF = 'v13'


def v(n, cnt=1):
    return 'v%d' % n if cnt == 1 else 'v[%d:%d]' % (n, n + cnt - 1)


a = Asm()


CALF = opt('calf', -1); CALS = opt('cals', -1)
ROLE = ['c']


def stamp(k):
    if (ROLE[0] == 'f' and k == CALF) or (ROLE[0] == 's' and k == CALS) or (k == 0 and max(CALF, CALS) >= 0):
        a('s_memrealtime s[60:61]')
    if STAMPS:
        a('s_memrealtime s[%d:%d]' % (60 + 2 * k, 61 + 2 * k))


def setexec(m):
    if m == -1 or m < 0x80000000:
        a('s_mov_b64 exec, %s' % (hex(m) if m > 64 else str(m)))
    else:
        a('s_mov_b32 exec_lo, 0x%x' % (m & 0xffffffff))
        a('s_mov_b32 exec_hi, 0x%x' % (m >> 32))


def flag_add(*flags):
    a('s_mov_b64 exec, 1')
    for f in flags:
        a('ds_add_u32 %s, %s offset:%d' % (vLB, vOne, f - LB))
    a('s_mov_b64 exec, -1')


def spin(flag, target, reads=(), sleep=0):
    L = a.newlabel('spin'); D = a.newlabel('spind')
    a.label(L)
    a('ds_read_b32 %s, %s offset:%d' % (vF, vLB, flag - LB))
    for r in reads:
        a(r)
    a('s_waitcnt lgkmcnt(0)')
    a('v_readfirstlane_b32 %s, %s' % (sT0, vF))
    a('s_cmp_ge_u32 %s, %d' % (sT0, target))
    a('s_cbranch_scc1 %s' % D)
    if sleep:
        a('s_sleep %d' % sleep)
    a('s_sub_u32 %s, %s, 1' % (sBudL, sBudL))
    a('s_cbranch_scc0 %s' % L)
    a('s_mov_b32 %s, 0' % sBudL)
    a.label(D)


def retry_tail(L, D, sleep=2):
    a('s_cbranch_vccz %s' % D)
    if sleep:
        a('s_sleep %d' % sleep)
    a('s_sub_u32 %s, %s, 1' % (sBudG, sBudG))
    a('s_cbranch_scc0 %s' % L)
    a('s_mov_b32 %s, 0' % sBudG)
    a.label(D)


def dppop(op, x, ctl):
    a('%s_dpp %s, %s, %s %s row_mask:0xf bank_mask:0xf' % (op, x, x, x, ctl))


def crossrow(op, x, t):
    a('v_mov_b32 %s, %s' % (t, x))
    a('v_permlane16_swap_b32 %s, %s' % (x, t))
    a('%s %s, %s, %s' % (op, x, x, t))
    a('v_mov_b32 %s, %s' % (t, x))
    a('v_permlane32_swap_b32 %s, %s' % (x, t))
    a('%s %s, %s, %s' % (op, x, x, t))


def allreduce(op, x, t):
    for r in (8, 4, 2, 1):
        dppop(op, x, 'row_ror:%d' % r)
    crossrow(op, x, t)


def rnd_bf16(dst, src):
    a('v_cvt_pk_bf16_f32 %s, %s, %s' % (dst, src, src))
    a('v_and_b32 %s, 0xffff0000, %s' % (dst, dst))


def mfma(d, A, B, c=None):
    a('v_mfma_f32_16x16x32_bf16 %s, %s, %s, %s' % (v(d, 4), v(A, 4), v(B, 4), '0' if c is None else v(c, 4)))


def pkadd(d, x, y):
    a('v_pk_add_f32 %s, %s, %s' % (v(d, 2), v(x, 2), v(y, 2)))


def sum8(d, b):
    pkadd(b, b, b + 2); pkadd(b + 4, b + 4, b + 6); pkadd(b, b, b + 4)
    a('v_add_f32 %s, %s, %s' % (d, v(b), v(b + 1)))


def common_consts():
    a('v_and_b32 v14, 1, %s' % vCH)
    a('v_lshlrev_b32 v14, 4, v14')
    a('v_mov_b32 v15, 0xffff')
    a('v_lshlrev_b32 v14, v14, v15')
    a('v_lshrrev_b32 v15, 1, %s' % vCH)
    a('v_cmp_eq_u32 vcc, 0, v15')
    a('v_cmp_eq_u32 s[92:93], 1, v15')
    a('v_cmp_eq_u32 s[94:95], 2, v15')
    a('v_cndmask_b32 %s, 0, v14, vcc' % vM[0])
    a('v_cmp_eq_u32 vcc, 3, v15')
    a('v_cndmask_b32 %s, 0, v14, s[92:93]' % vM[1])
    a('v_cndmask_b32 %s, 0, v14, s[94:95]' % vM[2])
    a('v_cndmask_b32 %s, 0, v14, vcc' % vM[3])
    a('s_mov_b32 s92, 0x00ff00ff')
    a('s_mov_b32 s93, 0xff00ff00')


def part_waddr(dst, base):
    a('v_and_b32 %s, 1, %s' % (dst, vG))
    a('v_lshlrev_b32 %s, 4, %s' % (dst, dst))
    a('v_lshl_or_b32 %s, %s, 5, %s' % (dst, vCH, dst))
    a('v_lshrrev_b32 v15, 5, %s' % vLane)
    a('v_lshl_or_b32 %s, v15, 8, %s' % (dst, dst))
    a('s_lshl_b32 %s, %s, 9' % (sT0, sW))
    a('s_add_u32 %s, %s, 0x%x' % (sT0, sT0, base))
    a('v_add_u32 %s, %s, %s' % (dst, sT0, dst))


def make_tags():
    a('s_add_u32 %s, %s, 0x01010101' % (sEp, sEpRaw))
    a('s_cmp_eq_u32 %s, 0' % sEp)
    a('s_cselect_b32 %s, 0x01010101, %s' % (sEp, sEp))
    a('s_and_b32 %s, %s, 0xff' % (sTag[0], sEp))
    a('s_bfe_u32 %s, %s, 0x80008' % (sTag[1], sEp))
    a('s_bfe_u32 %s, %s, 0x80010' % (sTag[2], sEp))
    a('s_lshr_b32 %s, %s, 24' % (sTag[3], sEp))


def tag4(b, vmask):
    for r in range(4):
        a('v_bfi_b32 %s, %s, %s, %s' % (v(b + r), vmask, sTag[r], v(b + r)))


def chk4(acc, b, first=False):
    for r in range(4):
        if first and r == 0:
            a('v_xor_b32 %s, %s, %s' % (acc, sTag[0], v(b)))
        else:
            a('v_bitop3_b32 %s, %s, %s, %s bitop3:0xf6' % (acc, acc, v(b + r), sTag[r]))


def dump_stamps():
    if (ROLE[0] == 'f' and CALF >= 0) or (ROLE[0] == 's' and CALS >= 0):
        L = a.newlabel('cal')
        a('s_waitcnt lgkmcnt(0)')
        a('s_add_u32 s62, s60, 3000')
        a.label(L)
        a('s_memrealtime s[64:65]')
        a('s_waitcnt lgkmcnt(0)')
        a('s_sub_u32 s63, s64, s62')
        a('s_cmp_lt_i32 s63, 0')
        a('s_cbranch_scc1 %s' % L)
    if not STAMPS:
        return
    a('s_waitcnt lgkmcnt(0)')
    a('s_mov_b32 s90, s100')
    a('s_mov_b64 exec, -1')
    a('v_mov_b32 v14, 0')
    for k in range(16):
        a('v_writelane_b32 v14, s%d, %d' % (60 + 2 * k, k))
    a('s_lshl_b32 %s, s2, 3' % sT0)
    a('s_add_u32 %s, %s, %s' % (sT0, sT0, sWave))
    a('s_lshl_b32 %s, %s, 6' % (sT0, sT0))
    a('s_add_u32 %s, %s, 0x%x' % (sT0, sT0, W_STAMP))
    a('v_lshl_add_u32 v15, %s, 2, %s' % (vLane, sT0))
    a('s_mov_b64 exec, 0xffff')
    a('global_store_dword v15, v14, %s' % pWS)


X4 = 52
a('s_cmpk_gt_u32 s2, 255')
a('s_cbranch_scc1 L_end')
a('s_load_dwordx16 s[16:31], s[0:1], 0')
a('s_load_dwordx8 s[32:39], s[0:1], 64')
a('s_load_dwordx2 s[40:41], s[0:1], 96')
stamp(0)
if STAMPS:
    a('s_mov_b32 s100, 0')
    for k in range(1, 16):
        a('s_mov_b32 s%d, 0' % (60 + 2 * k))
a('v_lshrrev_b32 v14, 6, v0')
a('v_and_b32 %s, 63, v0' % vLane)
a('v_readfirstlane_b32 %s, v14' % sWave)
a('v_mov_b32 %s, 0x%x' % (vLB, LB))
a('v_and_b32 %s, 15, %s' % (vI, vLane))
a('v_mov_b32 v44, 0')
a('v_mov_b32 v45, 0xff800000')
a('v_lshl_add_u32 v49, %s, 2, %s' % (vI, vLB))
a('ds_write_b32 v49, v44 offset:%d' % (FL - LB))
a('ds_write_b32 v49, v45 offset:%d' % (MX - LB))
a('s_and_b32 %s, s2, 7' % sX)
a('s_lshr_b32 %s, s2, 3' % sI)
a('s_lshr_b32 %s, s2, 7' % sA)
a('s_bfe_u32 %s, s2, 0x10006' % sT0)
a('s_lshl1_add_u32 %s, %s, %s' % (sT0, sX, sT0))
a('s_lshl4_add_u32 %s, %s, %s' % (sH, sA, sT0))
a('s_bfe_u32 %s, s2, 0x10005' % sDH)
a('s_lshl1_add_u32 %s, %s, %s' % (sHD, sH, sDH))
a('s_lshl_b32 %s, %s, 7' % (sHD, sHD))
a('s_and_b32 %s, %s, 3' % (sW, sWave))
a('v_lshrrev_b32 %s, 3, %s' % (vR8, vLane))
a('v_and_b32 %s, 7, %s' % (vCH, vLane))
a('v_lshlrev_b32 v16, 13, %s' % vR8)
a('v_lshl_or_b32 v16, %s, 4, v16' % vCH)
a('v_lshlrev_b32 %s, 4, %s' % (vL16, vLane))
a('s_mov_b32 %s, 0x10000' % sK64)
a('s_and_b32 %s, %s, 3' % (sCQ, sI))
a('s_lshl_b32 %s, %s, 20' % (sT0, sW))
a('s_add_u32 %s, %s, %s' % (sT0, sT0, sHD))
a('v_add_u32 v17, %s, v16' % sT0)
a('s_lshl_b32 %s, %s, 18' % (sT2, sCQ))
a('v_add_u32 v18, %s, v17' % sT2)
a('v_lshrrev_b32 %s, 4, %s' % (vG, vLane))
a('v_mov_b32 %s, 1' % vOne)
a('s_and_b32 %s, %s, 15' % (sI15, sI))
a('s_lshl_b32 %s, %s, 2' % (sKB, sA))
a('s_xor_b32 %s, %s, %s' % (sKB, sKB, sI15))
a('s_lshl4_add_u32 %s, %s, %s' % (sKB, sX, sKB))
a('s_xor_b32 %s, %s, 1' % (sHG, sA))
a('s_mov_b32 %s, 0x200000' % sBudL)
a('s_movk_i32 %s, 8192' % sBudG)
a('s_getpc_b64 %s' % pC)
a.label('L_pc')
a('s_lshl3_add_u32 %s, %s, %s' % (sT3, sI, sWave))
a('s_lshl_b32 %s, %s, 6' % (sT3, sT3))
a('s_min_u32 %s, %s, L_code_end-L_pc-4' % (sT3, sT3))
a('s_cmp_lg_u32 %s, 0' % sWave)
a('s_waitcnt lgkmcnt(0)')
a('s_cbranch_scc1 L_nox')
a('global_load_dwordx4 %s, %s, %s%s' % (v(X4, 4), vL16, pX, ' nt' if XNT else ''))
a.label('L_nox')
a('s_load_dword %s, %s, 0' % (sEpRaw, pWS))
a('s_load_dword %s, %s, %s' % (sDum, pC, sT3))
a('s_barrier')
a('s_cmp_lt_u32 %s, 4' % sWave)
a('s_cbranch_scc1 L_stream')

ROLE[0] = 'f'
WQ = 64; WUK = 128; XD = 144; AP = 160; ACCQ = 168; QR = 172; QB = 188; D2 = 196
a('s_setprio 3')
for t in range(16):
    if t % 4 == 0 and t:
        a('v_add_u32 v18, %s, v17' % sT2)
    a('global_load_dwordx4 %s, v18, %s nt' % (v(WQ + 4 * t, 4), pWQ))
    if t % 4 != 3:
        a('v_add_u32 v18, %s, v18' % sK64)
    elif t < 15:
        a('s_add_u32 %s, %s, 0x40000' % (sT2, sT2))
        a('s_and_b32 %s, %s, 0xc0000' % (sT2, sT2))
    if t == 3:
        a('s_lshl2_add_u32 %s, %s, %s' % (sT1, sCQ, sW))
        a('s_lshl_b32 %s, %s, 18' % (sT1, sT1))
        a('s_add_u32 %s, %s, %s' % (sT1, sT1, sHD))
        a('v_lshlrev_b32 v19, 4, %s' % vR8)
        a('v_xor_b32 v19, v19, v16')
        a('v_add_u32 v19, %s, v19' % sT1)
        a('s_lshl_b32 %s, %s, 12' % (sT1, sW))
        a('s_add_u32 m0, %s, 0x%x' % (sT1, QL))
        for k in range(4):
            a('global_load_lds_dwordx4 v19, %s offset:%d nt' % (pWUK, 1024 * k))
            if k < 3:
                a('v_add_u32 v19, %d, v19' % (65536 - 1024))
    if t == GO_AT - 1:
        flag_add(F_GO)
    if t == 3:
        a('s_lshl_b32 %s, %s, 3' % (sT0, sHD))
        a('s_lshl2_add_u32 %s, %s, %s' % (sT1, sCQ, sW))
        a('s_lshl_b32 %s, %s, 6' % (sT1, sT1))
        a('s_add_u32 %s, %s, %s' % (sT0, sT0, sT1))
        a('s_add_u32 %s, %s, 0x%x' % (sT0, sT0, W_QP))
        a('v_lshl_add_u32 v25, %s, 4, %s' % (vG, sT0))
stamp(1)
a('s_branch L_front')

a.label('L_stream')
ROLE[0] = 's'
XF = 24
vSPA = 'v18'; vFPA = 'v19'
a('s_cmp_lg_u32 %s, 0' % sW)
a('s_cbranch_scc1 L_sprep')
a('s_setprio 3')
a('v_add_u32 v48, %s, %s' % (vLB, vL16))
a('v_lshlrev_b32 v35, 9, %s' % vG)
a('v_add_u32 v35, v49, v35')
a('s_waitcnt vmcnt(0)')
stamp(3)
for k in range(4):
    a('v_lshlrev_b32 %s, 16, %s' % (v(XF + 2 * k), v(X4 + k)))
    a('v_and_b32 %s, 0xffff0000, %s' % (v(XF + 2 * k + 1), v(X4 + k)))
pkadd(32, XF, XF + 2); pkadd(36, XF + 4, XF + 6); pkadd(32, 32, 36)
a('v_add_f32 v32, v32, v33')
a('ds_write_b128 v48, %s offset:%d' % (v(X4, 4), XR - LB))
allreduce('v_add_f32', 'v32', 'v33')
a('v_mul_f32 v32, 0x3b000000, v32')
for k in range(8):
    a('v_sub_f32 %s, %s, v32' % (v(36 + k), v(XF + k)))
rnd_bf16('v32', 'v32')
a('v_mul_f32 v34, v36, v36')
a('v_mul_f32 v33, v37, v37')
for k in range(2, 8, 2):
    a('v_fmac_f32 v34, %s, %s' % (v(36 + k), v(36 + k)))
    a('v_fmac_f32 v33, %s, %s' % (v(37 + k), v(37 + k)))
a('v_add_f32 v34, v34, v33')
fill = []
for k in range(8):
    fill.append('v_sub_f32 %s, %s, v32' % (v(XF + k), v(XF + k)))
for k in range(0, 8, 2):
    fill.append('v_cvt_pk_bf16_f32 %s, %s, %s' % (v(XF + k + 1), v(XF + k), v(XF + k + 1)))
for k in range(0, 8, 2):
    fill.append('v_lshlrev_b32 %s, 16, %s' % (v(XF + k), v(XF + k + 1)))
    fill.append('v_and_b32 %s, 0xffff0000, %s' % (v(XF + k + 1), v(XF + k + 1)))
for r in (8, 4, 2, 1):
    a(fill.pop(0)); a(fill.pop(0))
    dppop('v_add_f32', 'v34', 'row_ror:%d' % r)
a('v_mov_b32 v33, v34')
a(fill.pop(0)); a(fill.pop(0))
a('v_permlane16_swap_b32 v34, v33')
a('v_add_f32 v34, v34, v33')
a('v_mov_b32 v33, v34')
a(fill.pop(0)); a(fill.pop(0))
a('v_permlane32_swap_b32 v34, v33')
a('v_add_f32 v34, v34, v33')
a('v_mul_f32 v34, 0x3b000000, v34')
rnd_bf16('v34', 'v34')
a('v_add_f32 v34, 0x3727c5ac, v34')
rnd_bf16('v34', 'v34')
a('v_sqrt_f32 v34, v34')
a(fill.pop(0)); a(fill.pop(0))
rnd_bf16('v34', 'v34')
a('v_rcp_f32 v34, v34')
while fill:
    a(fill.pop(0))
for k in range(8):
    a('v_mul_f32 %s, %s, v34' % (v(XF + k), v(XF + k)))
for k in range(8):
    a('v_cvt_pk_bf16_f32 %s, %s, %s' % (v(XF + k), v(XF + k), v(XF + k)))
    a('ds_write_b32 v35, %s offset:%d' % (v(XF + k), XT - LB + 64 * k))
flag_add(F_XT)
a('s_setprio %d' % P0)
a('s_branch L_sprep2')
a.label('L_sprep')
if TOUCH:
    a('s_mov_b32 %s, 0x200000' % sT0)
    a('s_lshl_b32 %s, %s, 9' % (sT1, sHD))
    a('s_mov_b32 %s, 0x400000' % sT4)
    a('s_lshl_b32 %s, %s, 17' % (sT5, sKB))
    a('s_load_dword %s, %s, %s' % (sDum, pCKV, sT5))
    for p in (pWG, pWU, pWUV, pWD, pOUT):
        a('s_load_dword %s, %s, 0' % (sDum, p))
    a('s_load_dword %s, %s, %s' % (sDum, pWUV, sT0))
    a('s_load_dword %s, %s, %s' % (sDum, pWO, sT1))
    a('s_load_dword %s, %s, %s' % (sDum, pWS, sT0))
    a('s_load_dword %s, %s, %s' % (sDum, pWS, sT4))
a.label('L_sprep2')
common_consts()
a('s_lshl_b32 %s, %s, 18' % (sT0, sW))
a('s_lshl_b32 %s, s2, 6' % sT1)
a('s_add_u32 %s, %s, %s' % (sT0, sT0, sT1))
a('s_add_u32 %s, %s, 0x%x' % (sT0, sT0, W_SP))
a('v_lshlrev_b32 %s, 14, %s' % (vSPA, vI))
a('v_lshl_or_b32 %s, %s, 4, %s' % (vSPA, vG, vSPA))
a('v_add_u32 %s, %s, %s' % (vSPA, sT0, vSPA))
DA = 44
a('s_and_b32 %s, %s, 1' % (sT0, sW))
a('s_lshr_b32 %s, %s, 1' % (sT1, sW))
a('s_lshl3_add_u32 %s, %s, %s' % (sT0, sT0, sT1))
a('s_lshl_b32 %s, %s, 4' % (sT0, sT0))
a('v_xor_b32 %s, %s, %s' % (v(DA), sT0, vL16))
a('v_xor_b32 %s, 32, %s' % (v(DA + 1), v(DA)))
a('v_xor_b32 %s, 64, %s' % (v(DA + 2), v(DA)))
a('v_xor_b32 %s, 0x60, %s' % (v(DA + 3), v(DA)))
a('s_lshl_b32 %s, %s, 17' % (sT0, sKB))
a('s_lshl_b32 %s, %s, 12' % (sT1, sW))
a('s_add_u32 %s, %s, %s' % (sT0, sT0, sT1))
a('s_add_u32 %s, s18, %s' % (pBlo, sT0))
a('s_addc_u32 %s, s19, 0' % pBhi)
a('s_mov_b32 m0, %s' % sT1)
stamp(1)
spin(F_GO, 4, sleep=1)
stamp(2)
make_tags()
a('s_lshl2_add_u32 %s, %s, %s' % (sT0, sI15, sW))
a('s_cmp_lg_u32 %s, 1' % sT0)
a('s_cbranch_scc1 L_noinit')
a('s_lshl3_add_u32 %s, %s, %s' % (sT0, sHG, sX))
a('s_lshl_b32 %s, %s, 8' % (sT0, sT0))
a('s_add_u32 %s, %s, 0x%x' % (sT0, sT0, W_C3))
a('v_lshl_add_u32 v14, %s, 13, %s' % (vLane, sT0))
a('v_sub_u32 v15, %s, %s' % (sEp, vLane))
a('s_mov_b64 exec, 3')
a('global_store_dword v14, v15, %s sc1' % pWS)
a('s_mov_b64 exec, -1')
a.label('L_noinit')


def dma_block():
    for q in range(4):
        a('global_load_lds_dwordx4 %s, %s offset:%d nt' % (v(DA + q), pB, 1024 * q))
    a('s_add_u32 %s, %s, 0x4000' % (pBlo, pBlo))
    a('s_addc_u32 %s, %s, 0' % (pBhi, pBhi))
    a('s_add_u32 m0, m0, 0x4000')


GU = 64; WUV = 80; WD = 96; WO = 104; FA = 168
for _ in range(6):
    dma_block()
a('s_waitcnt vmcnt(8)')
if DI_AT == 6:
    flag_add(F_H0, F_DI)
else:
    flag_add(F_H0)
stamp(4)
dma_block()
if DI_AT == 7:
    flag_add(F_DI)
dma_block()
if DI_AT == 8:
    flag_add(F_DI)
a('s_setprio 0')
a('v_mov_b32 v53, 0xff')
AG = 200; AU = 204; AD = 208; AO = 209
a('s_lshr_b32 %s, %s, 1' % (sT0, sX))
a('s_lshl2_add_u32 %s, %s, %s' % (sT0, sA, sT0))
a('s_mul_i32 %s, %s, 28' % (sT3, sT0))
a('s_and_b32 %s, %s, 1' % (sT0, sX))
a('s_mul_i32 %s, %s, 12' % (sT1, sT0))
a('s_add_u32 %s, %s, %s' % (sT3, sT3, sT1))
a('s_add_u32 %s, %s, %s' % (sT3, sT3, sI15))
a('s_lshl2_add_u32 %s, %s, 12' % (sT0, sT0))
a('s_cmp_lt_u32 %s, %s' % (sI15, sT0))
a('s_cselect_b32 %s, -1, 0' % sFM)
a('s_lshr_b32 %s, %s, 3' % (sFG1, sT3))
a('s_and_b32 %s, %s, 7' % (sMS, sT3))
a('s_bitcmp1_b32 %s, 0' % sW)
a('s_cselect_b64 %s, %s, %s' % (pB, pWU, pWG))
a('s_lshr_b32 %s, %s, 1' % (sT1, sW))
a('s_lshl1_add_u32 %s, %s, %s' % (sT0, sMS, sT1))
a('s_mul_i32 %s, %s, %d' % (sT0, sT0, 32 * 3584))
a('s_lshl_b32 %s, %s, 7' % (sT1, sFG1))
a('s_add_u32 %s, %s, %s' % (sT0, sT0, sT1))
a('v_mul_u32_u24 v14, 3584, %s' % vR8)
a('v_lshl_add_u32 v14, %s, 4, v14' % vCH)
a('v_add_u32 %s, %s, v14' % (v(AG), sT0))
a('v_and_b32 %s, %s, %s' % (v(AG), sFM, v(AG)))
for t in range(1, 4):
    a('v_add_u32 %s, %d, %s' % (v(AG + t), 8 * 3584 * t, v(AG)))
a('v_lshlrev_b32 v17, 10, %s' % vG)
a('v_lshl_or_b32 v17, %s, 4, v17' % vI)
a('s_lshl_b32 %s, %s, 8' % (sT1, sW))
a('s_add_u32 %s, %s, 0x1000' % (sT1, sT1))
a('s_lshl_b32 %s, %s, 9' % (sT0, sHD))
a('s_add_u32 %s, %s, %s' % (sT0, sT0, sT1))
a('v_add_u32 v14, %s, v17' % sT0)
a('s_lshl_b32 %s, %s, 14' % (sT4, sCQ))
for p in range(8):
    a('v_add_u32 %s, %s, v14' % (v(AO + p), sT4))
    if p < 7:
        a('s_add_u32 %s, %s, 0x2000' % (sT4, sT4))
        a('s_and_b32 %s, %s, 0xe000' % (sT4, sT4))
a('s_lshl_b32 %s, %s, 13' % (sT0, sT3))
a('s_add_u32 %s, %s, %s' % (sT0, sT0, sT1))
a('v_add_u32 %s, %s, v17' % (v(AD), sT0))
a('v_and_b32 %s, %s, %s' % (v(AD), sFM, v(AD)))
a('v_or_b32 %s, 0x1000, %s' % (v(AD), v(AD)))
a('s_lshr_b32 %s, %s, 1' % (sT0, sW))
a('s_lshl_b32 %s, %s, 5' % (sT0, sT0))
a('s_lshl2_add_u32 %s, %s, %s' % (sT0, sCQ, sT0))
a('s_and_b32 %s, %s, 1' % (sT1, sW))
a('s_add_u32 %s, %s, %s' % (sT0, sT0, sT1))
a('s_lshl_b32 %s, %s, 16' % (sT0, sT0))
a('s_add_u32 %s, %s, %s' % (sT0, sT0, sHD))
a('v_add_u32 %s, %s, v16' % (v(AU), sT0))
a('v_add_u32 %s, 0x20000, %s' % (v(AU + 1), v(AU)))
a('v_add_u32 %s, 0x100000, %s' % (v(AU + 2), v(AU)))
a('v_add_u32 %s, 0x120000, %s' % (v(AU + 3), v(AU)))


def tl(kind, k):
    if kind == 'g':
        return 'global_load_dwordx4 %s, %s, %s nt' % (v(GU + 4 * k, 4), v(AG + k), pB)
    if kind == 'u':
        return 'global_load_dwordx4 %s, %s, %s nt' % (v(WUV + 4 * k, 4), v(AU + k), pWUV)
    if kind == 'd':
        return 'global_load_dwordx4 %s, %s, %s offset:%d nt' % (v(WD + 4 * k, 4), v(AD), pWD, -4096 + 4096 * k)
    return 'global_load_dwordx4 %s, %s, %s offset:%d nt' % (v(WO + 4 * k, 4), v(AO + (k >> 1)), pWO, -4096 + 4096 * (k & 1))


order = []
wo = list(range(16))
for kind, cnt, per in (('g', 4, 1), ('u', 4, 2), ('d', 2, 2)):
    for k in range(cnt):
        order.append((kind, k))
        for _ in range(per):
            order.append(('o', wo.pop(0)))
assert not wo and len(order) == 26
ntail = [0]


def issue_tail(upto):
    while ntail[0] < upto:
        W = W1 if ntail[0] < max(W1, HOLDN, SLOWN) else W2
        a('s_waitcnt vmcnt(%d)' % (W - 1))
        if ntail[0] == W1 - 1:
            flag_add(F_H1)
            stamp(5)
        if HOLDN and ntail[0] == HOLDN:
            spin(F_QL, 4, sleep=2)
        a(tl(*order[ntail[0]]))
        ntail[0] += 1


issue_tail(W1 + 2)
a('s_lshr_b32 %s, %s, 1' % (sT0, sMS))
a('s_lshl_b32 %s, %s, 9' % (sT0, sT0))
a('s_and_b32 %s, %s, 1' % (sT1, sMS))
a('s_lshl_b32 %s, %s, 5' % (sT1, sT1))
a('s_add_u32 %s, %s, %s' % (sT0, sT0, sT1))
a('s_lshr_b32 %s, %s, 1' % (sT1, sW))
a('s_lshl4_add_u32 %s, %s, %s' % (sT0, sT1, sT0))
a('s_add_u32 %s, %s, 0x%x' % (sT0, sT0, XT))
a('v_lshl_add_u32 v15, %s, 6, %s' % (vR8, sT0))
spin(F_XT, 1, reads=['ds_read_b128 v[24:27], v15'])
issue_tail(12)
for t in range(4):
    for r in range(4):
        a('v_and_b32 %s, %s, %s' % (v(FA + 4 * t + r), v(24 + t), vM[r]))
part_waddr('v32', CX)
a('s_and_b32 %s, %s, 1' % (sT0, sW))
a('s_lshr_b32 %s, %s, 1' % (sT1, sW))
a('s_lshl1_add_u32 %s, %s, %s' % (sT0, sT0, sT1))
a('s_sub_u32 %s, %s, %s' % (sT0, sT0, sW))
a('s_lshl_b32 %s, %s, 9' % (sT0, sT0))
a('v_add_u32 v33, %s, v32' % sT0)
a('v_bfe_u32 v36, %s, 2, 3' % vLane)
a('v_lshlrev_b32 v34, 5, v36')
a('v_and_b32 v35, 1, %s' % vLane)
a('v_lshl_or_b32 v34, v35, 4, v34')
a('v_bfe_u32 v35, %s, 1, 1' % vLane)
a('v_lshl_or_b32 v34, v35, 10, v34')
a('v_add_u32 v34, %s, v34' % vLB)
a('s_lshl_b32 %s, %s, 12' % (sT0, sFG1))
a('s_lshl_b32 %s, %s, 6' % (sT1, sMS))
a('s_add_u32 %s, %s, %s' % (sT0, sT0, sT1))
a('s_add_u32 %s, %s, 0x%x' % (sT0, sT0, W_FP))
a('v_lshlrev_b32 v36, 9, v36')
a('v_and_b32 %s, 3, %s' % (vFPA, vLane))
a('v_lshl_or_b32 %s, %s, 4, v36' % (vFPA, vFPA))
a('v_add_u32 %s, %s, %s' % (vFPA, sT0, vFPA))
issue_tail(16)
a('s_waitcnt vmcnt(9)')
for t in range(4):
    mfma(28, FA + 4 * t, GU + 4 * t, None if t == 0 else 28)
issue_tail(18)
a('s_mov_b64 exec, %s' % mVALID)
a('ds_write_b128 v33, v[28:31] offset:%d' % (FS - CX))
a('s_mov_b64 exec, 1')
a('ds_add_rtn_u32 %s, %s, %s offset:%d' % (vF, vLB, vOne, F_FS - LB))
a('s_mov_b64 exec, -1')
for k in range(4):
    a('ds_read_b128 %s, v34 offset:%d' % (v(36 + 4 * k, 4), FS - LB + 256 * k))
a('s_waitcnt lgkmcnt(0)')
a('v_readfirstlane_b32 %s, %s' % (sT0, vF))
a('s_cmp_lg_u32 %s, 3' % sT0)
a('s_cbranch_scc1 L_nofp')
a('s_cmp_eq_u32 %s, 0' % sFM)
a('s_cbranch_scc1 L_nofp')
pkadd(36, 36, 40); pkadd(38, 38, 42); pkadd(44, 44, 48); pkadd(46, 46, 50); pkadd(36, 36, 44); pkadd(38, 38, 46)
tag4(36, 'v53')
setexec(0xffffffff)
a('global_store_dwordx4 %s, v[36:39], %s sc1' % (vFPA, pWS))
setexec(-1)
a.label('L_nofp')
issue_tail(26)
stamp(6)
SA = 184
for k in range(16):
    a('v_mov_b32 %s, 0' % v(SA + k))
a('v_mov_b32 v52, 0')
a('s_lshl_b32 %s, %s, 7' % (sT0, sW))
a('s_add_u32 %s, %s, 0x%x' % (sT0, sT0, CL))
a('v_lshl_add_u32 v54, %s, 4, %s' % (vR8, sT0))
a('s_lshl_b32 %s, %s, 2' % (sT0, sCQ))
a('v_add_u32 v55, %s, %s' % (sT0, vI))
a('v_and_b32 v55, 15, v55')
a('v_lshl_add_u32 v55, v55, 2, %s' % vG)
a('v_lshlrev_b32 v55, 2, v55')
a('v_add_u32 v55, 0x%x, v55' % CX)
a('s_lshl_b32 %s, s2, 14' % sT0)
a('s_lshl_b32 %s, %s, 12' % (sT1, sW))
a('s_add_u32 %s, %s, %s' % (sT0, sT0, sT1))
a('s_add_u32 %s, %s, 0x%x' % (sT0, sT0, W_SP))
a('v_add_u32 v60, %s, %s' % (sT0, vL16))
a('v_and_b32 v61, 3, %s' % vLane)
a('v_lshl_add_u32 v61, %s, 2, v61' % vG)
a('v_lshlrev_b32 v61, 4, v61')
a('s_lshl_b32 %s, %s, 8' % (sT0, sW))
a('s_add_u32 %s, %s, 0x%x' % (sT0, sT0, FIN))
a('v_add_u32 v61, %s, v61' % sT0)
a('v_lshlrev_b32 v62, 2, %s' % vLane)
a('v_add_u32 v62, 0x%x, v62' % FIN)
a('s_lshl_b32 %s, s2, 4' % sT0)
a('s_and_b32 %s, %s, 0x3f0' % (sT0, sT0))
a('v_lshl_add_u32 v63, %s, 1, %s' % (vCH, sT0))
a('v_add_u32 v20, %s, v63' % vLB)
a('ds_read_u16 v21, v20 offset:%d' % (XR - LB))
a('s_mov_b32 s94, 0x000f000f')
a('s_mov_b32 s95, 0x000f000f')
a('s_waitcnt vmcnt(0)')
stamp(7)
a('s_cmp_eq_u32 %s, 0' % sFM)
a('s_cbranch_scc1 L_nof2')
a('s_lshl_b32 %s, %s, 9' % (sT0, sT3))
a('s_add_u32 %s, %s, 0x%x' % (sT0, sT0, W_FP))
a('v_and_b32 v14, 0x1f0, %s' % vL16)
a('v_add_u32 v14, %s, v14' % sT0)
Lr = a.newlabel('fhop'); Ld = a.newlabel('fhopd')
a.label(Lr)
a('global_load_dwordx4 v[36:39], v14, %s sc1' % pWS)
a('s_waitcnt vmcnt(0)')
chk4('v15', 36, True)
a('v_and_b32 v15, 0xff, v15')
a('v_cmp_ne_u32 vcc, 0, v15')
retry_tail(Lr, Ld, sleep=12)
for rr in (4, 8):
    for k in range(4):
        dppop('v_add_f32', v(36 + k), 'row_ror:%d' % rr)
for k in range(4):
    a('v_mov_b32 %s, %s' % (v(40 + k), v(36 + k)))
for k in range(4):
    a('v_permlane16_swap_b32 %s, %s' % (v(36 + k), v(40 + k)))
for k in range(4):
    a('v_add_f32 %s, %s, %s' % (v(36 + k), v(36 + k), v(40 + k)))
a('v_mov_b32_dpp v36, v37 quad_perm:[0,1,2,3] row_mask:0x2 bank_mask:0xf')
a('v_mov_b32_dpp v36, v38 quad_perm:[0,1,2,3] row_mask:0x4 bank_mask:0xf')
a('v_mov_b32_dpp v36, v39 quad_perm:[0,1,2,3] row_mask:0x8 bank_mask:0xf')
rnd_bf16('v36', 'v36')
a('v_mov_b32_dpp v37, v36 quad_perm:[2,3,2,3] row_mask:0xf bank_mask:0xf')
a('v_mul_f32 v38, v36, v36')
a('v_mov_b32 v39, 0x3d372713')
a('v_fma_f32 v38, v38, v39, 1.0')
a('v_mul_f32 v38, v38, v36')
a('v_mul_f32 v38, 0xc0135761, v38')
a('v_exp_f32 v38, v38')
a('v_add_f32 v38, 1.0, v38')
a('v_rcp_f32 v38, v38')
a('v_mul_f32 v38, v38, v36')
rnd_bf16('v38', 'v38')
a('v_mul_f32 v38, v38, v37')
a('v_cvt_pk_bf16_f32 v52, v38, v38')
a.label('L_nof2')
a('s_waitcnt vmcnt(0)')
stamp(8)
OUT = 56
for t in range(2):
    for r in range(4):
        a('v_and_b32_dpp %s, v52, %s row_newbcast:%d row_mask:0xf bank_mask:0xc' % (v(SA + 8 + 4 * t + r), vM[r], t))
mfma(OUT, SA + 8, WD, None)
mfma(OUT, SA + 12, WD + 4, OUT)
a('s_setprio 2')
spin(F_CL, 4, reads=['ds_read_b128 v[24:27], %s offset:%d' % (vLB, ML - LB), 'ds_read_b128 v[28:31], %s offset:%d' % (vLB, ML + 16 - LB)]
     + ['ds_read_b128 %s, v54 offset:%d' % (v(36 + 4 * k, 4), 512 * k) for k in range(4)], sleep=1)
stamp(9)
a('v_max3_f32 v14, v24, v25, v26')
a('v_max_f32 v14, v14, v27')
for k in range(4):
    a('v_sub_f32 %s, %s, v14' % (v(24 + k), v(24 + k)))
for k in range(4):
    a('v_exp_f32 %s, %s' % (v(24 + k), v(24 + k)))
a('v_mul_f32 v14, v24, v28')
a('v_mul_f32 v15, v25, v29')
a('v_fmac_f32 v14, v26, v30')
a('v_fmac_f32 v15, v27, v31')
a('v_add_f32 v14, v14, v15')
a('v_rcp_f32 v14, v14')
for t in range(4):
    a('v_mul_f32 %s, v24, %s' % (v(36 + t), v(36 + t)))
for k in range(1, 4):
    for t in range(4):
        a('v_fmac_f32 %s, %s, %s' % (v(36 + t), v(24 + k), v(36 + 4 * k + t)))
for t in range(4):
    a('v_mul_f32 %s, v14, %s' % (v(36 + t), v(36 + t)))
for t in range(4):
    a('v_cvt_pk_bf16_f32 %s, %s, %s' % (v(24 + t), v(36 + t), v(36 + t)))
for t in range(4):
    for r in range(4):
        a('v_and_b32 %s, %s, %s' % (v(FA + 4 * t + r), v(24 + t), vM[r]))
    if t >= 1:
        mfma(28, FA + 4 * (t - 1), WUV + 4 * (t - 1), None if t == 1 else 28)
mfma(28, FA + 12, WUV + 12, 28)
a('s_mov_b64 exec, %s' % mVALID)
a('ds_write_b128 v32, v[28:31]')
flag_add(F_CX)
spin(F_CX, 4, reads=['ds_read2st64_b32 %s, v55 offset0:%d offset1:%d' % (v(36 + 2 * k, 2), 2 * k, 2 * k + 1) for k in range(4)])
stamp(10)
sum8('v24', 36)
a('v_cvt_pk_bf16_f32 v24, v24, v24')
for t in range(16):
    s = SA + 4 * (t & 1)
    for r in range(4):
        a('v_and_b32_dpp %s, v24, %s row_newbcast:%d row_mask:0xf bank_mask:0x3' % (v(s + r), vM[r], t))
    if t >= 1:
        mfma(OUT, SA + 4 * ((t - 1) & 1), WO + 4 * (t - 1), OUT)
mfma(OUT, SA + 4, WO + 60, OUT)
tag4(OUT, 'v53')
a('global_store_dwordx4 %s, %s, %s sc1' % (vSPA, v(OUT, 4), pWS))
stamp(11)
a('s_cmp_gt_u32 s2, 63')
a('s_cbranch_scc1 L_sdone')
a('s_waitcnt vmcnt(0)')
stamp(12)
Lr = a.newlabel('fin'); Ld = a.newlabel('find')
a.label(Lr)
for k in range(4):
    a('global_load_dwordx4 %s, v60, %s offset:%d sc1' % (v(64 + 4 * k, 4), pWS, 1024 * k))
for k in range(4):
    a('s_waitcnt vmcnt(%d)' % (3 - k))
    chk4('v22', 64 + 4 * k, k == 0)
    if k == 1:
        pkadd(64, 64, 68); pkadd(66, 66, 70)
a('v_and_b32 v22, 0xff, v22')
a('v_cmp_ne_u32 vcc, 0, v22')
pkadd(72, 72, 76); pkadd(74, 74, 78); pkadd(64, 64, 72); pkadd(66, 66, 74)
retry_tail(Lr, Ld, sleep=4)
stamp(13)
for rr in (4, 8):
    for k in range(4):
        dppop('v_add_f32', v(64 + k), 'row_ror:%d' % rr)
a('s_mov_b64 exec, %s' % mT0)
a('ds_write_b128 v61, v[64:67]')
a('s_mov_b64 exec, 1')
a('ds_add_rtn_u32 %s, %s, %s offset:%d' % (vF, vLB, vOne, F_FIN - LB))
a('s_mov_b64 exec, -1')
a('ds_read2st64_b32 v[22:23], v62 offset0:0 offset1:1')
a('ds_read2st64_b32 v[24:25], v62 offset0:2 offset1:3')
a('s_waitcnt lgkmcnt(0)')
a('v_readfirstlane_b32 %s, %s' % (sT0, vF))
pkadd(22, 22, 24)
a('s_cmp_lg_u32 %s, 3' % sT0)
a('s_cbranch_scc1 L_sdone')
a('v_add_f32 v22, v22, v23')
crossrow('v_add_f32', 'v22', 'v23')
rnd_bf16('v22', 'v22')
a('v_mul_f32 v24, 0xbfb8aa3b, v22')
a('v_exp_f32 v24, v24')
a('v_add_f32 v24, 1.0, v24')
a('v_rcp_f32 v24, v24')
a('v_mul_f32 v24, v24, v22')
rnd_bf16('v24', 'v24')
a('v_lshlrev_b32 v21, 16, v21')
a('v_mul_f32_dpp v24, v24, v22 row_ror:8 row_mask:0xf bank_mask:0xf')
rnd_bf16('v24', 'v24')
a('v_add_f32 v24, v24, v21')
a('v_cvt_pk_bf16_f32 v24, v24, v24')
setexec(0xff)
a('global_store_short v63, v24, %s' % pOUT)
stamp(14)
a('s_cmp_lg_u32 s2, 0')
a('s_cbranch_scc1 L_sdone')
a('v_mov_b32 v14, 0')
a('v_mov_b32 v15, %s' % sEp)
a('s_mov_b64 exec, 1')
a('global_store_dword v14, v15, %s sc1' % pWS)
a.label('L_sdone')
dump_stamps()
a('s_endpgm')

a.label('L_front')
ROLE[0] = 'f'
common_consts()
a('s_lshl_b32 %s, %s, 9' % (sT0, sW))
a('s_add_u32 %s, %s, 0x%x' % (sT0, sT0, XT))
a('v_lshl_add_u32 v14, %s, 6, %s' % (vR8, sT0))
for k in range(4):
    a('s_add_u32 %s, %s, %d' % (sT0, sCQ, k))
    a('s_and_b32 %s, %s, 3' % (sT0, sT0))
    a('s_lshl_b32 %s, %s, 4' % (sT0, sT0))
    a('v_add_u32 %s, %s, v14' % (v(56 + k), sT0))
spin(F_XT, 1, reads=['ds_read_b128 %s, %s' % (v(XD + 4 * k, 4), v(56 + k)) for k in range(4)])
stamp(2)
make_tags()
fill = []


def run_fill(n):
    for _ in range(n):
        if fill:
            a(fill.pop(0))


part_waddr('v22', QSUM)
a('v_lshrrev_b32 v23, 3, %s' % vI)
a('v_lshl_add_u32 v23, v23, 2, %s' % vG)
a('v_lshl_add_u32 v23, v23, 3, %s' % vCH)
a('v_lshlrev_b32 v23, 2, v23')
a('v_add_u32 v23, 0x%x, v23' % QSUM)
a('v_and_b32 v14, 3, %s' % vI)
a('v_xor_b32 v20, %s, v14' % vG)
a('v_lshlrev_b32 v20, 4, v20')
a('v_lshl_or_b32 v20, v14, 7, v20')
a('v_lshrrev_b32 v14, 2, %s' % vI)
a('v_lshl_or_b32 v20, v14, 10, v20')
a('s_lshl_b32 %s, %s, 12' % (sT0, sW))
a('s_add_u32 %s, %s, 0x%x' % (sT0, sT0, QL))
a('v_add_u32 v20, %s, v20' % sT0)
a('v_xor_b32 v21, 64, v20')
TP = 208
a('s_lshl_b32 %s, %s, 2' % (sT0, sW))
a('v_add_u32 v14, %s, %s' % (sT0, vG))
a('v_mul_u32_u24 v14, 37, v14')
a('v_add_u32 v14, %s, v14' % sTag[0])
a('v_and_b32 v14, 0xff, v14')
a('v_lshl_or_b32 %s, v14, 15, v14' % v(TP))
for r in range(1, 4):
    a('v_lshrrev_b32 %s, %d, %s' % (v(TP + r), 2 * r, v(TP)))
a('v_not_b32 v14, v14')
for k in range(8):
    a('v_bfe_u32 %s, v14, %d, 1' % (v(TP + 4 + k), k))
    a('v_lshlrev_b32 %s, 16, %s' % (v(TP + 4 + k), v(TP + 4 + k)))
a('v_mov_b32 v26, 0x10001')
a('s_mov_b32 %s, 0x07060302' % sT5)
for t in range(16):
    s = AP + 4 * (t & 1)
    for r in range(4):
        a('v_and_b32 %s, %s, %s' % (v(s + r), v(XD + t), vM[r]))
    if t >= 1:
        a('s_waitcnt vmcnt(%d)' % (15 - (t - 1) + (4 if t - 1 < 4 else 0)))
        mfma(ACCQ, AP + 4 * ((t - 1) & 1), WQ + 4 * (t - 1), None if t == 1 else ACCQ)
    if t == 5:
        a('ds_read_b128 %s, v20' % v(WUK, 4))
        a('ds_read_b128 %s, v21' % v(WUK + 4, 4))
        a('ds_read_b128 %s, v21 offset:512' % v(WUK + 8, 4))
        a('ds_read_b128 %s, v20 offset:512' % v(WUK + 12, 4))
a('s_waitcnt vmcnt(0)')
mfma(ACCQ, AP + 4, WQ + 60, ACCQ)
stamp(3)
a('s_lshl2_add_u32 %s, %s, %s' % (sT0, sHG, sW))
a('s_lshl_b32 %s, %s, 13' % (sT0, sT0))
a('s_add_u32 %s, %s, 0x%x' % (sT0, sT0, W_QP + 4096))
a('v_and_b32 v27, 1, %s' % vG)
a('v_lshlrev_b32 v28, 3, v27')
a('v_lshlrev_b32 v27, 10, v27')
a('v_lshl_or_b32 v27, %s, 4, v27' % vI)
a('v_lshrrev_b32 v24, 5, %s' % vLane)
a('v_lshl_or_b32 v27, v24, 8, v27')
a('v_lshl_or_b32 v28, v24, 8, v28')
a('v_add_u32 v27, %s, v27' % sT0)
a('v_and_b32 v24, 1, %s' % vLane)
a('s_mov_b64 exec, %s' % mVALID)
a('ds_write_b128 v22, %s' % v(ACCQ, 4))
flag_add(F_QS)
spin(F_QS, 4, reads=['ds_read2st64_b32 %s, v23 offset0:%d offset1:%d' % (v(QR + 2 * k, 2), 2 * k, 2 * k + 1) for k in range(4)])
stamp(4)
sum8('v14', QR)
a('v_mov_b32_dpp v15, v14 quad_perm:[1,0,3,2] row_mask:0xf bank_mask:0xf')
a('v_cvt_pk_bf16_f32 v14, v14, v15')
for k in range(8):
    a('v_mov_b32_dpp %s, v14 row_newbcast:%d row_mask:0xf bank_mask:0xf' % (v(QB + k), 2 * k))
mfma(D2, WUK, QB, None)
mfma(D2 + 4, WUK + 8, QB, None)
mfma(D2, WUK + 4, QB + 4, D2)
mfma(D2 + 4, WUK + 12, QB + 4, D2 + 4)
a('v_mul_u32_u24 v29, 1040, %s' % vI)
a('v_add_u32 v29, v28, v29')
a('s_lshl_b32 %s, %s, 6' % (sT0, sW))
a('s_add_u32 %s, %s, 0x%x' % (sT0, sT0, QL))
a('v_add_u32 v29, %s, v29' % sT0)
TC = 244
a('v_mul_u32_u24 v14, 37, %s' % vI)
a('v_add_u32 v14, %s, v14' % sTag[0])
a('v_and_b32 v14, 0xff, v14')
a('v_lshl_or_b32 %s, v14, 15, v14' % v(TC))
for k in range(8):
    a('v_add_u32 %s, %s, %s' % (v(D2 + k), v(TP + 4 + k), v(D2 + k)))
for r in range(4):
    a('v_perm_b32 %s, %s, %s, %s' % (v(D2 + r), v(D2 + 2 * r + 1), v(D2 + 2 * r), sT5))
for r in range(4):
    a('v_bfi_b32 %s, v26, %s, %s' % (v(D2 + r), v(TP + r), v(D2 + r)))
setexec(0x0001000100010001)
a('global_store_dwordx4 v25, %s, %s sc1' % (v(D2, 4), pWS))
setexec(-1)
for r in range(1, 4):
    a('v_lshrrev_b32 %s, %d, %s' % (v(TC + r), 2 * r, v(TC)))
SEL = 248
a('v_mov_b32 v14, 0x3f803f80')
a('v_cndmask_b32 v14, 0, v14, %s' % mVALID)
for r in range(4):
    a('v_and_b32 %s, v14, %s' % (v(SEL + r), vM[r]))
stamp(5)
QF = 32; PV0 = 96; PV1 = 160; ACC = 224; SD = 16
G = 32; AF0 = PV0; AF1 = PV1
a('v_lshlrev_b32 v14, 1, %s' % vCH)
a('v_lshrrev_b32 v15, 3, %s' % vI)
a('v_or_b32 v14, v14, v15')
a('v_lshlrev_b32 v30, 10, %s' % vI)
a('v_lshl_or_b32 v30, %s, 8, v30' % vG)
a('v_lshl_or_b32 v30, v14, 4, v30')
a('s_lshl_b32 %s, %s, 14' % (sT0, sW))
a('v_add_u32 v30, %s, v30' % sT0)
for ks in range(16):
    a('v_xor_b32 %s, %d, v30' % (v(ACC + ks), ks * 16))
a('v_lshrrev_b32 v14, 2, %s' % vLane)
a('v_and_b32 v15, 7, v14')
a('v_lshlrev_b32 v15, 1, v15')
a('v_lshrrev_b32 v31, 3, v14')
a('v_or_b32 v15, v15, v31')
a('v_bfe_u32 v31, %s, 1, 1' % vLane)
a('s_lshl_b32 %s, %s, 2' % (sT0, sW))
a('v_or_b32 v31, %s, v31' % sT0)
a('v_xor_b32 v15, v15, v31')
a('v_lshlrev_b32 v14, 10, v14')
a('v_lshl_or_b32 v14, v15, 4, v14')
a('v_lshl_or_b32 v24, v24, 3, v14')
a('v_xor_b32 v25, 32, v24')
a('v_add_u32 v31, %s, %s' % (vLB, vL16))
a('s_lshl3_add_u32 %s, %s, %s' % (sT3, sHG, sX))
a('s_lshl_b32 %s, %s, 8' % (sT3, sT3))
a('s_add_u32 %s, %s, 0x%x' % (sT3, sT3, W_C3))
a('v_mov_b32 v30, %s' % sT3)
a('s_mov_b32 %s, 63' % sTodo)
spin(F_H0, 4, sleep=1)
for ks in range(16):
    a('ds_read_b128 %s, %s' % (v(AF0 + 4 * ks, 4), v(ACC + ks)))
    a('v_add_u32 %s, %s, %s' % (v(ACC + ks), sK64, v(ACC + ks)))
spin(F_DI, 4, sleep=1)
a('s_waitcnt vmcnt(0)')
stamp(6)
a.label('L_h2')
for hh in range(4):
    a('s_bitcmp0_b32 %s, %d' % (sTodo, hh))
    a('s_cbranch_scc1 L_h2i%d' % hh)
    for dh in range(2):
        a('global_load_dwordx4 %s, v27, %s offset:%d sc1' % (v(G + 16 * hh + 4 * dh, 4), pWS, hh * 2048 + dh * 512 - 4096))
    a.label('L_h2i%d' % hh)
a('s_bitcmp1_b32 %s, 4' % sTodo)
a('s_cbranch_scc1 L_h2f')
a('s_waitcnt vmcnt(0)')
a('s_branch L_h2g')
a.label('L_h2f')
a('s_bitset0_b32 %s, 4' % sTodo)
a('s_waitcnt vmcnt(7)')
a.label('L_h2g')


def try_af1(lbl):
    a('s_bitcmp0_b32 %s, 5' % sTodo)
    a('s_cbranch_scc1 %s' % lbl)
    a('ds_read_b32 %s, %s offset:%d' % (vF, vLB, F_H1 - LB))
    a('s_waitcnt lgkmcnt(0)')
    a('v_readfirstlane_b32 %s, %s' % (sT0, vF))
    a('s_cmp_lt_u32 %s, 4' % sT0)
    a('s_cbranch_scc1 %s' % lbl)
    for ks in range(16):
        a('ds_read_b128 %s, %s' % (v(AF1 + 4 * ks, 4), v(ACC + ks)))
    a('s_bitset0_b32 %s, 5' % sTodo)
    a.label(lbl)


try_af1('L_h2w')
for hh in range(4):
    a('s_bitcmp0_b32 %s, %d' % (sTodo, hh))
    a('s_cbranch_scc1 L_h2p%d' % hh)
    A_, B_, T_ = G + 16 * hh, G + 16 * hh + 4, G + 16 * hh + 8
    a('s_waitcnt vmcnt(%d)' % (7 - 2 * hh))
    mfma(T_, SEL, A_, None)
    a('s_waitcnt vmcnt(%d)' % (6 - 2 * hh))
    mfma(T_ + 4, SEL, B_, None)
    for r in range(4):
        a('v_bitop3_b32 %s, %s, %s, %s bitop3:0x7e' % (v(A_ + r), v(A_ + r), v(B_ + r), v(TC + r)))
    a('v_or3_b32 v14, %s, %s, %s' % (v(A_), v(A_ + 1), v(A_ + 2)))
    a('v_or_b32 v14, v14, %s' % v(A_ + 3))
    a('v_and_b32 v14, 0x10001, v14')
    a('v_cmp_ne_u32 vcc, 0, v14')
    for r in range(4):
        a('v_cvt_pk_bf16_f32 %s, %s, %s' % (v(B_ + r), v(T_ + 2 * r), v(T_ + 2 * r + 1)))
    a('ds_write_b64 v29, %s offset:%d' % (v(B_, 2), hh * 16))
    a('ds_write_b64 v29, %s offset:%d' % (v(B_ + 2, 2), 512 + hh * 16))
    a('s_cbranch_vccnz L_h2p%d' % hh)
    a('s_bitset0_b32 %s, %d' % (sTodo, hh))
    a.label('L_h2p%d' % hh)
a('s_and_b32 %s, %s, 15' % (sT0, sTodo))
a('s_cbranch_scc0 L_h2d')
a('s_waitcnt lgkmcnt(0)')
a('s_sleep 2')
a('s_sub_u32 %s, %s, 1' % (sBudG, sBudG))
a('s_cbranch_scc0 L_h2')
a('s_mov_b32 %s, 0' % sBudG)
a.label('L_h2d')
if STAMPS:
    a('s_sub_u32 s100, 8193, %s' % sBudG)
flag_add(F_QL)
stamp(7)
try_af1('L_h2w2')
spin(F_QL, 4)
stamp(8)
for ks in range(16):
    a('ds_read_b128 %s, v31 offset:%d' % (v(QF + 4 * ks, 4), QL - LB + ks * 1040))
a('s_bitcmp0_b32 %s, 5' % sTodo)
a('s_cbranch_scc1 L_haveaf1')
spin(F_H1, 4)
for ks in range(16):
    a('ds_read_b128 %s, %s' % (v(AF1 + 4 * ks, 4), v(ACC + ks)))
a.label('L_haveaf1')
stamp(9)
if GATE3:
    a('s_cmp_lg_u32 %s, 1' % sW)
    a('s_cbranch_scc1 L_noat')
    a('s_mov_b64 exec, 1')
    a('global_atomic_add v0, v30, %s, %s sc0 sc1' % (vOne, pWS))
    a('s_mov_b64 exec, -1')
    a.label('L_noat')


def tr_read(t, sg, tau, part):
    base = (PV0 if t == 0 else PV1) + (sg * 8 + tau) * 4 + 2 * part
    k, e = tau >> 1, tau & 1
    areg = ('v24', 'v25') if t == 0 else ('v26', 'v27')
    a('ds_read_b64_tr_b16 %s, %s offset:%d' % (v(base, 2), areg[e], (2 * sg + part) * 16384 + k * 256))


a('v_add_u32 v26, %s, v24' % sK64)
a('v_add_u32 v27, %s, v25' % sK64)


def round_scores(d):
    if MIMIC:
        for r in (0, 2):
            a('v_cvt_pk_bf16_f32 %s, %s, %s' % (v(d + r + 1), v(d + r), v(d + r + 1)))
        for r in (0, 2):
            a('v_lshlrev_b32 %s, 16, %s' % (v(d + r), v(d + r + 1)))
            a('v_and_b32 %s, 0xffff0000, %s' % (v(d + r + 1), v(d + r + 1)))
    for r in range(4):
        a('v_mul_f32 %s, 0x3db504f3, %s' % (v(d + r), v(d + r)))
    for r in (0, 2):
        a('v_cvt_pk_bf16_f32 %s, %s, %s' % (v(d + r + 1), v(d + r), v(d + r + 1)))
    for r in (0, 2):
        a('v_lshlrev_b32 %s, 16, %s' % (v(d + r), v(d + r + 1)))
        a('v_and_b32 %s, 0xffff0000, %s' % (v(d + r + 1), v(d + r + 1)))


trs = [(sg, tau, part) for sg in range(2) for tau in range(8) for part in range(2)]
fill = ['v_lshl_add_u32 v28, %s, 2, %s' % (vI, vLB),
        's_lshr_b32 %s, %s, 1' % (sT0, sW), 's_lshl_b32 %s, %s, 11' % (sT0, sT0), 's_and_b32 %s, %s, 1' % (sT1, sW),
        's_lshl3_add_u32 %s, %s, %s' % (sT0, sT1, sT0), 'v_add_u32 v29, %s, v31' % sT0, 'v_mov_b32 v15, 0x3fb8aa3b',
        'v_mul_u32_u24 v240, 80, %s' % vI, 'v_add_u32 v240, 0x%x, v240' % LS, 'v_lshl_add_u32 v241, %s, 2, v240' % vG,
        's_lshl_b32 %s, %s, 4' % (sT0, sW), 'v_add_u32 v241, %s, v241' % sT0]
for ks in range(16):
    a('s_waitcnt lgkmcnt(%d)' % (15 - ks))
    mfma(SD, AF0 + 4 * ks, QF + 4 * ks, None if ks == 0 else SD)
    run_fill(1)
assert not fill
import io
_save = a.emit
_buf = []
a.emit = lambda t: _buf.append(t)
round_scores(SD)
a('v_max3_f32 v14, %s, %s, %s' % (v(SD), v(SD + 1), v(SD + 2)))
a('v_max_f32 v14, v14, %s' % v(SD + 3))
a.emit = _save
fill = _buf
for ks in range(16):
    mfma(SD + 4, AF1 + 4 * ks, QF + 4 * ks, None if ks == 0 else SD + 4)
    tr_read(0, *trs.pop(0)); tr_read(0, *trs.pop(0))
    if ks >= 3:
        run_fill(2)
assert not fill
round_scores(SD + 4)
a('v_max3_f32 v14, v14, %s, %s' % (v(SD + 4), v(SD + 5)))
a('v_max3_f32 v14, v14, %s, %s' % (v(SD + 6), v(SD + 7)))
a('ds_max_f32 v28, v14 offset:%d' % (MX - LB))
flag_add(F_MX)
spin(F_MX, 4, reads=['ds_read_b32 v52, v28 offset:%d' % (MX - LB)])
stamp(10)
a('v_mul_f32 v14, 0xbfb8aa3b, v52')
for r in range(8):
    a('v_fma_f32 %s, %s, v15, v14' % (v(SD + r), v(SD + r)))
for r in range(8):
    a('v_exp_f32 %s, %s' % (v(SD + r), v(SD + r)))
PF = QF
for r in range(4):
    a('v_cvt_pk_bf16_f32 %s, %s, %s' % (v(48 + r), v(SD + 2 * r), v(SD + 2 * r + 1)))
a('ds_write_b64 v29, v[48:49] offset:%d' % (PL - LB))
a('ds_write_b64 v29, v[50:51] offset:%d' % (PL - LB + 1024))
sum8('v14', SD)
a('ds_write_b32 v241, v14')
flag_add(F_P)
LR = 64
spin(F_P, 4, reads=['ds_read_b128 %s, v31 offset:%d' % (v(PF + 4 * k, 4), PL - LB + 1024 * k) for k in range(4)]
     + ['ds_read_b128 %s, v240 offset:%d' % (v(LR + 4 * k, 4), 16 * k) for k in range(4)])
stamp(11)


def last_check(n):
    a('s_cmp_lg_u32 %s, 1' % sW)
    a('s_cbranch_scc1 L_nolast')
    a('s_waitcnt vmcnt(%d)' % n)
    a('v_readfirstlane_b32 %s, v0' % sT4)
    a('s_sub_u32 %s, %s, %s' % (sT4, sT4, sEp))
    a('s_cmp_lg_u32 %s, 15' % sT4)
    a('s_cbranch_scc1 L_nolast')
    a('s_add_u32 %s, %s, 0x%x' % (sT3, sT3, W_F3 - W_C3))
    a('v_mov_b32 v22, %s' % sT3)
    a('v_mov_b32 v23, %s' % sEp)
    a('s_mov_b64 exec, 1')
    a('global_store_dword v22, v23, %s sc1' % pWS)
    a('s_mov_b64 exec, -1')
    a.label('L_nolast')


if GATE3 and CHK == 0:
    last_check(0)
fill = []
for k in range(0, 8, 2):
    fill.append('v_pk_add_f32 %s, %s, %s' % (v(LR + k, 2), v(LR + k, 2), v(LR + 8 + k, 2)))
fill += ['v_pk_add_f32 %s, %s, %s' % (v(LR, 2), v(LR, 2), v(LR + 2, 2)), 'v_pk_add_f32 %s, %s, %s' % (v(LR + 4, 2), v(LR + 4, 2), v(LR + 6, 2)),
         'v_pk_add_f32 %s, %s, %s' % (v(LR, 2), v(LR, 2), v(LR + 4, 2)), 'v_add_f32 v53, %s, %s' % (v(LR), v(LR + 1)),
         'v_mov_b32 v14, 0xffff', 'v_bfi_b32 v52, v14, %s, v52' % sEp, 's_lshr_b32 %s, %s, 16' % (sT5, sEp),
         'v_mov_b32 v14, 0xfff', 'v_bfi_b32 v53, v14, %s, v53' % sT5,
         's_and_b32 %s, %s, 0x63' % (sT0, sKB), 's_and_b32 %s, %s, 3' % (sT1, sKB), 's_mul_i32 %s, %s, 7' % (sT1, sT1),
         's_add_u32 %s, %s, %s' % (sT0, sT0, sT1), 's_bfe_u32 %s, %s, 0x30002' % (sT1, sKB), 's_add_u32 %s, %s, %s' % (sT0, sT0, sT1),
         's_lshl_b32 %s, %s, 3' % (sT0, sT0), 's_lshl_b32 %s, %s, 14' % (sT1, sHG), 's_add_u32 %s, %s, %s' % (sT0, sT0, sT1),
         's_add_u32 %s, %s, 0x%x' % (sT0, sT0, W_ST), 'v_lshl_add_u32 v14, %s, 10, %s' % (vI, sT0)]
n = 0
for sg in range(2):
    for tau in range(8):
        mfma(ACC + 4 * tau, PF + 4 * (sg * 2 + 0), PV0 + (sg * 8 + tau) * 4, None if sg == 0 else ACC + 4 * tau)
        tr_read(1, sg, tau, 0); tr_read(1, sg, tau, 1)
        run_fill(3)
        n += 1
        if n == 8:
            assert not fill
            a('s_cmp_lg_u32 %s, 0' % sW)
            a('s_cbranch_scc1 L_nostat')
            setexec(0xffff)
            a('global_store_dwordx2 v14, v[52:53], %s sc1' % pWS)
            setexec(-1)
            a.label('L_nostat')
            if GATE3 and CHK == 1:
                last_check(0)
            fill = ['s_lshl_b32 %s, %s, 21' % (sT0, sHG), 's_lshl_b32 %s, %s, 15' % (sT1, sW), 's_add_u32 %s, %s, %s' % (sT0, sT0, sT1),
                    's_lshl_b32 %s, %s, 8' % (sT1, sKB), 's_add_u32 %s, %s, %s' % (sT0, sT0, sT1), 's_add_u32 %s, %s, 0x%x' % (sT0, sT0, W_OP),
                    'v_lshlrev_b32 v30, 19, %s' % vG, 'v_lshl_or_b32 v30, %s, 4, v30' % vI, 'v_add_u32 v30, %s, v30' % sT0,
                    'v_add_u32 v16, 0x20000, v30', 'v_add_u32 v17, 0x40000, v30', 'v_add_u32 v18, 0x60000, v30',
                    'v_mul_u32_u24 v56, 37, %s' % vI, 'v_add_u32 v56, %s, v56' % sTag[0], 'v_and_b32 v56, 0xff, v56', 'v_lshl_or_b32 v56, v56, 15, v56',
                    'v_lshrrev_b32 v57, 2, v56', 'v_lshrrev_b32 v58, 4, v56', 'v_lshrrev_b32 v59, 6, v56', 'v_mov_b32 v60, 0x10001',
                    's_lshl2_add_u32 %s, %s, %s' % (sT0, sH, sCQ), 's_lshl2_add_u32 %s, %s, %s' % (sT0, sT0, sW), 's_lshl_b32 %s, %s, 13' % (sT0, sT0),
                    's_add_u32 %s, %s, 0x%x' % (sT0, sT0, W_OP + 4096), 'v_add_u32 v61, %s, %s' % (sT0, vL16),
                    's_lshl2_add_u32 %s, %s, %s' % (sT0, sH, sW), 's_lshl_b32 %s, %s, 8' % (sT0, sT0), 's_add_u32 %s, %s, 0x%x' % (sT0, sT0, W_ST),
                    'v_lshl_add_u32 v62, %s, 3, %s' % (vG, vCH), 'v_lshl_add_u32 v62, v62, 3, %s' % sT0,
                    's_lshl_b32 %s, %s, 9' % (sT0, sW), 'v_add_u32 v63, %s, v31' % sT0]
for sg in range(2):
    for tau in range(8):
        idx = sg * 8 + tau
        a('s_waitcnt lgkmcnt(%d)' % min(15, 30 - 2 * idx))
        mfma(ACC + 4 * tau, PF + 4 * (sg * 2 + 1), PV1 + idx * 4, ACC + 4 * tau)
        run_fill(1)
assert not fill
OB = 64
for u in range(4):
    for r in range(4):
        a('v_cvt_pk_bf16_f32 %s, %s, %s' % (v(OB + 4 * r + u), v(ACC + 8 * u + r), v(ACC + 8 * u + 4 + r)))
    for r in range(4):
        a('v_bfi_b32 %s, v60, %s, %s' % (v(OB + 4 * r + u), v(56 + u), v(OB + 4 * r + u)))
for r, ar in enumerate(('v30', 'v16', 'v17', 'v18')):
    a('global_store_dwordx4 %s, %s, %s sc1' % (ar, v(OB + 4 * r, 4), pWS))
stamp(12)
HD_ = 96; HS = 128; HA = 136; HACC = 168
if GATE3:
    if CHK == 2:
        last_check(4)
    a('s_lshl2_add_u32 %s, %s, %s' % (sT0, sA, sW))
    a('s_lshl_b32 %s, %s, 9' % (sT0, sT0))
    a('s_add_u32 %s, %s, 0x%x' % (sT0, sT0, W_F3))
    a('v_and_b32 v19, 1, %s' % vLane)
    a('v_lshl_add_u32 v19, v19, 8, %s' % sT0)
    a('s_movk_i32 %s, 64' % sT4)
    a.label('L_f3')
    a('global_load_dword v20, v19, %s sc1' % pWS)
    a('s_waitcnt vmcnt(0)')
    a('v_cmp_ne_u32 vcc, %s, v20' % sEp)
    a('s_cbranch_vccz L_f3d')
    if PSLEEP:
        a('s_sleep %d' % PSLEEP)
    a('s_sub_u32 %s, %s, 1' % (sT4, sT4))
    a('s_cbranch_scc0 L_f3')
    a.label('L_f3d')
    if STAMPS:
        a('s_sub_u32 s101, 65, %s' % sT4)
        a('s_lshl_b32 s101, s101, 8')
        a('s_or_b32 s100, s100, s101')
else:
    a('s_waitcnt vmcnt(0)')
stamp(13)
a('s_branch L_h3')
a.label('L_st')
a('s_sleep 6')
a('s_sub_u32 %s, %s, 1' % (sBudG, sBudG))
a('s_cbranch_scc1 L_h3x')
a('global_load_dwordx2 %s, v62, %s sc1' % (v(HS, 2), pWS))
a('s_waitcnt vmcnt(0)')
a('v_xor_b32 v14, %s, %s' % (sEp, v(HS)))
a('v_xor_b32 v15, %s, %s' % (sT5, v(HS + 1)))
a('v_and_b32 v14, 0xffff, v14')
a('v_and_b32 v15, 0xfff, v15')
a('v_or_b32 v14, v14, v15')
a('v_cmp_ne_u32 vcc, 0, v14')
a('s_cbranch_vccnz L_st')
a.label('L_h3')
a('global_load_dwordx2 %s, v62, %s sc1' % (v(HS, 2), pWS))
for t in range(8):
    a('global_load_dwordx4 %s, v61, %s offset:%d sc1' % (v(HD_ + 4 * t, 4), pWS, 1024 * t - 4096))
a('s_waitcnt vmcnt(8)')
a('v_xor_b32 v26, %s, %s' % (sEp, v(HS)))
a('v_xor_b32 v15, %s, %s' % (sT5, v(HS + 1)))
a('v_and_b32 v26, 0xffff, v26')
a('v_and_b32 v15, 0xfff, v15')
a('v_or_b32 v26, v26, v15')
a('v_and_b32 v16, 0xffff0000, %s' % v(HS))
a('v_mul_f32 v16, 0x3fb8aa3b, v16')
a('v_mov_b32 v14, v16')
for r in (4, 2, 1):
    dppop('v_max_f32', 'v14', 'row_ror:%d' % r)
crossrow('v_max_f32', 'v14', 'v15')
a('v_sub_f32 v16, v16, v14')
a('v_exp_f32 v16, v16')
a('v_mov_b32 v27, 0')
a('v_cvt_pk_bf16_f32 v16, v16, v16')
a('v_and_b32 v18, 0xffff0000, v16')
a('v_mul_f32 v18, v18, %s' % v(HS + 1))
for t in range(8):
    for r in range(4):
        a('v_and_b32_dpp %s, v16, %s row_newbcast:%d row_mask:0xf bank_mask:0xf' % (v(HA + 4 * t + r), vM[r], t))
    if t < 3:
        dppop('v_add_f32', 'v18', 'row_ror:%d' % (4 >> t))
crossrow('v_add_f32', 'v18', 'v15')
a('s_lshl_b32 %s, %s, 2' % (sT0, sW))
a('v_add_u32 v15, %s, %s' % (sT0, vLB))
a('s_mov_b64 exec, 1')
a('ds_write_b32 v15, v14 offset:%d' % (ML - LB))
a('ds_write_b32 v15, v18 offset:%d' % (ML + 16 - LB))
a('s_mov_b64 exec, -1')
for t in range(8):
    a('s_waitcnt vmcnt(%d)' % (7 - t))
    mfma(HACC, HA + 4 * t, HD_ + 4 * t, None if t == 0 else HACC)
    for r in range(4):
        a('v_bitop3_b32 v27, v27, %s, %s bitop3:0xf6' % (v(HD_ + 4 * t + r), v(56 + r)))
a('v_and_or_b32 v27, v27, v60, v26')
a('v_cmp_ne_u32 vcc, 0, v27')
a('s_cbranch_vccnz L_st')
a.label('L_h3x')
setexec(0xffffffff)
a('ds_write_b128 v63, %s offset:%d' % (v(HACC, 4), CL - LB))
flag_add(F_CL)
stamp(14)
dump_stamps()
a.label('L_end')
a('s_endpgm')
a.label('L_code_end')

hdr = open('cdna_kernels/%s.s.ref' % NAME).read().split('; Override launch geometry')[0]
src = hdr + '; @launch grid=(256,1,1) block=(512,1,1) lds=%d\n' % LDS_BYTES
src += '''.amdgcn_target "amdgcn-amd-amdhsa--gfx950"
.text
.globl {n}_kernel
.p2align 8
.type {n}_kernel,@function
{n}_kernel:
'''.format(n=NAME)
src += a.text()
src += '''.section .rodata,"a"
.p2align 6
.amdhsa_kernel {n}_kernel
  .amdhsa_next_free_vgpr 256
  .amdhsa_next_free_sgpr 102
  .amdhsa_accum_offset 256
  .amdhsa_group_segment_fixed_size 0
  .amdhsa_kernarg_size 104
  .amdhsa_user_sgpr_count 2
  .amdhsa_user_sgpr_kernarg_segment_ptr 1
  .amdhsa_system_sgpr_workgroup_id_x 1
.end_amdhsa_kernel
'''.format(n=NAME)
out = [x for x in sys.argv[1:] if not x.startswith('--')]
open(out[0] if out else 'cdna_kernels/%s.s' % NAME, 'w').write(src)
print('LDS', LDS_BYTES)
```

```python
import sys
from asmlib import Asm

NAME = 'recurrent_scan__compressed_kv_cla__geglu_ffn__decode'
STAMPS = '--stamps' in sys.argv
MIMIC = True


def opt(name, default):
    for x in sys.argv:
        if x.startswith('--%s=' % name):
            return int(x.split('=')[1])
    return default


W1 = opt('w1', 6)
W2 = opt('w2', 10)
HOLD = opt('hold', 0)
WARMQP = opt('warmqp', 0)
CHK = opt('chk', 2)
DI_AT = opt('di', 8)
HOLDN = opt('holdn', 0)
TOUCH = opt('touch', 0)
SLOWN = opt('slown', 0)
PSLEEP = opt('psleep', 1)
GATE3 = opt('gate3', 1)
P0 = opt('p0', 1)
XNT = opt('xnt', 0)
GO_AT = opt('go', 8)

W_QP = 0x10000
W_ST = 0x30000
W_FP = 0x38000
W_SP = 0x60000
W_C3 = 0x1000
W_F3 = 0x3000
W_OP = 0x200000
W_STAMP = 0x800000
LB = 131072
QL = 131072
PL = 147712
XT = 151808
XR = 153856
QSUM = 154880
CX = QSUM
CL = QSUM + 2048
FS = CL + 2048
FIN = FS
LS = FS + 2048
FL = LS + 1280
F_QS, F_QL, F_H1, F_MX, F_P, F_CL, F_CX, F_FS, F_FIN, F_XT, F_GO, F_H0, F_DI = [FL + 4 * k for k in range(13)]
MX = FL + 64
ML = MX + 64
LDS_BYTES = ML + 32

sWave, sW, sX, sI, sA, sH, sDH, sCQ, sKB, sHG, sI15 = ['s%d' % k for k in range(3, 14)]
sT0, sT1 = 's14', 's15'
pX, pCKV, pWQ, pWUK, pWUV, pWO, pBX, pWG, pWU, pWD, pOUT, pDBG, pWS = ['s[%d:%d]' % (16 + 2 * k, 17 + 2 * k) for k in range(13)]
sT2, sT3, sT4, sT5 = 's42', 's43', 's44', 's45'
sHD = 's46'
sFG1 = 's47'
sTag = ['s48', 's49', 's50', 's51']
sEp = 's52'
sBudL, sBudG = 's53', 's54'
sK64 = 's55'
pB = 's[56:57]'; pBlo, pBhi = 's56', 's57'
pC = 's[58:59]'
mVALID = 's[92:93]'
mT0 = 's[94:95]'
sTodo = 's96'; sDum = 's97'; sEpRaw = 's98'; sMS = 's99'; sFM = 's96'
vLane, vI, vG, vR8, vCH, vL16, vLB = ['v%d' % k for k in range(1, 8)]
vM = ['v8', 'v9', 'v10', 'v11']
vOne = 'v12'
vF = 'v13'


def v(n, cnt=1):
    return 'v%d' % n if cnt == 1 else 'v[%d:%d]' % (n, n + cnt - 1)


a = Asm()


CALF = opt('calf', -1); CALS = opt('cals', -1)
ROLE = ['c']


def stamp(k):
    if (ROLE[0] == 'f' and k == CALF) or (ROLE[0] == 's' and k == CALS) or (k == 0 and max(CALF, CALS) >= 0):
        a('s_memrealtime s[60:61]')
    if STAMPS:
        a('s_memrealtime s[%d:%d]' % (60 + 2 * k, 61 + 2 * k))


def setexec(m):
    if m == -1 or m < 0x80000000:
        a('s_mov_b64 exec, %s' % (hex(m) if m > 64 else str(m)))
    else:
        a('s_mov_b32 exec_lo, 0x%x' % (m & 0xffffffff))
        a('s_mov_b32 exec_hi, 0x%x' % (m >> 32))


def flag_add(*flags):
    a('s_mov_b64 exec, 1')
    for f in flags:
        a('ds_add_u32 %s, %s offset:%d' % (vLB, vOne, f - LB))
    a('s_mov_b64 exec, -1')


def spin(flag, target, reads=(), sleep=0):
    L = a.newlabel('spin'); D = a.newlabel('spind')
    a.label(L)
    a('ds_read_b32 %s, %s offset:%d' % (vF, vLB, flag - LB))
    for r in reads:
        a(r)
    a('s_waitcnt lgkmcnt(0)')
    a('v_readfirstlane_b32 %s, %s' % (sT0, vF))
    a('s_cmp_ge_u32 %s, %d' % (sT0, target))
    a('s_cbranch_scc1 %s' % D)
    if sleep:
        a('s_sleep %d' % sleep)
    a('s_sub_u32 %s, %s, 1' % (sBudL, sBudL))
    a('s_cbranch_scc0 %s' % L)
    a('s_mov_b32 %s, 0' % sBudL)
    a.label(D)


def retry_tail(L, D, sleep=2):
    a('s_cbranch_vccz %s' % D)
    if sleep:
        a('s_sleep %d' % sleep)
    a('s_sub_u32 %s, %s, 1' % (sBudG, sBudG))
    a('s_cbranch_scc0 %s' % L)
    a('s_mov_b32 %s, 0' % sBudG)
    a.label(D)


def dppop(op, x, ctl):
    a('%s_dpp %s, %s, %s %s row_mask:0xf bank_mask:0xf' % (op, x, x, x, ctl))


def crossrow(op, x, t):
    a('v_mov_b32 %s, %s' % (t, x))
    a('v_permlane16_swap_b32 %s, %s' % (x, t))
    a('%s %s, %s, %s' % (op, x, x, t))
    a('v_mov_b32 %s, %s' % (t, x))
    a('v_permlane32_swap_b32 %s, %s' % (x, t))
    a('%s %s, %s, %s' % (op, x, x, t))


def allreduce(op, x, t):
    for r in (8, 4, 2, 1):
        dppop(op, x, 'row_ror:%d' % r)
    crossrow(op, x, t)


def rnd_bf16(dst, src):
    a('v_cvt_pk_bf16_f32 %s, %s, %s' % (dst, src, src))
    a('v_and_b32 %s, 0xffff0000, %s' % (dst, dst))


def mfma(d, A, B, c=None):
    a('v_mfma_f32_16x16x32_bf16 %s, %s, %s, %s' % (v(d, 4), v(A, 4), v(B, 4), '0' if c is None else v(c, 4)))


def pkadd(d, x, y):
    a('v_pk_add_f32 %s, %s, %s' % (v(d, 2), v(x, 2), v(y, 2)))


def sum8(d, b):
    pkadd(b, b, b + 2); pkadd(b + 4, b + 4, b + 6); pkadd(b, b, b + 4)
    a('v_add_f32 %s, %s, %s' % (d, v(b), v(b + 1)))


def common_consts():
    a('v_and_b32 v14, 1, %s' % vCH)
    a('v_lshlrev_b32 v14, 4, v14')
    a('v_mov_b32 v15, 0xffff')
    a('v_lshlrev_b32 v14, v14, v15')
    a('v_lshrrev_b32 v15, 1, %s' % vCH)
    a('v_cmp_eq_u32 vcc, 0, v15')
    a('v_cmp_eq_u32 s[92:93], 1, v15')
    a('v_cmp_eq_u32 s[94:95], 2, v15')
    a('v_cndmask_b32 %s, 0, v14, vcc' % vM[0])
    a('v_cmp_eq_u32 vcc, 3, v15')
    a('v_cndmask_b32 %s, 0, v14, s[92:93]' % vM[1])
    a('v_cndmask_b32 %s, 0, v14, s[94:95]' % vM[2])
    a('v_cndmask_b32 %s, 0, v14, vcc' % vM[3])
    a('s_mov_b32 s92, 0x00ff00ff')
    a('s_mov_b32 s93, 0xff00ff00')


def part_waddr(dst, base):
    a('v_and_b32 %s, 1, %s' % (dst, vG))
    a('v_lshlrev_b32 %s, 4, %s' % (dst, dst))
    a('v_lshl_or_b32 %s, %s, 5, %s' % (dst, vCH, dst))
    a('v_lshrrev_b32 v15, 5, %s' % vLane)
    a('v_lshl_or_b32 %s, v15, 8, %s' % (dst, dst))
    a('s_lshl_b32 %s, %s, 9' % (sT0, sW))
    a('s_add_u32 %s, %s, 0x%x' % (sT0, sT0, base))
    a('v_add_u32 %s, %s, %s' % (dst, sT0, dst))


def make_tags():
    a('s_add_u32 %s, %s, 0x01010101' % (sEp, sEpRaw))
    a('s_cmp_eq_u32 %s, 0' % sEp)
    a('s_cselect_b32 %s, 0x01010101, %s' % (sEp, sEp))
    a('s_and_b32 %s, %s, 0xff' % (sTag[0], sEp))
    a('s_bfe_u32 %s, %s, 0x80008' % (sTag[1], sEp))
    a('s_bfe_u32 %s, %s, 0x80010' % (sTag[2], sEp))
    a('s_lshr_b32 %s, %s, 24' % (sTag[3], sEp))


def tag4(b, vmask):
    for r in range(4):
        a('v_bfi_b32 %s, %s, %s, %s' % (v(b + r), vmask, sTag[r], v(b + r)))


def chk4(acc, b, first=False):
    for r in range(4):
        if first and r == 0:
            a('v_xor_b32 %s, %s, %s' % (acc, sTag[0], v(b)))
        else:
            a('v_bitop3_b32 %s, %s, %s, %s bitop3:0xf6' % (acc, acc, v(b + r), sTag[r]))


def dump_stamps():
    if (ROLE[0] == 'f' and CALF >= 0) or (ROLE[0] == 's' and CALS >= 0):
        L = a.newlabel('cal')
        a('s_waitcnt lgkmcnt(0)')
        a('s_add_u32 s62, s60, 3000')
        a.label(L)
        a('s_memrealtime s[64:65]')
        a('s_waitcnt lgkmcnt(0)')
        a('s_sub_u32 s63, s64, s62')
        a('s_cmp_lt_i32 s63, 0')
        a('s_cbranch_scc1 %s' % L)
    if not STAMPS:
        return
    a('s_waitcnt lgkmcnt(0)')
    a('s_mov_b32 s90, s100')
    a('s_mov_b64 exec, -1')
    a('v_mov_b32 v14, 0')
    for k in range(16):
        a('v_writelane_b32 v14, s%d, %d' % (60 + 2 * k, k))
    a('s_lshl_b32 %s, s2, 3' % sT0)
    a('s_add_u32 %s, %s, %s' % (sT0, sT0, sWave))
    a('s_lshl_b32 %s, %s, 6' % (sT0, sT0))
    a('s_add_u32 %s, %s, 0x%x' % (sT0, sT0, W_STAMP))
    a('v_lshl_add_u32 v15, %s, 2, %s' % (vLane, sT0))
    a('s_mov_b64 exec, 0xffff')
    a('global_store_dword v15, v14, %s' % pWS)


X4 = 52
a('s_cmpk_gt_u32 s2, 255')
a('s_cbranch_scc1 L_end')
a('s_load_dwordx16 s[16:31], s[0:1], 0')
a('s_load_dwordx8 s[32:39], s[0:1], 64')
a('s_load_dwordx2 s[40:41], s[0:1], 96')
stamp(0)
if STAMPS:
    a('s_mov_b32 s100, 0')
    for k in range(1, 16):
        a('s_mov_b32 s%d, 0' % (60 + 2 * k))
a('v_lshrrev_b32 v14, 6, v0')
a('v_and_b32 %s, 63, v0' % vLane)
a('v_readfirstlane_b32 %s, v14' % sWave)
a('v_mov_b32 %s, 0x%x' % (vLB, LB))
a('v_and_b32 %s, 15, %s' % (vI, vLane))
a('v_mov_b32 v44, 0')
a('v_mov_b32 v45, 0xff800000')
a('v_lshl_add_u32 v49, %s, 2, %s' % (vI, vLB))
a('ds_write_b32 v49, v44 offset:%d' % (FL - LB))
a('ds_write_b32 v49, v45 offset:%d' % (MX - LB))
a('s_and_b32 %s, s2, 7' % sX)
a('s_lshr_b32 %s, s2, 3' % sI)
a('s_lshr_b32 %s, s2, 7' % sA)
a('s_bfe_u32 %s, s2, 0x10006' % sT0)
a('s_lshl1_add_u32 %s, %s, %s' % (sT0, sX, sT0))
a('s_lshl4_add_u32 %s, %s, %s' % (sH, sA, sT0))
a('s_bfe_u32 %s, s2, 0x10005' % sDH)
a('s_lshl1_add_u32 %s, %s, %s' % (sHD, sH, sDH))
a('s_lshl_b32 %s, %s, 7' % (sHD, sHD))
a('s_and_b32 %s, %s, 3' % (sW, sWave))
a('v_lshrrev_b32 %s, 3, %s' % (vR8, vLane))
a('v_and_b32 %s, 7, %s' % (vCH, vLane))
a('v_lshlrev_b32 v16, 13, %s' % vR8)
a('v_lshl_or_b32 v16, %s, 4, v16' % vCH)
a('v_lshlrev_b32 %s, 4, %s' % (vL16, vLane))
a('s_mov_b32 %s, 0x10000' % sK64)
a('s_and_b32 %s, %s, 3' % (sCQ, sI))
a('s_lshl_b32 %s, %s, 20' % (sT0, sW))
a('s_add_u32 %s, %s, %s' % (sT0, sT0, sHD))
a('v_add_u32 v17, %s, v16' % sT0)
a('s_lshl_b32 %s, %s, 18' % (sT2, sCQ))
a('v_add_u32 v18, %s, v17' % sT2)
a('v_lshrrev_b32 %s, 4, %s' % (vG, vLane))
a('v_mov_b32 %s, 1' % vOne)
a('s_and_b32 %s, %s, 15' % (sI15, sI))
a('s_lshl_b32 %s, %s, 2' % (sKB, sA))
a('s_xor_b32 %s, %s, %s' % (sKB, sKB, sI15))
a('s_lshl4_add_u32 %s, %s, %s' % (sKB, sX, sKB))
a('s_xor_b32 %s, %s, 1' % (sHG, sA))
a('s_mov_b32 %s, 0x200000' % sBudL)
a('s_movk_i32 %s, 8192' % sBudG)
a('s_getpc_b64 %s' % pC)
a.label('L_pc')
a('s_lshl3_add_u32 %s, %s, %s' % (sT3, sI, sWave))
a('s_lshl_b32 %s, %s, 6' % (sT3, sT3))
a('s_min_u32 %s, %s, L_code_end-L_pc-4' % (sT3, sT3))
a('s_cmp_lg_u32 %s, 0' % sWave)
a('s_waitcnt lgkmcnt(0)')
a('s_cbranch_scc1 L_nox')
a('global_load_dwordx4 %s, %s, %s%s' % (v(X4, 4), vL16, pX, ' nt' if XNT else ''))
a.label('L_nox')
WSMB = opt('wsmb', 0)
if WSMB:
    a('s_add_u32 s40, s40, 0x%x' % (WSMB << 20))
    a('s_addc_u32 s41, s41, 0')
a('s_load_dword %s, %s, 0' % (sEpRaw, pWS))
a('s_load_dword %s, %s, %s' % (sDum, pC, sT3))
a('s_barrier')
a('s_cmp_lt_u32 %s, 4' % sWave)
a('s_cbranch_scc1 L_stream')

ROLE[0] = 'f'
WQ = 64; WUK = 128; XD = 144; AP = 160; ACCQ = 168; QR = 172; QB = 188; D2 = 196
a('s_setprio 3')
for t in range(16):
    if t % 4 == 0 and t:
        a('v_add_u32 v18, %s, v17' % sT2)
    a('global_load_dwordx4 %s, v18, %s nt' % (v(WQ + 4 * t, 4), pWQ))
    if t % 4 != 3:
        a('v_add_u32 v18, %s, v18' % sK64)
    elif t < 15:
        a('s_add_u32 %s, %s, 0x40000' % (sT2, sT2))
        a('s_and_b32 %s, %s, 0xc0000' % (sT2, sT2))
    if t == 3:
        a('s_lshl2_add_u32 %s, %s, %s' % (sT1, sCQ, sW))
        a('s_lshl_b32 %s, %s, 18' % (sT1, sT1))
        a('s_add_u32 %s, %s, %s' % (sT1, sT1, sHD))
        a('v_lshlrev_b32 v19, 4, %s' % vR8)
        a('v_xor_b32 v19, v19, v16')
        a('v_add_u32 v19, %s, v19' % sT1)
        a('s_lshl_b32 %s, %s, 12' % (sT1, sW))
        a('s_add_u32 m0, %s, 0x%x' % (sT1, QL))
        for k in range(4):
            a('global_load_lds_dwordx4 v19, %s offset:%d nt' % (pWUK, 1024 * k))
            if k < 3:
                a('v_add_u32 v19, %d, v19' % (65536 - 1024))
    if t == GO_AT - 1:
        flag_add(F_GO)
    if t == 3:
        a('s_lshl_b32 %s, %s, 3' % (sT0, sHD))
        a('s_lshl2_add_u32 %s, %s, %s' % (sT1, sCQ, sW))
        a('s_lshl_b32 %s, %s, 6' % (sT1, sT1))
        a('s_add_u32 %s, %s, %s' % (sT0, sT0, sT1))
        a('s_add_u32 %s, %s, 0x%x' % (sT0, sT0, W_QP))
        a('v_lshl_add_u32 v25, %s, 4, %s' % (vG, sT0))
stamp(1)
a('s_branch L_front')

a.label('L_stream')
ROLE[0] = 's'
XF = 24
vSPA = 'v18'; vFPA = 'v19'
a('s_cmp_lg_u32 %s, 0' % sW)
a('s_cbranch_scc1 L_sprep')
a('s_setprio 3')
a('v_add_u32 v48, %s, %s' % (vLB, vL16))
a('v_lshlrev_b32 v35, 9, %s' % vG)
a('v_add_u32 v35, v49, v35')
a('s_waitcnt vmcnt(0)')
stamp(3)
for k in range(4):
    a('v_lshlrev_b32 %s, 16, %s' % (v(XF + 2 * k), v(X4 + k)))
    a('v_and_b32 %s, 0xffff0000, %s' % (v(XF + 2 * k + 1), v(X4 + k)))
pkadd(32, XF, XF + 2); pkadd(36, XF + 4, XF + 6); pkadd(32, 32, 36)
a('v_add_f32 v32, v32, v33')
a('ds_write_b128 v48, %s offset:%d' % (v(X4, 4), XR - LB))
allreduce('v_add_f32', 'v32', 'v33')
a('v_mul_f32 v32, 0x3b000000, v32')
for k in range(8):
    a('v_sub_f32 %s, %s, v32' % (v(36 + k), v(XF + k)))
rnd_bf16('v32', 'v32')
a('v_mul_f32 v34, v36, v36')
a('v_mul_f32 v33, v37, v37')
for k in range(2, 8, 2):
    a('v_fmac_f32 v34, %s, %s' % (v(36 + k), v(36 + k)))
    a('v_fmac_f32 v33, %s, %s' % (v(37 + k), v(37 + k)))
a('v_add_f32 v34, v34, v33')
fill = []
for k in range(8):
    fill.append('v_sub_f32 %s, %s, v32' % (v(XF + k), v(XF + k)))
for k in range(0, 8, 2):
    fill.append('v_cvt_pk_bf16_f32 %s, %s, %s' % (v(XF + k + 1), v(XF + k), v(XF + k + 1)))
for k in range(0, 8, 2):
    fill.append('v_lshlrev_b32 %s, 16, %s' % (v(XF + k), v(XF + k + 1)))
    fill.append('v_and_b32 %s, 0xffff0000, %s' % (v(XF + k + 1), v(XF + k + 1)))
for r in (8, 4, 2, 1):
    a(fill.pop(0)); a(fill.pop(0))
    dppop('v_add_f32', 'v34', 'row_ror:%d' % r)
a('v_mov_b32 v33, v34')
a(fill.pop(0)); a(fill.pop(0))
a('v_permlane16_swap_b32 v34, v33')
a('v_add_f32 v34, v34, v33')
a('v_mov_b32 v33, v34')
a(fill.pop(0)); a(fill.pop(0))
a('v_permlane32_swap_b32 v34, v33')
a('v_add_f32 v34, v34, v33')
a('v_mul_f32 v34, 0x3b000000, v34')
rnd_bf16('v34', 'v34')
a('v_add_f32 v34, 0x3727c5ac, v34')
rnd_bf16('v34', 'v34')
a('v_sqrt_f32 v34, v34')
a(fill.pop(0)); a(fill.pop(0))
rnd_bf16('v34', 'v34')
a('v_rcp_f32 v34, v34')
while fill:
    a(fill.pop(0))
for k in range(8):
    a('v_mul_f32 %s, %s, v34' % (v(XF + k), v(XF + k)))
for k in range(8):
    a('v_cvt_pk_bf16_f32 %s, %s, %s' % (v(XF + k), v(XF + k), v(XF + k)))
    a('ds_write_b32 v35, %s offset:%d' % (v(XF + k), XT - LB + 64 * k))
flag_add(F_XT)
a('s_setprio %d' % P0)
a('s_branch L_sprep2')
a.label('L_sprep')
if TOUCH:
    a('s_mov_b32 %s, 0x200000' % sT0)
    a('s_lshl_b32 %s, %s, 9' % (sT1, sHD))
    a('s_mov_b32 %s, 0x400000' % sT4)
    a('s_lshl_b32 %s, %s, 17' % (sT5, sKB))
    a('s_load_dword %s, %s, %s' % (sDum, pCKV, sT5))
    for p in (pWG, pWU, pWUV, pWD, pOUT):
        a('s_load_dword %s, %s, 0' % (sDum, p))
    a('s_load_dword %s, %s, %s' % (sDum, pWUV, sT0))
    a('s_load_dword %s, %s, %s' % (sDum, pWO, sT1))
    a('s_load_dword %s, %s, %s' % (sDum, pWS, sT0))
    a('s_load_dword %s, %s, %s' % (sDum, pWS, sT4))
a.label('L_sprep2')
common_consts()
a('s_lshl_b32 %s, %s, 18' % (sT0, sW))
a('s_lshl_b32 %s, s2, 6' % sT1)
a('s_add_u32 %s, %s, %s' % (sT0, sT0, sT1))
a('s_add_u32 %s, %s, 0x%x' % (sT0, sT0, W_SP))
a('v_lshlrev_b32 %s, 14, %s' % (vSPA, vI))
a('v_lshl_or_b32 %s, %s, 4, %s' % (vSPA, vG, vSPA))
a('v_add_u32 %s, %s, %s' % (vSPA, sT0, vSPA))
DA = 44
a('s_and_b32 %s, %s, 1' % (sT0, sW))
a('s_lshr_b32 %s, %s, 1' % (sT1, sW))
a('s_lshl3_add_u32 %s, %s, %s' % (sT0, sT0, sT1))
a('s_lshl_b32 %s, %s, 4' % (sT0, sT0))
a('v_xor_b32 %s, %s, %s' % (v(DA), sT0, vL16))
a('v_xor_b32 %s, 32, %s' % (v(DA + 1), v(DA)))
a('v_xor_b32 %s, 64, %s' % (v(DA + 2), v(DA)))
a('v_xor_b32 %s, 0x60, %s' % (v(DA + 3), v(DA)))
a('s_lshl_b32 %s, %s, 17' % (sT0, sKB))
a('s_lshl_b32 %s, %s, 12' % (sT1, sW))
a('s_add_u32 %s, %s, %s' % (sT0, sT0, sT1))
a('s_add_u32 %s, s18, %s' % (pBlo, sT0))
a('s_addc_u32 %s, s19, 0' % pBhi)
a('s_mov_b32 m0, %s' % sT1)
stamp(1)
spin(F_GO, 4, sleep=1)
stamp(2)
make_tags()
a('s_lshl2_add_u32 %s, %s, %s' % (sT0, sI15, sW))
a('s_cmp_lg_u32 %s, 1' % sT0)
a('s_cbranch_scc1 L_noinit')
a('s_lshl3_add_u32 %s, %s, %s' % (sT0, sHG, sX))
a('s_lshl_b32 %s, %s, 8' % (sT0, sT0))
a('s_add_u32 %s, %s, 0x%x' % (sT0, sT0, W_C3))
a('v_lshl_add_u32 v14, %s, 13, %s' % (vLane, sT0))
a('v_sub_u32 v15, %s, %s' % (sEp, vLane))
a('s_mov_b64 exec, 3')
a('global_store_dword v14, v15, %s sc1' % pWS)
a('s_mov_b64 exec, -1')
a.label('L_noinit')


def dma_block():
    for q in range(4):
        a('global_load_lds_dwordx4 %s, %s offset:%d nt' % (v(DA + q), pB, 1024 * q))
    a('s_add_u32 %s, %s, 0x4000' % (pBlo, pBlo))
    a('s_addc_u32 %s, %s, 0' % (pBhi, pBhi))
    a('s_add_u32 m0, m0, 0x4000')


GU = 64; WUV = 80; WD = 96; WO = 104; FA = 168
for _ in range(6):
    dma_block()
a('s_waitcnt vmcnt(8)')
if DI_AT == 6:
    flag_add(F_H0, F_DI)
else:
    flag_add(F_H0)
stamp(4)
dma_block()
if DI_AT == 7:
    flag_add(F_DI)
dma_block()
if DI_AT == 8:
    flag_add(F_DI)
a('s_setprio 0')
a('v_mov_b32 v53, 0xff')
AG = 200; AU = 204; AD = 208; AO = 209
a('s_lshr_b32 %s, %s, 1' % (sT0, sX))
a('s_lshl2_add_u32 %s, %s, %s' % (sT0, sA, sT0))
a('s_mul_i32 %s, %s, 28' % (sT3, sT0))
a('s_and_b32 %s, %s, 1' % (sT0, sX))
a('s_mul_i32 %s, %s, 12' % (sT1, sT0))
a('s_add_u32 %s, %s, %s' % (sT3, sT3, sT1))
a('s_add_u32 %s, %s, %s' % (sT3, sT3, sI15))
a('s_lshl2_add_u32 %s, %s, 12' % (sT0, sT0))
a('s_cmp_lt_u32 %s, %s' % (sI15, sT0))
a('s_cselect_b32 %s, -1, 0' % sFM)
a('s_lshr_b32 %s, %s, 3' % (sFG1, sT3))
a('s_and_b32 %s, %s, 7' % (sMS, sT3))
a('s_bitcmp1_b32 %s, 0' % sW)
a('s_cselect_b64 %s, %s, %s' % (pB, pWU, pWG))
a('s_lshr_b32 %s, %s, 1' % (sT1, sW))
a('s_lshl1_add_u32 %s, %s, %s' % (sT0, sMS, sT1))
a('s_mul_i32 %s, %s, %d' % (sT0, sT0, 32 * 3584))
a('s_lshl_b32 %s, %s, 7' % (sT1, sFG1))
a('s_add_u32 %s, %s, %s' % (sT0, sT0, sT1))
a('v_mul_u32_u24 v14, 3584, %s' % vR8)
a('v_lshl_add_u32 v14, %s, 4, v14' % vCH)
a('v_add_u32 %s, %s, v14' % (v(AG), sT0))
a('v_and_b32 %s, %s, %s' % (v(AG), sFM, v(AG)))
for t in range(1, 4):
    a('v_add_u32 %s, %d, %s' % (v(AG + t), 8 * 3584 * t, v(AG)))
a('v_lshlrev_b32 v17, 10, %s' % vG)
a('v_lshl_or_b32 v17, %s, 4, v17' % vI)
a('s_lshl_b32 %s, %s, 8' % (sT1, sW))
a('s_add_u32 %s, %s, 0x1000' % (sT1, sT1))
a('s_lshl_b32 %s, %s, 9' % (sT0, sHD))
a('s_add_u32 %s, %s, %s' % (sT0, sT0, sT1))
a('v_add_u32 v14, %s, v17' % sT0)
a('s_lshl_b32 %s, %s, 14' % (sT4, sCQ))
for p in range(8):
    a('v_add_u32 %s, %s, v14' % (v(AO + p), sT4))
    if p < 7:
        a('s_add_u32 %s, %s, 0x2000' % (sT4, sT4))
        a('s_and_b32 %s, %s, 0xe000' % (sT4, sT4))
a('s_lshl_b32 %s, %s, 13' % (sT0, sT3))
a('s_add_u32 %s, %s, %s' % (sT0, sT0, sT1))
a('v_add_u32 %s, %s, v17' % (v(AD), sT0))
a('v_and_b32 %s, %s, %s' % (v(AD), sFM, v(AD)))
a('v_or_b32 %s, 0x1000, %s' % (v(AD), v(AD)))
a('s_lshr_b32 %s, %s, 1' % (sT0, sW))
a('s_lshl_b32 %s, %s, 5' % (sT0, sT0))
a('s_lshl2_add_u32 %s, %s, %s' % (sT0, sCQ, sT0))
a('s_and_b32 %s, %s, 1' % (sT1, sW))
a('s_add_u32 %s, %s, %s' % (sT0, sT0, sT1))
a('s_lshl_b32 %s, %s, 16' % (sT0, sT0))
a('s_add_u32 %s, %s, %s' % (sT0, sT0, sHD))
a('v_add_u32 %s, %s, v16' % (v(AU), sT0))
a('v_add_u32 %s, 0x20000, %s' % (v(AU + 1), v(AU)))
a('v_add_u32 %s, 0x100000, %s' % (v(AU + 2), v(AU)))
a('v_add_u32 %s, 0x120000, %s' % (v(AU + 3), v(AU)))


def tl(kind, k):
    if kind == 'g':
        return 'global_load_dwordx4 %s, %s, %s nt' % (v(GU + 4 * k, 4), v(AG + k), pB)
    if kind == 'u':
        return 'global_load_dwordx4 %s, %s, %s nt' % (v(WUV + 4 * k, 4), v(AU + k), pWUV)
    if kind == 'd':
        return 'global_load_dwordx4 %s, %s, %s offset:%d nt' % (v(WD + 4 * k, 4), v(AD), pWD, -4096 + 4096 * k)
    return 'global_load_dwordx4 %s, %s, %s offset:%d nt' % (v(WO + 4 * k, 4), v(AO + (k >> 1)), pWO, -4096 + 4096 * (k & 1))


order = []
wo = list(range(16))
for kind, cnt, per in (('g', 4, 1), ('u', 4, 2), ('d', 2, 2)):
    for k in range(cnt):
        order.append((kind, k))
        for _ in range(per):
            order.append(('o', wo.pop(0)))
assert not wo and len(order) == 26
ntail = [0]


def issue_tail(upto):
    while ntail[0] < upto:
        W = W1 if ntail[0] < max(W1, HOLDN, SLOWN) else W2
        a('s_waitcnt vmcnt(%d)' % (W - 1))
        if ntail[0] == W1 - 1:
            flag_add(F_H1)
            stamp(5)
        if HOLDN and ntail[0] == HOLDN:
            spin(F_QL, 4, sleep=2)
        a(tl(*order[ntail[0]]))
        ntail[0] += 1


issue_tail(W1 + 2)
a('s_lshr_b32 %s, %s, 1' % (sT0, sMS))
a('s_lshl_b32 %s, %s, 9' % (sT0, sT0))
a('s_and_b32 %s, %s, 1' % (sT1, sMS))
a('s_lshl_b32 %s, %s, 5' % (sT1, sT1))
a('s_add_u32 %s, %s, %s' % (sT0, sT0, sT1))
a('s_lshr_b32 %s, %s, 1' % (sT1, sW))
a('s_lshl4_add_u32 %s, %s, %s' % (sT0, sT1, sT0))
a('s_add_u32 %s, %s, 0x%x' % (sT0, sT0, XT))
a('v_lshl_add_u32 v15, %s, 6, %s' % (vR8, sT0))
spin(F_XT, 1, reads=['ds_read_b128 v[24:27], v15'])
issue_tail(12)
for t in range(4):
    for r in range(4):
        a('v_and_b32 %s, %s, %s' % (v(FA + 4 * t + r), v(24 + t), vM[r]))
part_waddr('v32', CX)
a('s_and_b32 %s, %s, 1' % (sT0, sW))
a('s_lshr_b32 %s, %s, 1' % (sT1, sW))
a('s_lshl1_add_u32 %s, %s, %s' % (sT0, sT0, sT1))
a('s_sub_u32 %s, %s, %s' % (sT0, sT0, sW))
a('s_lshl_b32 %s, %s, 9' % (sT0, sT0))
a('v_add_u32 v33, %s, v32' % sT0)
a('v_bfe_u32 v36, %s, 2, 3' % vLane)
a('v_lshlrev_b32 v34, 5, v36')
a('v_and_b32 v35, 1, %s' % vLane)
a('v_lshl_or_b32 v34, v35, 4, v34')
a('v_bfe_u32 v35, %s, 1, 1' % vLane)
a('v_lshl_or_b32 v34, v35, 10, v34')
a('v_add_u32 v34, %s, v34' % vLB)
a('s_lshl_b32 %s, %s, 12' % (sT0, sFG1))
a('s_lshl_b32 %s, %s, 6' % (sT1, sMS))
a('s_add_u32 %s, %s, %s' % (sT0, sT0, sT1))
a('s_add_u32 %s, %s, 0x%x' % (sT0, sT0, W_FP))
a('v_lshlrev_b32 v36, 9, v36')
a('v_and_b32 %s, 3, %s' % (vFPA, vLane))
a('v_lshl_or_b32 %s, %s, 4, v36' % (vFPA, vFPA))
a('v_add_u32 %s, %s, %s' % (vFPA, sT0, vFPA))
issue_tail(16)
a('s_waitcnt vmcnt(9)')
for t in range(4):
    mfma(28, FA + 4 * t, GU + 4 * t, None if t == 0 else 28)
issue_tail(18)
a('s_mov_b64 exec, %s' % mVALID)
a('ds_write_b128 v33, v[28:31] offset:%d' % (FS - CX))
a('s_mov_b64 exec, 1')
a('ds_add_rtn_u32 %s, %s, %s offset:%d' % (vF, vLB, vOne, F_FS - LB))
a('s_mov_b64 exec, -1')
for k in range(4):
    a('ds_read_b128 %s, v34 offset:%d' % (v(36 + 4 * k, 4), FS - LB + 256 * k))
a('s_waitcnt lgkmcnt(0)')
a('v_readfirstlane_b32 %s, %s' % (sT0, vF))
a('s_cmp_lg_u32 %s, 3' % sT0)
a('s_cbranch_scc1 L_nofp')
a('s_cmp_eq_u32 %s, 0' % sFM)
a('s_cbranch_scc1 L_nofp')
pkadd(36, 36, 40); pkadd(38, 38, 42); pkadd(44, 44, 48); pkadd(46, 46, 50); pkadd(36, 36, 44); pkadd(38, 38, 46)
tag4(36, 'v53')
setexec(0xffffffff)
a('global_store_dwordx4 %s, v[36:39], %s sc1' % (vFPA, pWS))
setexec(-1)
a.label('L_nofp')
issue_tail(26)
stamp(6)
SA = 184
for k in range(16):
    a('v_mov_b32 %s, 0' % v(SA + k))
a('v_mov_b32 v52, 0')
a('s_lshl_b32 %s, %s, 7' % (sT0, sW))
a('s_add_u32 %s, %s, 0x%x' % (sT0, sT0, CL))
a('v_lshl_add_u32 v54, %s, 4, %s' % (vR8, sT0))
a('s_lshl_b32 %s, %s, 2' % (sT0, sCQ))
a('v_add_u32 v55, %s, %s' % (sT0, vI))
a('v_and_b32 v55, 15, v55')
a('v_lshl_add_u32 v55, v55, 2, %s' % vG)
a('v_lshlrev_b32 v55, 2, v55')
a('v_add_u32 v55, 0x%x, v55' % CX)
a('s_lshl_b32 %s, s2, 14' % sT0)
a('s_lshl_b32 %s, %s, 12' % (sT1, sW))
a('s_add_u32 %s, %s, %s' % (sT0, sT0, sT1))
a('s_add_u32 %s, %s, 0x%x' % (sT0, sT0, W_SP))
a('v_add_u32 v60, %s, %s' % (sT0, vL16))
a('v_and_b32 v61, 3, %s' % vLane)
a('v_lshl_add_u32 v61, %s, 2, v61' % vG)
a('v_lshlrev_b32 v61, 4, v61')
a('s_lshl_b32 %s, %s, 8' % (sT0, sW))
a('s_add_u32 %s, %s, 0x%x' % (sT0, sT0, FIN))
a('v_add_u32 v61, %s, v61' % sT0)
a('v_lshlrev_b32 v62, 2, %s' % vLane)
a('v_add_u32 v62, 0x%x, v62' % FIN)
a('s_lshl_b32 %s, s2, 4' % sT0)
a('s_and_b32 %s, %s, 0x3f0' % (sT0, sT0))
a('v_lshl_add_u32 v63, %s, 1, %s' % (vCH, sT0))
a('v_add_u32 v20, %s, v63' % vLB)
a('ds_read_u16 v21, v20 offset:%d' % (XR - LB))
a('s_mov_b32 s94, 0x000f000f')
a('s_mov_b32 s95, 0x000f000f')
a('s_waitcnt vmcnt(0)')
stamp(7)
a('s_cmp_eq_u32 %s, 0' % sFM)
a('s_cbranch_scc1 L_nof2')
a('s_lshl_b32 %s, %s, 9' % (sT0, sT3))
a('s_add_u32 %s, %s, 0x%x' % (sT0, sT0, W_FP))
a('v_and_b32 v14, 0x1f0, %s' % vL16)
a('v_add_u32 v14, %s, v14' % sT0)
Lr = a.newlabel('fhop'); Ld = a.newlabel('fhopd')
a.label(Lr)
a('global_load_dwordx4 v[36:39], v14, %s sc1' % pWS)
a('s_waitcnt vmcnt(0)')
chk4('v15', 36, True)
a('v_and_b32 v15, 0xff, v15')
a('v_cmp_ne_u32 vcc, 0, v15')
retry_tail(Lr, Ld, sleep=12)
for rr in (4, 8):
    for k in range(4):
        dppop('v_add_f32', v(36 + k), 'row_ror:%d' % rr)
for k in range(4):
    a('v_mov_b32 %s, %s' % (v(40 + k), v(36 + k)))
for k in range(4):
    a('v_permlane16_swap_b32 %s, %s' % (v(36 + k), v(40 + k)))
for k in range(4):
    a('v_add_f32 %s, %s, %s' % (v(36 + k), v(36 + k), v(40 + k)))
a('v_mov_b32_dpp v36, v37 quad_perm:[0,1,2,3] row_mask:0x2 bank_mask:0xf')
a('v_mov_b32_dpp v36, v38 quad_perm:[0,1,2,3] row_mask:0x4 bank_mask:0xf')
a('v_mov_b32_dpp v36, v39 quad_perm:[0,1,2,3] row_mask:0x8 bank_mask:0xf')
rnd_bf16('v36', 'v36')
a('v_mov_b32_dpp v37, v36 quad_perm:[2,3,2,3] row_mask:0xf bank_mask:0xf')
a('v_mul_f32 v38, v36, v36')
a('v_mov_b32 v39, 0x3d372713')
a('v_fma_f32 v38, v38, v39, 1.0')
a('v_mul_f32 v38, v38, v36')
a('v_mul_f32 v38, 0xc0135761, v38')
a('v_exp_f32 v38, v38')
a('v_add_f32 v38, 1.0, v38')
a('v_rcp_f32 v38, v38')
a('v_mul_f32 v38, v38, v36')
rnd_bf16('v38', 'v38')
a('v_mul_f32 v38, v38, v37')
a('v_cvt_pk_bf16_f32 v52, v38, v38')
a.label('L_nof2')
a('s_waitcnt vmcnt(0)')
stamp(8)
OUT = 56
for t in range(2):
    for r in range(4):
        a('v_and_b32_dpp %s, v52, %s row_newbcast:%d row_mask:0xf bank_mask:0xc' % (v(SA + 8 + 4 * t + r), vM[r], t))
mfma(OUT, SA + 8, WD, None)
mfma(OUT, SA + 12, WD + 4, OUT)
a('s_setprio 2')
spin(F_CL, 4, reads=['ds_read_b128 v[24:27], %s offset:%d' % (vLB, ML - LB), 'ds_read_b128 v[28:31], %s offset:%d' % (vLB, ML + 16 - LB)]
     + ['ds_read_b128 %s, v54 offset:%d' % (v(36 + 4 * k, 4), 512 * k) for k in range(4)], sleep=1)
stamp(9)
a('v_max3_f32 v14, v24, v25, v26')
a('v_max_f32 v14, v14, v27')
for k in range(4):
    a('v_sub_f32 %s, %s, v14' % (v(24 + k), v(24 + k)))
for k in range(4):
    a('v_exp_f32 %s, %s' % (v(24 + k), v(24 + k)))
a('v_mul_f32 v14, v24, v28')
a('v_mul_f32 v15, v25, v29')
a('v_fmac_f32 v14, v26, v30')
a('v_fmac_f32 v15, v27, v31')
a('v_add_f32 v14, v14, v15')
a('v_rcp_f32 v14, v14')
for t in range(4):
    a('v_mul_f32 %s, v24, %s' % (v(36 + t), v(36 + t)))
for k in range(1, 4):
    for t in range(4):
        a('v_fmac_f32 %s, %s, %s' % (v(36 + t), v(24 + k), v(36 + 4 * k + t)))
for t in range(4):
    a('v_mul_f32 %s, v14, %s' % (v(36 + t), v(36 + t)))
for t in range(4):
    a('v_cvt_pk_bf16_f32 %s, %s, %s' % (v(24 + t), v(36 + t), v(36 + t)))
for t in range(4):
    for r in range(4):
        a('v_and_b32 %s, %s, %s' % (v(FA + 4 * t + r), v(24 + t), vM[r]))
    if t >= 1:
        mfma(28, FA + 4 * (t - 1), WUV + 4 * (t - 1), None if t == 1 else 28)
mfma(28, FA + 12, WUV + 12, 28)
a('s_mov_b64 exec, %s' % mVALID)
a('ds_write_b128 v32, v[28:31]')
flag_add(F_CX)
spin(F_CX, 4, reads=['ds_read2st64_b32 %s, v55 offset0:%d offset1:%d' % (v(36 + 2 * k, 2), 2 * k, 2 * k + 1) for k in range(4)])
stamp(10)
sum8('v24', 36)
a('v_cvt_pk_bf16_f32 v24, v24, v24')
for t in range(16):
    s = SA + 4 * (t & 1)
    for r in range(4):
        a('v_and_b32_dpp %s, v24, %s row_newbcast:%d row_mask:0xf bank_mask:0x3' % (v(s + r), vM[r], t))
    if t >= 1:
        mfma(OUT, SA + 4 * ((t - 1) & 1), WO + 4 * (t - 1), OUT)
mfma(OUT, SA + 4, WO + 60, OUT)
tag4(OUT, 'v53')
a('global_store_dwordx4 %s, %s, %s sc1' % (vSPA, v(OUT, 4), pWS))
stamp(11)
a('s_cmp_gt_u32 s2, 63')
a('s_cbranch_scc1 L_sdone')
a('s_waitcnt vmcnt(0)')
stamp(12)
Lr = a.newlabel('fin'); Ld = a.newlabel('find')
a.label(Lr)
for k in range(4):
    a('global_load_dwordx4 %s, v60, %s offset:%d sc1' % (v(64 + 4 * k, 4), pWS, 1024 * k))
for k in range(4):
    a('s_waitcnt vmcnt(%d)' % (3 - k))
    chk4('v22', 64 + 4 * k, k == 0)
    if k == 1:
        pkadd(64, 64, 68); pkadd(66, 66, 70)
a('v_and_b32 v22, 0xff, v22')
a('v_cmp_ne_u32 vcc, 0, v22')
pkadd(72, 72, 76); pkadd(74, 74, 78); pkadd(64, 64, 72); pkadd(66, 66, 74)
retry_tail(Lr, Ld, sleep=4)
stamp(13)
for rr in (4, 8):
    for k in range(4):
        dppop('v_add_f32', v(64 + k), 'row_ror:%d' % rr)
a('s_mov_b64 exec, %s' % mT0)
a('ds_write_b128 v61, v[64:67]')
a('s_mov_b64 exec, 1')
a('ds_add_rtn_u32 %s, %s, %s offset:%d' % (vF, vLB, vOne, F_FIN - LB))
a('s_mov_b64 exec, -1')
a('ds_read2st64_b32 v[22:23], v62 offset0:0 offset1:1')
a('ds_read2st64_b32 v[24:25], v62 offset0:2 offset1:3')
a('s_waitcnt lgkmcnt(0)')
a('v_readfirstlane_b32 %s, %s' % (sT0, vF))
pkadd(22, 22, 24)
a('s_cmp_lg_u32 %s, 3' % sT0)
a('s_cbranch_scc1 L_sdone')
a('v_add_f32 v22, v22, v23')
crossrow('v_add_f32', 'v22', 'v23')
rnd_bf16('v22', 'v22')
a('v_mul_f32 v24, 0xbfb8aa3b, v22')
a('v_exp_f32 v24, v24')
a('v_add_f32 v24, 1.0, v24')
a('v_rcp_f32 v24, v24')
a('v_mul_f32 v24, v24, v22')
rnd_bf16('v24', 'v24')
a('v_lshlrev_b32 v21, 16, v21')
a('v_mul_f32_dpp v24, v24, v22 row_ror:8 row_mask:0xf bank_mask:0xf')
rnd_bf16('v24', 'v24')
a('v_add_f32 v24, v24, v21')
a('v_cvt_pk_bf16_f32 v24, v24, v24')
setexec(0xff)
a('global_store_short v63, v24, %s' % pOUT)
stamp(14)
a('s_cmp_lg_u32 s2, 0')
a('s_cbranch_scc1 L_sdone')
a('v_mov_b32 v14, 0')
a('v_mov_b32 v15, %s' % sEp)
a('s_mov_b64 exec, 1')
a('global_store_dword v14, v15, %s sc1' % pWS)
a.label('L_sdone')
dump_stamps()
a('s_endpgm')

a.label('L_front')
ROLE[0] = 'f'
common_consts()
a('s_lshl_b32 %s, %s, 9' % (sT0, sW))
a('s_add_u32 %s, %s, 0x%x' % (sT0, sT0, XT))
a('v_lshl_add_u32 v14, %s, 6, %s' % (vR8, sT0))
for k in range(4):
    a('s_add_u32 %s, %s, %d' % (sT0, sCQ, k))
    a('s_and_b32 %s, %s, 3' % (sT0, sT0))
    a('s_lshl_b32 %s, %s, 4' % (sT0, sT0))
    a('v_add_u32 %s, %s, v14' % (v(56 + k), sT0))
spin(F_XT, 1, reads=['ds_read_b128 %s, %s' % (v(XD + 4 * k, 4), v(56 + k)) for k in range(4)])
stamp(2)
make_tags()
fill = []


def run_fill(n):
    for _ in range(n):
        if fill:
            a(fill.pop(0))


part_waddr('v22', QSUM)
a('v_lshrrev_b32 v23, 3, %s' % vI)
a('v_lshl_add_u32 v23, v23, 2, %s' % vG)
a('v_lshl_add_u32 v23, v23, 3, %s' % vCH)
a('v_lshlrev_b32 v23, 2, v23')
a('v_add_u32 v23, 0x%x, v23' % QSUM)
a('v_and_b32 v14, 3, %s' % vI)
a('v_xor_b32 v20, %s, v14' % vG)
a('v_lshlrev_b32 v20, 4, v20')
a('v_lshl_or_b32 v20, v14, 7, v20')
a('v_lshrrev_b32 v14, 2, %s' % vI)
a('v_lshl_or_b32 v20, v14, 10, v20')
a('s_lshl_b32 %s, %s, 12' % (sT0, sW))
a('s_add_u32 %s, %s, 0x%x' % (sT0, sT0, QL))
a('v_add_u32 v20, %s, v20' % sT0)
a('v_xor_b32 v21, 64, v20')
TP = 208
a('s_lshl_b32 %s, %s, 2' % (sT0, sW))
a('v_add_u32 v14, %s, %s' % (sT0, vG))
a('v_mul_u32_u24 v14, 37, v14')
a('v_add_u32 v14, %s, v14' % sTag[0])
a('v_and_b32 v14, 0xff, v14')
a('v_lshl_or_b32 %s, v14, 15, v14' % v(TP))
for r in range(1, 4):
    a('v_lshrrev_b32 %s, %d, %s' % (v(TP + r), 2 * r, v(TP)))
a('v_not_b32 v14, v14')
for k in range(8):
    a('v_bfe_u32 %s, v14, %d, 1' % (v(TP + 4 + k), k))
    a('v_lshlrev_b32 %s, 16, %s' % (v(TP + 4 + k), v(TP + 4 + k)))
a('v_mov_b32 v26, 0x10001')
a('s_mov_b32 %s, 0x07060302' % sT5)
for t in range(16):
    s = AP + 4 * (t & 1)
    for r in range(4):
        a('v_and_b32 %s, %s, %s' % (v(s + r), v(XD + t), vM[r]))
    if t >= 1:
        a('s_waitcnt vmcnt(%d)' % (15 - (t - 1) + (4 if t - 1 < 4 else 0)))
        mfma(ACCQ, AP + 4 * ((t - 1) & 1), WQ + 4 * (t - 1), None if t == 1 else ACCQ)
    if t == 5:
        a('ds_read_b128 %s, v20' % v(WUK, 4))
        a('ds_read_b128 %s, v21' % v(WUK + 4, 4))
        a('ds_read_b128 %s, v21 offset:512' % v(WUK + 8, 4))
        a('ds_read_b128 %s, v20 offset:512' % v(WUK + 12, 4))
a('s_waitcnt vmcnt(0)')
mfma(ACCQ, AP + 4, WQ + 60, ACCQ)
stamp(3)
a('s_lshl2_add_u32 %s, %s, %s' % (sT0, sHG, sW))
a('s_lshl_b32 %s, %s, 13' % (sT0, sT0))
a('s_add_u32 %s, %s, 0x%x' % (sT0, sT0, W_QP + 4096))
a('v_and_b32 v27, 1, %s' % vG)
a('v_lshlrev_b32 v28, 3, v27')
a('v_lshlrev_b32 v27, 10, v27')
a('v_lshl_or_b32 v27, %s, 4, v27' % vI)
a('v_lshrrev_b32 v24, 5, %s' % vLane)
a('v_lshl_or_b32 v27, v24, 8, v27')
a('v_lshl_or_b32 v28, v24, 8, v28')
a('v_add_u32 v27, %s, v27' % sT0)
a('v_and_b32 v24, 1, %s' % vLane)
a('s_mov_b64 exec, %s' % mVALID)
a('ds_write_b128 v22, %s' % v(ACCQ, 4))
flag_add(F_QS)
spin(F_QS, 4, reads=['ds_read2st64_b32 %s, v23 offset0:%d offset1:%d' % (v(QR + 2 * k, 2), 2 * k, 2 * k + 1) for k in range(4)])
stamp(4)
sum8('v14', QR)
a('v_mov_b32_dpp v15, v14 quad_perm:[1,0,3,2] row_mask:0xf bank_mask:0xf')
a('v_cvt_pk_bf16_f32 v14, v14, v15')
for k in range(8):
    a('v_mov_b32_dpp %s, v14 row_newbcast:%d row_mask:0xf bank_mask:0xf' % (v(QB + k), 2 * k))
mfma(D2, WUK, QB, None)
mfma(D2 + 4, WUK + 8, QB, None)
mfma(D2, WUK + 4, QB + 4, D2)
mfma(D2 + 4, WUK + 12, QB + 4, D2 + 4)
a('v_mul_u32_u24 v29, 1040, %s' % vI)
a('v_add_u32 v29, v28, v29')
a('s_lshl_b32 %s, %s, 6' % (sT0, sW))
a('s_add_u32 %s, %s, 0x%x' % (sT0, sT0, QL))
a('v_add_u32 v29, %s, v29' % sT0)
TC = 244
a('v_mul_u32_u24 v14, 37, %s' % vI)
a('v_add_u32 v14, %s, v14' % sTag[0])
a('v_and_b32 v14, 0xff, v14')
a('v_lshl_or_b32 %s, v14, 15, v14' % v(TC))
for k in range(8):
    a('v_add_u32 %s, %s, %s' % (v(D2 + k), v(TP + 4 + k), v(D2 + k)))
for r in range(4):
    a('v_perm_b32 %s, %s, %s, %s' % (v(D2 + r), v(D2 + 2 * r + 1), v(D2 + 2 * r), sT5))
for r in range(4):
    a('v_bfi_b32 %s, v26, %s, %s' % (v(D2 + r), v(TP + r), v(D2 + r)))
setexec(0x0001000100010001)
a('global_store_dwordx4 v25, %s, %s sc1' % (v(D2, 4), pWS))
setexec(-1)
for r in range(1, 4):
    a('v_lshrrev_b32 %s, %d, %s' % (v(TC + r), 2 * r, v(TC)))
SEL = 248
a('v_mov_b32 v14, 0x3f803f80')
a('v_cndmask_b32 v14, 0, v14, %s' % mVALID)
for r in range(4):
    a('v_and_b32 %s, v14, %s' % (v(SEL + r), vM[r]))
stamp(5)
QF = 32; PV0 = 96; PV1 = 160; ACC = 224; SD = 16
G = 32; AF0 = PV0; AF1 = PV1
a('v_lshlrev_b32 v14, 1, %s' % vCH)
a('v_lshrrev_b32 v15, 3, %s' % vI)
a('v_or_b32 v14, v14, v15')
a('v_lshlrev_b32 v30, 10, %s' % vI)
a('v_lshl_or_b32 v30, %s, 8, v30' % vG)
a('v_lshl_or_b32 v30, v14, 4, v30')
a('s_lshl_b32 %s, %s, 14' % (sT0, sW))
a('v_add_u32 v30, %s, v30' % sT0)
for ks in range(16):
    a('v_xor_b32 %s, %d, v30' % (v(ACC + ks), ks * 16))
a('v_lshrrev_b32 v14, 2, %s' % vLane)
a('v_and_b32 v15, 7, v14')
a('v_lshlrev_b32 v15, 1, v15')
a('v_lshrrev_b32 v31, 3, v14')
a('v_or_b32 v15, v15, v31')
a('v_bfe_u32 v31, %s, 1, 1' % vLane)
a('s_lshl_b32 %s, %s, 2' % (sT0, sW))
a('v_or_b32 v31, %s, v31' % sT0)
a('v_xor_b32 v15, v15, v31')
a('v_lshlrev_b32 v14, 10, v14')
a('v_lshl_or_b32 v14, v15, 4, v14')
a('v_lshl_or_b32 v24, v24, 3, v14')
a('v_xor_b32 v25, 32, v24')
a('v_add_u32 v31, %s, %s' % (vLB, vL16))
a('s_lshl3_add_u32 %s, %s, %s' % (sT3, sHG, sX))
a('s_lshl_b32 %s, %s, 8' % (sT3, sT3))
a('s_add_u32 %s, %s, 0x%x' % (sT3, sT3, W_C3))
a('v_mov_b32 v30, %s' % sT3)
a('s_mov_b32 %s, 63' % sTodo)
spin(F_H0, 4, sleep=1)
for ks in range(16):
    a('ds_read_b128 %s, %s' % (v(AF0 + 4 * ks, 4), v(ACC + ks)))
    a('v_add_u32 %s, %s, %s' % (v(ACC + ks), sK64, v(ACC + ks)))
spin(F_DI, 4, sleep=1)
a('s_waitcnt vmcnt(0)')
stamp(6)
a.label('L_h2')
for hh in range(4):
    a('s_bitcmp0_b32 %s, %d' % (sTodo, hh))
    a('s_cbranch_scc1 L_h2i%d' % hh)
    for dh in range(2):
        a('global_load_dwordx4 %s, v27, %s offset:%d sc1' % (v(G + 16 * hh + 4 * dh, 4), pWS, hh * 2048 + dh * 512 - 4096))
    a.label('L_h2i%d' % hh)
a('s_bitcmp1_b32 %s, 4' % sTodo)
a('s_cbranch_scc1 L_h2f')
a('s_waitcnt vmcnt(0)')
a('s_branch L_h2g')
a.label('L_h2f')
a('s_bitset0_b32 %s, 4' % sTodo)
a('s_waitcnt vmcnt(7)')
a.label('L_h2g')


def try_af1(lbl):
    a('s_bitcmp0_b32 %s, 5' % sTodo)
    a('s_cbranch_scc1 %s' % lbl)
    a('ds_read_b32 %s, %s offset:%d' % (vF, vLB, F_H1 - LB))
    a('s_waitcnt lgkmcnt(0)')
    a('v_readfirstlane_b32 %s, %s' % (sT0, vF))
    a('s_cmp_lt_u32 %s, 4' % sT0)
    a('s_cbranch_scc1 %s' % lbl)
    for ks in range(16):
        a('ds_read_b128 %s, %s' % (v(AF1 + 4 * ks, 4), v(ACC + ks)))
    a('s_bitset0_b32 %s, 5' % sTodo)
    a.label(lbl)


try_af1('L_h2w')
for hh in range(4):
    a('s_bitcmp0_b32 %s, %d' % (sTodo, hh))
    a('s_cbranch_scc1 L_h2p%d' % hh)
    A_, B_, T_ = G + 16 * hh, G + 16 * hh + 4, G + 16 * hh + 8
    a('s_waitcnt vmcnt(%d)' % (7 - 2 * hh))
    mfma(T_, SEL, A_, None)
    a('s_waitcnt vmcnt(%d)' % (6 - 2 * hh))
    mfma(T_ + 4, SEL, B_, None)
    for r in range(4):
        a('v_bitop3_b32 %s, %s, %s, %s bitop3:0x7e' % (v(A_ + r), v(A_ + r), v(B_ + r), v(TC + r)))
    a('v_or3_b32 v14, %s, %s, %s' % (v(A_), v(A_ + 1), v(A_ + 2)))
    a('v_or_b32 v14, v14, %s' % v(A_ + 3))
    a('v_and_b32 v14, 0x10001, v14')
    a('v_cmp_ne_u32 vcc, 0, v14')
    for r in range(4):
        a('v_cvt_pk_bf16_f32 %s, %s, %s' % (v(B_ + r), v(T_ + 2 * r), v(T_ + 2 * r + 1)))
    a('ds_write_b64 v29, %s offset:%d' % (v(B_, 2), hh * 16))
    a('ds_write_b64 v29, %s offset:%d' % (v(B_ + 2, 2), 512 + hh * 16))
    a('s_cbranch_vccnz L_h2p%d' % hh)
    a('s_bitset0_b32 %s, %d' % (sTodo, hh))
    a.label('L_h2p%d' % hh)
a('s_and_b32 %s, %s, 15' % (sT0, sTodo))
a('s_cbranch_scc0 L_h2d')
a('s_waitcnt lgkmcnt(0)')
a('s_sleep 2')
a('s_sub_u32 %s, %s, 1' % (sBudG, sBudG))
a('s_cbranch_scc0 L_h2')
a('s_mov_b32 %s, 0' % sBudG)
a.label('L_h2d')
if STAMPS:
    a('s_sub_u32 s100, 8193, %s' % sBudG)
flag_add(F_QL)
stamp(7)
try_af1('L_h2w2')
spin(F_QL, 4)
stamp(8)
for ks in range(16):
    a('ds_read_b128 %s, v31 offset:%d' % (v(QF + 4 * ks, 4), QL - LB + ks * 1040))
a('s_bitcmp0_b32 %s, 5' % sTodo)
a('s_cbranch_scc1 L_haveaf1')
spin(F_H1, 4)
for ks in range(16):
    a('ds_read_b128 %s, %s' % (v(AF1 + 4 * ks, 4), v(ACC + ks)))
a.label('L_haveaf1')
stamp(9)
if GATE3:
    a('s_cmp_lg_u32 %s, 1' % sW)
    a('s_cbranch_scc1 L_noat')
    a('s_mov_b64 exec, 1')
    a('global_atomic_add v0, v30, %s, %s sc0 sc1' % (vOne, pWS))
    a('s_mov_b64 exec, -1')
    a.label('L_noat')


def tr_read(t, sg, tau, part):
    base = (PV0 if t == 0 else PV1) + (sg * 8 + tau) * 4 + 2 * part
    k, e = tau >> 1, tau & 1
    areg = ('v24', 'v25') if t == 0 else ('v26', 'v27')
    a('ds_read_b64_tr_b16 %s, %s offset:%d' % (v(base, 2), areg[e], (2 * sg + part) * 16384 + k * 256))


a('v_add_u32 v26, %s, v24' % sK64)
a('v_add_u32 v27, %s, v25' % sK64)


def round_scores(d):
    if MIMIC:
        for r in (0, 2):
            a('v_cvt_pk_bf16_f32 %s, %s, %s' % (v(d + r + 1), v(d + r), v(d + r + 1)))
        for r in (0, 2):
            a('v_lshlrev_b32 %s, 16, %s' % (v(d + r), v(d + r + 1)))
            a('v_and_b32 %s, 0xffff0000, %s' % (v(d + r + 1), v(d + r + 1)))
    for r in range(4):
        a('v_mul_f32 %s, 0x3db504f3, %s' % (v(d + r), v(d + r)))
    for r in (0, 2):
        a('v_cvt_pk_bf16_f32 %s, %s, %s' % (v(d + r + 1), v(d + r), v(d + r + 1)))
    for r in (0, 2):
        a('v_lshlrev_b32 %s, 16, %s' % (v(d + r), v(d + r + 1)))
        a('v_and_b32 %s, 0xffff0000, %s' % (v(d + r + 1), v(d + r + 1)))


trs = [(sg, tau, part) for sg in range(2) for tau in range(8) for part in range(2)]
fill = ['v_lshl_add_u32 v28, %s, 2, %s' % (vI, vLB),
        's_lshr_b32 %s, %s, 1' % (sT0, sW), 's_lshl_b32 %s, %s, 11' % (sT0, sT0), 's_and_b32 %s, %s, 1' % (sT1, sW),
        's_lshl3_add_u32 %s, %s, %s' % (sT0, sT1, sT0), 'v_add_u32 v29, %s, v31' % sT0, 'v_mov_b32 v15, 0x3fb8aa3b',
        'v_mul_u32_u24 v240, 80, %s' % vI, 'v_add_u32 v240, 0x%x, v240' % LS, 'v_lshl_add_u32 v241, %s, 2, v240' % vG,
        's_lshl_b32 %s, %s, 4' % (sT0, sW), 'v_add_u32 v241, %s, v241' % sT0]
for ks in range(16):
    a('s_waitcnt lgkmcnt(%d)' % (15 - ks))
    mfma(SD, AF0 + 4 * ks, QF + 4 * ks, None if ks == 0 else SD)
    run_fill(1)
assert not fill
import io
_save = a.emit
_buf = []
a.emit = lambda t: _buf.append(t)
round_scores(SD)
a('v_max3_f32 v14, %s, %s, %s' % (v(SD), v(SD + 1), v(SD + 2)))
a('v_max_f32 v14, v14, %s' % v(SD + 3))
a.emit = _save
fill = _buf
for ks in range(16):
    mfma(SD + 4, AF1 + 4 * ks, QF + 4 * ks, None if ks == 0 else SD + 4)
    tr_read(0, *trs.pop(0)); tr_read(0, *trs.pop(0))
    if ks >= 3:
        run_fill(2)
assert not fill
round_scores(SD + 4)
a('v_max3_f32 v14, v14, %s, %s' % (v(SD + 4), v(SD + 5)))
a('v_max3_f32 v14, v14, %s, %s' % (v(SD + 6), v(SD + 7)))
a('ds_max_f32 v28, v14 offset:%d' % (MX - LB))
flag_add(F_MX)
spin(F_MX, 4, reads=['ds_read_b32 v52, v28 offset:%d' % (MX - LB)])
stamp(10)
a('v_mul_f32 v14, 0xbfb8aa3b, v52')
for r in range(8):
    a('v_fma_f32 %s, %s, v15, v14' % (v(SD + r), v(SD + r)))
for r in range(8):
    a('v_exp_f32 %s, %s' % (v(SD + r), v(SD + r)))
PF = QF
for r in range(4):
    a('v_cvt_pk_bf16_f32 %s, %s, %s' % (v(48 + r), v(SD + 2 * r), v(SD + 2 * r + 1)))
a('ds_write_b64 v29, v[48:49] offset:%d' % (PL - LB))
a('ds_write_b64 v29, v[50:51] offset:%d' % (PL - LB + 1024))
sum8('v14', SD)
a('ds_write_b32 v241, v14')
flag_add(F_P)
LR = 64
spin(F_P, 4, reads=['ds_read_b128 %s, v31 offset:%d' % (v(PF + 4 * k, 4), PL - LB + 1024 * k) for k in range(4)]
     + ['ds_read_b128 %s, v240 offset:%d' % (v(LR + 4 * k, 4), 16 * k) for k in range(4)])
stamp(11)


def last_check(n):
    a('s_cmp_lg_u32 %s, 1' % sW)
    a('s_cbranch_scc1 L_nolast')
    a('s_waitcnt vmcnt(%d)' % n)
    a('v_readfirstlane_b32 %s, v0' % sT4)
    a('s_sub_u32 %s, %s, %s' % (sT4, sT4, sEp))
    a('s_cmp_lg_u32 %s, 15' % sT4)
    a('s_cbranch_scc1 L_nolast')
    a('s_add_u32 %s, %s, 0x%x' % (sT3, sT3, W_F3 - W_C3))
    a('v_mov_b32 v22, %s' % sT3)
    a('v_mov_b32 v23, %s' % sEp)
    a('s_mov_b64 exec, 1')
    a('global_store_dword v22, v23, %s sc1' % pWS)
    a('s_mov_b64 exec, -1')
    a.label('L_nolast')


if GATE3 and CHK == 0:
    last_check(0)
fill = []
for k in range(0, 8, 2):
    fill.append('v_pk_add_f32 %s, %s, %s' % (v(LR + k, 2), v(LR + k, 2), v(LR + 8 + k, 2)))
fill += ['v_pk_add_f32 %s, %s, %s' % (v(LR, 2), v(LR, 2), v(LR + 2, 2)), 'v_pk_add_f32 %s, %s, %s' % (v(LR + 4, 2), v(LR + 4, 2), v(LR + 6, 2)),
         'v_pk_add_f32 %s, %s, %s' % (v(LR, 2), v(LR, 2), v(LR + 4, 2)), 'v_add_f32 v53, %s, %s' % (v(LR), v(LR + 1)),
         'v_mov_b32 v14, 0xffff', 'v_bfi_b32 v52, v14, %s, v52' % sEp, 's_lshr_b32 %s, %s, 16' % (sT5, sEp),
         'v_mov_b32 v14, 0xfff', 'v_bfi_b32 v53, v14, %s, v53' % sT5,
         's_and_b32 %s, %s, 0x63' % (sT0, sKB), 's_and_b32 %s, %s, 3' % (sT1, sKB), 's_mul_i32 %s, %s, 7' % (sT1, sT1),
         's_add_u32 %s, %s, %s' % (sT0, sT0, sT1), 's_bfe_u32 %s, %s, 0x30002' % (sT1, sKB), 's_add_u32 %s, %s, %s' % (sT0, sT0, sT1),
         's_lshl_b32 %s, %s, 3' % (sT0, sT0), 's_lshl_b32 %s, %s, 14' % (sT1, sHG), 's_add_u32 %s, %s, %s' % (sT0, sT0, sT1),
         's_add_u32 %s, %s, 0x%x' % (sT0, sT0, W_ST), 'v_lshl_add_u32 v14, %s, 10, %s' % (vI, sT0)]
n = 0
for sg in range(2):
    for tau in range(8):
        mfma(ACC + 4 * tau, PF + 4 * (sg * 2 + 0), PV0 + (sg * 8 + tau) * 4, None if sg == 0 else ACC + 4 * tau)
        tr_read(1, sg, tau, 0); tr_read(1, sg, tau, 1)
        run_fill(3)
        n += 1
        if n == 8:
            assert not fill
            a('s_cmp_lg_u32 %s, 0' % sW)
            a('s_cbranch_scc1 L_nostat')
            setexec(0xffff)
            a('global_store_dwordx2 v14, v[52:53], %s sc1' % pWS)
            setexec(-1)
            a.label('L_nostat')
            if GATE3 and CHK == 1:
                last_check(0)
            fill = ['s_lshl_b32 %s, %s, 21' % (sT0, sHG), 's_lshl_b32 %s, %s, 15' % (sT1, sW), 's_add_u32 %s, %s, %s' % (sT0, sT0, sT1),
                    's_lshl_b32 %s, %s, 8' % (sT1, sKB), 's_add_u32 %s, %s, %s' % (sT0, sT0, sT1), 's_add_u32 %s, %s, 0x%x' % (sT0, sT0, W_OP),
                    'v_lshlrev_b32 v30, 19, %s' % vG, 'v_lshl_or_b32 v30, %s, 4, v30' % vI, 'v_add_u32 v30, %s, v30' % sT0,
                    'v_add_u32 v16, 0x20000, v30', 'v_add_u32 v17, 0x40000, v30', 'v_add_u32 v18, 0x60000, v30',
                    'v_mul_u32_u24 v56, 37, %s' % vI, 'v_add_u32 v56, %s, v56' % sTag[0], 'v_and_b32 v56, 0xff, v56', 'v_lshl_or_b32 v56, v56, 15, v56',
                    'v_lshrrev_b32 v57, 2, v56', 'v_lshrrev_b32 v58, 4, v56', 'v_lshrrev_b32 v59, 6, v56', 'v_mov_b32 v60, 0x10001',
                    's_lshl2_add_u32 %s, %s, %s' % (sT0, sH, sCQ), 's_lshl2_add_u32 %s, %s, %s' % (sT0, sT0, sW), 's_lshl_b32 %s, %s, 13' % (sT0, sT0),
                    's_add_u32 %s, %s, 0x%x' % (sT0, sT0, W_OP + 4096), 'v_add_u32 v61, %s, %s' % (sT0, vL16),
                    's_lshl2_add_u32 %s, %s, %s' % (sT0, sH, sW), 's_lshl_b32 %s, %s, 8' % (sT0, sT0), 's_add_u32 %s, %s, 0x%x' % (sT0, sT0, W_ST),
                    'v_lshl_add_u32 v62, %s, 3, %s' % (vG, vCH), 'v_lshl_add_u32 v62, v62, 3, %s' % sT0,
                    's_lshl_b32 %s, %s, 9' % (sT0, sW), 'v_add_u32 v63, %s, v31' % sT0]
for sg in range(2):
    for tau in range(8):
        idx = sg * 8 + tau
        a('s_waitcnt lgkmcnt(%d)' % min(15, 30 - 2 * idx))
        mfma(ACC + 4 * tau, PF + 4 * (sg * 2 + 1), PV1 + idx * 4, ACC + 4 * tau)
        run_fill(1)
assert not fill
OB = 64
for u in range(4):
    for r in range(4):
        a('v_cvt_pk_bf16_f32 %s, %s, %s' % (v(OB + 4 * r + u), v(ACC + 8 * u + r), v(ACC + 8 * u + 4 + r)))
    for r in range(4):
        a('v_bfi_b32 %s, v60, %s, %s' % (v(OB + 4 * r + u), v(56 + u), v(OB + 4 * r + u)))
for r, ar in enumerate(('v30', 'v16', 'v17', 'v18')):
    a('global_store_dwordx4 %s, %s, %s sc1' % (ar, v(OB + 4 * r, 4), pWS))
stamp(12)
HD_ = 96; HS = 128; HA = 136; HACC = 168
if GATE3:
    if CHK == 2:
        last_check(4)
    a('s_lshl2_add_u32 %s, %s, %s' % (sT0, sA, sW))
    a('s_lshl_b32 %s, %s, 9' % (sT0, sT0))
    a('s_add_u32 %s, %s, 0x%x' % (sT0, sT0, W_F3))
    a('v_and_b32 v19, 1, %s' % vLane)
    a('v_lshl_add_u32 v19, v19, 8, %s' % sT0)
    a('s_movk_i32 %s, 64' % sT4)
    a.label('L_f3')
    a('global_load_dword v20, v19, %s sc1' % pWS)
    a('s_waitcnt vmcnt(0)')
    a('v_cmp_ne_u32 vcc, %s, v20' % sEp)
    a('s_cbranch_vccz L_f3d')
    if PSLEEP:
        a('s_sleep %d' % PSLEEP)
    a('s_sub_u32 %s, %s, 1' % (sT4, sT4))
    a('s_cbranch_scc0 L_f3')
    a.label('L_f3d')
    if STAMPS:
        a('s_sub_u32 s101, 65, %s' % sT4)
        a('s_lshl_b32 s101, s101, 8')
        a('s_or_b32 s100, s100, s101')
else:
    a('s_waitcnt vmcnt(0)')
stamp(13)
a('s_branch L_h3')
a.label('L_st')
a('s_sleep 6')
a('s_sub_u32 %s, %s, 1' % (sBudG, sBudG))
a('s_cbranch_scc1 L_h3x')
a('global_load_dwordx2 %s, v62, %s sc1' % (v(HS, 2), pWS))
a('s_waitcnt vmcnt(0)')
a('v_xor_b32 v14, %s, %s' % (sEp, v(HS)))
a('v_xor_b32 v15, %s, %s' % (sT5, v(HS + 1)))
a('v_and_b32 v14, 0xffff, v14')
a('v_and_b32 v15, 0xfff, v15')
a('v_or_b32 v14, v14, v15')
a('v_cmp_ne_u32 vcc, 0, v14')
a('s_cbranch_vccnz L_st')
a.label('L_h3')
a('global_load_dwordx2 %s, v62, %s sc1' % (v(HS, 2), pWS))
for t in range(8):
    a('global_load_dwordx4 %s, v61, %s offset:%d sc1' % (v(HD_ + 4 * t, 4), pWS, 1024 * t - 4096))
a('s_waitcnt vmcnt(8)')
a('v_xor_b32 v26, %s, %s' % (sEp, v(HS)))
a('v_xor_b32 v15, %s, %s' % (sT5, v(HS + 1)))
a('v_and_b32 v26, 0xffff, v26')
a('v_and_b32 v15, 0xfff, v15')
a('v_or_b32 v26, v26, v15')
a('v_and_b32 v16, 0xffff0000, %s' % v(HS))
a('v_mul_f32 v16, 0x3fb8aa3b, v16')
a('v_mov_b32 v14, v16')
for r in (4, 2, 1):
    dppop('v_max_f32', 'v14', 'row_ror:%d' % r)
crossrow('v_max_f32', 'v14', 'v15')
a('v_sub_f32 v16, v16, v14')
a('v_exp_f32 v16, v16')
a('v_mov_b32 v27, 0')
a('v_cvt_pk_bf16_f32 v16, v16, v16')
a('v_and_b32 v18, 0xffff0000, v16')
a('v_mul_f32 v18, v18, %s' % v(HS + 1))
for t in range(8):
    for r in range(4):
        a('v_and_b32_dpp %s, v16, %s row_newbcast:%d row_mask:0xf bank_mask:0xf' % (v(HA + 4 * t + r), vM[r], t))
    if t < 3:
        dppop('v_add_f32', 'v18', 'row_ror:%d' % (4 >> t))
crossrow('v_add_f32', 'v18', 'v15')
a('s_lshl_b32 %s, %s, 2' % (sT0, sW))
a('v_add_u32 v15, %s, %s' % (sT0, vLB))
a('s_mov_b64 exec, 1')
a('ds_write_b32 v15, v14 offset:%d' % (ML - LB))
a('ds_write_b32 v15, v18 offset:%d' % (ML + 16 - LB))
a('s_mov_b64 exec, -1')
for t in range(8):
    a('s_waitcnt vmcnt(%d)' % (7 - t))
    mfma(HACC, HA + 4 * t, HD_ + 4 * t, None if t == 0 else HACC)
    for r in range(4):
        a('v_bitop3_b32 v27, v27, %s, %s bitop3:0xf6' % (v(HD_ + 4 * t + r), v(56 + r)))
a('v_and_or_b32 v27, v27, v60, v26')
a('v_cmp_ne_u32 vcc, 0, v27')
a('s_cbranch_vccnz L_st')
a.label('L_h3x')
setexec(0xffffffff)
a('ds_write_b128 v63, %s offset:%d' % (v(HACC, 4), CL - LB))
flag_add(F_CL)
stamp(14)
dump_stamps()
a.label('L_end')
a('s_endpgm')
a.label('L_code_end')

hdr = open('cdna_kernels/%s.s.ref' % NAME).read().split('; Override launch geometry')[0]
src = hdr + '; @launch grid=(256,1,1) block=(512,1,1) lds=%d\n' % LDS_BYTES
src += '''.amdgcn_target "amdgcn-amd-amdhsa--gfx950"
.text
.globl {n}_kernel
.p2align 8
.type {n}_kernel,@function
{n}_kernel:
'''.format(n=NAME)
src += a.text()
src += '''.section .rodata,"a"
.p2align 6
.amdhsa_kernel {n}_kernel
  .amdhsa_next_free_vgpr 256
  .amdhsa_next_free_sgpr 102
  .amdhsa_accum_offset 256
  .amdhsa_group_segment_fixed_size 0
  .amdhsa_kernarg_size 104
  .amdhsa_user_sgpr_count 2
  .amdhsa_user_sgpr_kernarg_segment_ptr 1
  .amdhsa_system_sgpr_workgroup_id_x 1
.end_amdhsa_kernel
'''.format(n=NAME)
out = [x for x in sys.argv[1:] if not x.startswith('--')]
open(out[0] if out else 'cdna_kernels/%s.s' % NAME, 'w').write(src)
print('LDS', LDS_BYTES)
```

```python
import sys
from asmlib import Asm

NAME = 'recurrent_scan__compressed_kv_cla__geglu_ffn__decode'
STAMPS = '--stamps' in sys.argv
MIMIC = True


def opt(name, default):
    for x in sys.argv:
        if x.startswith('--%s=' % name):
            return int(x.split('=')[1])
    return default


W1 = opt('w1', 4)
W2 = opt('w2', 4)
HOLD = opt('hold', 0)
WARMQP = opt('warmqp', 0)
CHK = opt('chk', 2)
DI_AT = opt('di', 8)
EARLY5 = opt('early5', 0)
REPF = opt('repf', 1)
FSLEEP = opt('fsleep', 2)
GATE5 = opt('gate5', 1)
TB = opt('tb', 1)
HOLDN = opt('holdn', 0)
TOUCH = opt('touch', 0)
SLOWN = opt('slown', 0)
PSLEEP = opt('psleep', 1)
GATE3 = opt('gate3', 1)
P0 = opt('p0', 1)
XNT = opt('xnt', 0)
GO_AT = opt('go', 8)

W_QP = 0x10000
W_ST = 0x30000
W_FP = 0x38000
W_SP = 0x60000
W_C3 = 0x1000
W_F3 = 0x3000
W_C5 = 0x5000
W_F5 = 0x7000
W_OP = 0x200000
W_STAMP = 0x800000
LB = 131072
QL = 131072
PL = 147712
XT = 151808
XR = 153856
QSUM = 154880
CX = QSUM
CL = QSUM + 2048
FS = CL + 2048
FIN = FS
LS = FS + 2048
FL = LS + 1280
F_QS, F_QL, F_H1, F_MX, F_P, F_CL, F_CX, F_FS, F_FIN, F_XT, F_GO, F_H0, F_DI, F_G3 = [FL + 4 * k for k in range(14)]
MX = FL + 64
ML = MX + 64
LDS_BYTES = ML + 32

sWave, sW, sX, sI, sA, sH, sDH, sCQ, sKB, sHG, sI15 = ['s%d' % k for k in range(3, 14)]
sT0, sT1 = 's14', 's15'
pX, pCKV, pWQ, pWUK, pWUV, pWO, pBX, pWG, pWU, pWD, pOUT, pDBG, pWS = ['s[%d:%d]' % (16 + 2 * k, 17 + 2 * k) for k in range(13)]
sT2, sT3, sT4, sT5 = 's42', 's43', 's44', 's45'
sHD = 's46'
sFG1 = 's47'
sTag = ['s48', 's49', 's50', 's51']
sEp = 's52'
sBudL, sBudG = 's53', 's54'
sK64 = 's55'
pB = 's[56:57]'; pBlo, pBhi = 's56', 's57'
pC = 's[58:59]'
mVALID = 's[92:93]'
mT0 = 's[94:95]'
sTodo = 's96'; sDum = 's97'; sEpRaw = 's98'; sMS = 's99'; sFM = 's96'
vLane, vI, vG, vR8, vCH, vL16, vLB = ['v%d' % k for k in range(1, 8)]
vM = ['v8', 'v9', 'v10', 'v11']
vOne = 'v12'
vF = 'v13'


def v(n, cnt=1):
    return 'v%d' % n if cnt == 1 else 'v[%d:%d]' % (n, n + cnt - 1)


a = Asm()


CALF = opt('calf', -1); CALS = opt('cals', -1)
ROLE = ['c']


def stamp(k):
    if (ROLE[0] == 'f' and k == CALF) or (ROLE[0] == 's' and k == CALS) or (k == 0 and max(CALF, CALS) >= 0):
        a('s_memrealtime s[60:61]')
    if STAMPS:
        a('s_memrealtime s[%d:%d]' % (60 + 2 * k, 61 + 2 * k))


def setexec(m):
    if m == -1 or m < 0x80000000:
        a('s_mov_b64 exec, %s' % (hex(m) if m > 64 else str(m)))
    else:
        a('s_mov_b32 exec_lo, 0x%x' % (m & 0xffffffff))
        a('s_mov_b32 exec_hi, 0x%x' % (m >> 32))


def flag_add(*flags):
    a('s_mov_b64 exec, 1')
    for f in flags:
        a('ds_add_u32 %s, %s offset:%d' % (vLB, vOne, f - LB))
    a('s_mov_b64 exec, -1')


def spin(flag, target, reads=(), sleep=0):
    L = a.newlabel('spin'); D = a.newlabel('spind')
    a.label(L)
    a('ds_read_b32 %s, %s offset:%d' % (vF, vLB, flag - LB))
    for r in reads:
        a(r)
    a('s_waitcnt lgkmcnt(0)')
    a('v_readfirstlane_b32 %s, %s' % (sT0, vF))
    a('s_cmp_ge_u32 %s, %d' % (sT0, target))
    a('s_cbranch_scc1 %s' % D)
    if sleep:
        a('s_sleep %d' % sleep)
    a('s_sub_u32 %s, %s, 1' % (sBudL, sBudL))
    a('s_cbranch_scc0 %s' % L)
    a('s_mov_b32 %s, 0' % sBudL)
    a.label(D)


def retry_tail(L, D, sleep=2):
    a('s_cbranch_vccz %s' % D)
    if sleep:
        a('s_sleep %d' % sleep)
    a('s_sub_u32 %s, %s, 1' % (sBudG, sBudG))
    a('s_cbranch_scc0 %s' % L)
    a('s_mov_b32 %s, 0' % sBudG)
    a.label(D)


def dppop(op, x, ctl):
    a('%s_dpp %s, %s, %s %s row_mask:0xf bank_mask:0xf' % (op, x, x, x, ctl))


def crossrow(op, x, t):
    a('v_mov_b32 %s, %s' % (t, x))
    a('v_permlane16_swap_b32 %s, %s' % (x, t))
    a('%s %s, %s, %s' % (op, x, x, t))
    a('v_mov_b32 %s, %s' % (t, x))
    a('v_permlane32_swap_b32 %s, %s' % (x, t))
    a('%s %s, %s, %s' % (op, x, x, t))


def allreduce(op, x, t):
    for r in (8, 4, 2, 1):
        dppop(op, x, 'row_ror:%d' % r)
    crossrow(op, x, t)


def rnd_bf16(dst, src):
    a('v_cvt_pk_bf16_f32 %s, %s, %s' % (dst, src, src))
    a('v_and_b32 %s, 0xffff0000, %s' % (dst, dst))


def mfma(d, A, B, c=None):
    a('v_mfma_f32_16x16x32_bf16 %s, %s, %s, %s' % (v(d, 4), v(A, 4), v(B, 4), '0' if c is None else v(c, 4)))


def pkadd(d, x, y):
    a('v_pk_add_f32 %s, %s, %s' % (v(d, 2), v(x, 2), v(y, 2)))


def sum8(d, b):
    pkadd(b, b, b + 2); pkadd(b + 4, b + 4, b + 6); pkadd(b, b, b + 4)
    a('v_add_f32 %s, %s, %s' % (d, v(b), v(b + 1)))


def common_consts():
    a('v_and_b32 v14, 1, %s' % vCH)
    a('v_lshlrev_b32 v14, 4, v14')
    a('v_mov_b32 v15, 0xffff')
    a('v_lshlrev_b32 v14, v14, v15')
    a('v_lshrrev_b32 v15, 1, %s' % vCH)
    a('v_cmp_eq_u32 vcc, 0, v15')
    a('v_cmp_eq_u32 s[92:93], 1, v15')
    a('v_cmp_eq_u32 s[94:95], 2, v15')
    a('v_cndmask_b32 %s, 0, v14, vcc' % vM[0])
    a('v_cmp_eq_u32 vcc, 3, v15')
    a('v_cndmask_b32 %s, 0, v14, s[92:93]' % vM[1])
    a('v_cndmask_b32 %s, 0, v14, s[94:95]' % vM[2])
    a('v_cndmask_b32 %s, 0, v14, vcc' % vM[3])
    a('s_mov_b32 s92, 0x00ff00ff')
    a('s_mov_b32 s93, 0xff00ff00')


def part_waddr(dst, base):
    a('v_and_b32 %s, 1, %s' % (dst, vG))
    a('v_lshlrev_b32 %s, 4, %s' % (dst, dst))
    a('v_lshl_or_b32 %s, %s, 5, %s' % (dst, vCH, dst))
    a('v_lshrrev_b32 v15, 5, %s' % vLane)
    a('v_lshl_or_b32 %s, v15, 8, %s' % (dst, dst))
    a('s_lshl_b32 %s, %s, 9' % (sT0, sW))
    a('s_add_u32 %s, %s, 0x%x' % (sT0, sT0, base))
    a('v_add_u32 %s, %s, %s' % (dst, sT0, dst))


def make_tags():
    a('s_add_u32 %s, %s, 0x01010101' % (sEp, sEpRaw))
    a('s_cmp_eq_u32 %s, 0' % sEp)
    a('s_cselect_b32 %s, 0x01010101, %s' % (sEp, sEp))
    a('s_and_b32 %s, %s, 0xff' % (sTag[0], sEp))
    a('s_bfe_u32 %s, %s, 0x80008' % (sTag[1], sEp))
    a('s_bfe_u32 %s, %s, 0x80010' % (sTag[2], sEp))
    a('s_lshr_b32 %s, %s, 24' % (sTag[3], sEp))


def tag4(b, vmask):
    for r in range(4):
        a('v_bfi_b32 %s, %s, %s, %s' % (v(b + r), vmask, sTag[r], v(b + r)))


def chk4(acc, b, first=False):
    for r in range(4):
        if first and r == 0:
            a('v_xor_b32 %s, %s, %s' % (acc, sTag[0], v(b)))
        else:
            a('v_bitop3_b32 %s, %s, %s, %s bitop3:0xf6' % (acc, acc, v(b + r), sTag[r]))


def reprefetch(rot):
    if not REPF:
        return
    a('s_lshl3_add_u32 %s, %s, %s' % (sT0, sI, sWave))
    a('s_add_u32 %s, %s, %d' % (sT0, sT0, rot))
    a('s_and_b32 %s, %s, 255' % (sT0, sT0))
    a('s_lshl_b32 %s, %s, 6' % (sT0, sT0))
    a('s_min_u32 %s, %s, L_code_end-L_pc-4' % (sT0, sT0))
    a('s_load_dword %s, %s, %s' % (sDum, pC, sT0))


def dump_stamps():
    if (ROLE[0] == 'f' and CALF >= 0) or (ROLE[0] == 's' and CALS >= 0):
        L = a.newlabel('cal')
        a('s_waitcnt lgkmcnt(0)')
        a('s_add_u32 s62, s60, 3000')
        a.label(L)
        a('s_memrealtime s[64:65]')
        a('s_waitcnt lgkmcnt(0)')
        a('s_sub_u32 s63, s64, s62')
        a('s_cmp_lt_i32 s63, 0')
        a('s_cbranch_scc1 %s' % L)
    if not STAMPS:
        return
    a('s_waitcnt lgkmcnt(0)')
    a('s_mov_b32 s90, s100')
    a('s_mov_b64 exec, -1')
    a('v_mov_b32 v14, 0')
    for k in range(16):
        a('v_writelane_b32 v14, s%d, %d' % (60 + 2 * k, k))
    a('s_lshl_b32 %s, s2, 3' % sT0)
    a('s_add_u32 %s, %s, %s' % (sT0, sT0, sWave))
    a('s_lshl_b32 %s, %s, 6' % (sT0, sT0))
    a('s_add_u32 %s, %s, 0x%x' % (sT0, sT0, W_STAMP))
    a('v_lshl_add_u32 v15, %s, 2, %s' % (vLane, sT0))
    a('s_mov_b64 exec, 0xffff')
    a('global_store_dword v15, v14, %s' % pWS)


X4 = 52
a('s_cmpk_gt_u32 s2, 255')
a('s_cbranch_scc1 L_end')
a('s_load_dwordx16 s[16:31], s[0:1], 0')
a('s_load_dwordx8 s[32:39], s[0:1], 64')
a('s_load_dwordx2 s[40:41], s[0:1], 96')
stamp(0)
if STAMPS:
    a('s_mov_b32 s100, 0')
    for k in range(1, 16):
        a('s_mov_b32 s%d, 0' % (60 + 2 * k))
a('v_lshrrev_b32 v14, 6, v0')
a('v_and_b32 %s, 63, v0' % vLane)
a('v_readfirstlane_b32 %s, v14' % sWave)
a('v_mov_b32 %s, 0x%x' % (vLB, LB))
a('v_and_b32 %s, 15, %s' % (vI, vLane))
a('v_mov_b32 v44, 0')
a('v_mov_b32 v45, 0xff800000')
a('v_lshl_add_u32 v49, %s, 2, %s' % (vI, vLB))
a('ds_write_b32 v49, v44 offset:%d' % (FL - LB))
a('ds_write_b32 v49, v45 offset:%d' % (MX - LB))
a('s_and_b32 %s, s2, 7' % sX)
a('s_lshr_b32 %s, s2, 3' % sI)
a('s_lshr_b32 %s, s2, 7' % sA)
a('s_bfe_u32 %s, s2, 0x10006' % sT0)
a('s_lshl1_add_u32 %s, %s, %s' % (sT0, sX, sT0))
a('s_lshl4_add_u32 %s, %s, %s' % (sH, sA, sT0))
a('s_bfe_u32 %s, s2, 0x10005' % sDH)
a('s_lshl1_add_u32 %s, %s, %s' % (sHD, sH, sDH))
a('s_lshl_b32 %s, %s, 7' % (sHD, sHD))
a('s_and_b32 %s, %s, 3' % (sW, sWave))
a('v_lshrrev_b32 %s, 3, %s' % (vR8, vLane))
a('v_and_b32 %s, 7, %s' % (vCH, vLane))
a('v_lshlrev_b32 v16, 13, %s' % vR8)
a('v_lshl_or_b32 v16, %s, 4, v16' % vCH)
a('v_lshlrev_b32 %s, 4, %s' % (vL16, vLane))
a('s_mov_b32 %s, 0x10000' % sK64)
a('s_and_b32 %s, %s, 3' % (sCQ, sI))
a('s_lshl_b32 %s, %s, 20' % (sT0, sW))
a('s_add_u32 %s, %s, %s' % (sT0, sT0, sHD))
a('v_add_u32 v17, %s, v16' % sT0)
a('s_lshl_b32 %s, %s, 18' % (sT2, sCQ))
a('v_add_u32 v18, %s, v17' % sT2)
a('v_lshrrev_b32 %s, 4, %s' % (vG, vLane))
a('v_mov_b32 %s, 1' % vOne)
a('s_and_b32 %s, %s, 15' % (sI15, sI))
a('s_lshl_b32 %s, %s, 2' % (sKB, sA))
a('s_xor_b32 %s, %s, %s' % (sKB, sKB, sI15))
a('s_lshl4_add_u32 %s, %s, %s' % (sKB, sX, sKB))
a('s_xor_b32 %s, %s, 1' % (sHG, sA))
a('s_mov_b32 %s, 0x200000' % sBudL)
a('s_movk_i32 %s, 8192' % sBudG)
a('s_getpc_b64 %s' % pC)
a.label('L_pc')
a('s_lshl3_add_u32 %s, %s, %s' % (sT3, sI, sWave))
a('s_lshl_b32 %s, %s, 6' % (sT3, sT3))
a('s_min_u32 %s, %s, L_code_end-L_pc-4' % (sT3, sT3))
a('s_cmp_lg_u32 %s, 0' % sWave)
a('s_waitcnt lgkmcnt(0)')
a('s_cbranch_scc1 L_nox')
a('global_load_dwordx4 %s, %s, %s%s' % (v(X4, 4), vL16, pX, ' nt' if XNT else ''))
a.label('L_nox')
WSMB = opt('wsmb', 0)
if WSMB:
    a('s_add_u32 s40, s40, 0x%x' % (WSMB << 20))
    a('s_addc_u32 s41, s41, 0')
a('s_load_dword %s, %s, 0' % (sEpRaw, pWS))
a('s_load_dword %s, %s, %s' % (sDum, pC, sT3))
a('s_barrier')
a('s_cmp_lt_u32 %s, 4' % sWave)
a('s_cbranch_scc1 L_stream')

ROLE[0] = 'f'
WQ = 64; WUK = 128; XD = 144; AP = 160; ACCQ = 168; QR = 172; QB = 188; D2 = 196
a('s_setprio 3')
for t in range(16):
    if t % 4 == 0 and t:
        a('v_add_u32 v18, %s, v17' % sT2)
    a('global_load_dwordx4 %s, v18, %s nt' % (v(WQ + 4 * t, 4), pWQ))
    if t % 4 != 3:
        a('v_add_u32 v18, %s, v18' % sK64)
    elif t < 15:
        a('s_add_u32 %s, %s, 0x40000' % (sT2, sT2))
        a('s_and_b32 %s, %s, 0xc0000' % (sT2, sT2))
    if t == 3:
        a('s_lshl2_add_u32 %s, %s, %s' % (sT1, sCQ, sW))
        a('s_lshl_b32 %s, %s, 18' % (sT1, sT1))
        a('s_add_u32 %s, %s, %s' % (sT1, sT1, sHD))
        a('v_lshlrev_b32 v19, 4, %s' % vR8)
        a('v_xor_b32 v19, v19, v16')
        a('v_add_u32 v19, %s, v19' % sT1)
        a('s_lshl_b32 %s, %s, 12' % (sT1, sW))
        a('s_add_u32 m0, %s, 0x%x' % (sT1, QL))
        for k in range(4):
            a('global_load_lds_dwordx4 v19, %s offset:%d nt' % (pWUK, 1024 * k))
            if k < 3:
                a('v_add_u32 v19, %d, v19' % (65536 - 1024))
    if t == GO_AT - 1:
        flag_add(F_GO)
    if t == 3:
        a('s_lshl_b32 %s, %s, 3' % (sT0, sHD))
        a('s_lshl2_add_u32 %s, %s, %s' % (sT1, sCQ, sW))
        a('s_lshl_b32 %s, %s, 6' % (sT1, sT1))
        a('s_add_u32 %s, %s, %s' % (sT0, sT0, sT1))
        a('s_add_u32 %s, %s, 0x%x' % (sT0, sT0, W_QP))
        a('v_lshl_add_u32 v25, %s, 4, %s' % (vG, sT0))
stamp(1)
a('s_branch L_front')

a.label('L_stream')
ROLE[0] = 's'
XF = 24
vSPA = 'v18'; vFPA = 'v19'
a('s_cmp_lg_u32 %s, 0' % sW)
a('s_cbranch_scc1 L_sprep')
a('s_setprio 3')
a('v_add_u32 v48, %s, %s' % (vLB, vL16))
a('v_lshlrev_b32 v35, 9, %s' % vG)
a('v_add_u32 v35, v49, v35')
a('s_waitcnt vmcnt(0)')
stamp(3)
for k in range(4):
    a('v_lshlrev_b32 %s, 16, %s' % (v(XF + 2 * k), v(X4 + k)))
    a('v_and_b32 %s, 0xffff0000, %s' % (v(XF + 2 * k + 1), v(X4 + k)))
pkadd(32, XF, XF + 2); pkadd(36, XF + 4, XF + 6); pkadd(32, 32, 36)
a('v_add_f32 v32, v32, v33')
a('ds_write_b128 v48, %s offset:%d' % (v(X4, 4), XR - LB))
allreduce('v_add_f32', 'v32', 'v33')
a('v_mul_f32 v32, 0x3b000000, v32')
for k in range(8):
    a('v_sub_f32 %s, %s, v32' % (v(36 + k), v(XF + k)))
rnd_bf16('v32', 'v32')
a('v_mul_f32 v34, v36, v36')
a('v_mul_f32 v33, v37, v37')
for k in range(2, 8, 2):
    a('v_fmac_f32 v34, %s, %s' % (v(36 + k), v(36 + k)))
    a('v_fmac_f32 v33, %s, %s' % (v(37 + k), v(37 + k)))
a('v_add_f32 v34, v34, v33')
fill = []
for k in range(8):
    fill.append('v_sub_f32 %s, %s, v32' % (v(XF + k), v(XF + k)))
for k in range(0, 8, 2):
    fill.append('v_cvt_pk_bf16_f32 %s, %s, %s' % (v(XF + k + 1), v(XF + k), v(XF + k + 1)))
for k in range(0, 8, 2):
    fill.append('v_lshlrev_b32 %s, 16, %s' % (v(XF + k), v(XF + k + 1)))
    fill.append('v_and_b32 %s, 0xffff0000, %s' % (v(XF + k + 1), v(XF + k + 1)))
for r in (8, 4, 2, 1):
    a(fill.pop(0)); a(fill.pop(0))
    dppop('v_add_f32', 'v34', 'row_ror:%d' % r)
a('v_mov_b32 v33, v34')
a(fill.pop(0)); a(fill.pop(0))
a('v_permlane16_swap_b32 v34, v33')
a('v_add_f32 v34, v34, v33')
a('v_mov_b32 v33, v34')
a(fill.pop(0)); a(fill.pop(0))
a('v_permlane32_swap_b32 v34, v33')
a('v_add_f32 v34, v34, v33')
a('v_mul_f32 v34, 0x3b000000, v34')
rnd_bf16('v34', 'v34')
a('v_add_f32 v34, 0x3727c5ac, v34')
rnd_bf16('v34', 'v34')
a('v_sqrt_f32 v34, v34')
a(fill.pop(0)); a(fill.pop(0))
rnd_bf16('v34', 'v34')
a('v_rcp_f32 v34, v34')
while fill:
    a(fill.pop(0))
for k in range(8):
    a('v_mul_f32 %s, %s, v34' % (v(XF + k), v(XF + k)))
for k in range(8):
    a('v_cvt_pk_bf16_f32 %s, %s, %s' % (v(XF + k), v(XF + k), v(XF + k)))
    a('ds_write_b32 v35, %s offset:%d' % (v(XF + k), XT - LB + 64 * k))
flag_add(F_XT)
a('s_setprio %d' % P0)
a('s_branch L_sprep2')
a.label('L_sprep')
if TOUCH:
    a('s_mov_b32 %s, 0x200000' % sT0)
    a('s_lshl_b32 %s, %s, 9' % (sT1, sHD))
    a('s_mov_b32 %s, 0x400000' % sT4)
    a('s_lshl_b32 %s, %s, 17' % (sT5, sKB))
    a('s_load_dword %s, %s, %s' % (sDum, pCKV, sT5))
    for p in (pWG, pWU, pWUV, pWD, pOUT):
        a('s_load_dword %s, %s, 0' % (sDum, p))
    a('s_load_dword %s, %s, %s' % (sDum, pWUV, sT0))
    a('s_load_dword %s, %s, %s' % (sDum, pWO, sT1))
    a('s_load_dword %s, %s, %s' % (sDum, pWS, sT0))
    a('s_load_dword %s, %s, %s' % (sDum, pWS, sT4))
a.label('L_sprep2')
common_consts()
a('s_lshl_b32 %s, %s, 18' % (sT0, sW))
a('s_lshl_b32 %s, s2, 6' % sT1)
a('s_add_u32 %s, %s, %s' % (sT0, sT0, sT1))
a('s_add_u32 %s, %s, 0x%x' % (sT0, sT0, W_SP))
a('v_lshlrev_b32 %s, 14, %s' % (vSPA, vI))
a('v_lshl_or_b32 %s, %s, 4, %s' % (vSPA, vG, vSPA))
a('v_add_u32 %s, %s, %s' % (vSPA, sT0, vSPA))
DA = 44
a('s_and_b32 %s, %s, 1' % (sT0, sW))
a('s_lshr_b32 %s, %s, 1' % (sT1, sW))
a('s_lshl3_add_u32 %s, %s, %s' % (sT0, sT0, sT1))
a('s_lshl_b32 %s, %s, 4' % (sT0, sT0))
a('v_xor_b32 %s, %s, %s' % (v(DA), sT0, vL16))
a('v_xor_b32 %s, 32, %s' % (v(DA + 1), v(DA)))
a('v_xor_b32 %s, 64, %s' % (v(DA + 2), v(DA)))
a('v_xor_b32 %s, 0x60, %s' % (v(DA + 3), v(DA)))
a('s_lshl_b32 %s, %s, 17' % (sT0, sKB))
a('s_lshl_b32 %s, %s, 12' % (sT1, sW))
a('s_add_u32 %s, %s, %s' % (sT0, sT0, sT1))
a('s_add_u32 %s, s18, %s' % (pBlo, sT0))
a('s_addc_u32 %s, s19, 0' % pBhi)
a('s_mov_b32 m0, %s' % sT1)
stamp(1)
spin(F_GO, 4, sleep=1)
stamp(2)
make_tags()
a('s_lshl2_add_u32 %s, %s, %s' % (sT0, sI15, sW))
a('s_cmp_lg_u32 %s, 1' % sT0)
a('s_cbranch_scc1 L_noinit')
a('s_lshl3_add_u32 %s, %s, %s' % (sT0, sHG, sX))
a('s_lshl_b32 %s, %s, 8' % (sT0, sT0))
a('s_add_u32 %s, %s, 0x%x' % (sT0, sT0, W_C3))
a('v_lshl_add_u32 v14, %s, 13, %s' % (vLane, sT0))
a('v_and_b32 v15, 1, %s' % vLane)
a('v_sub_u32 v15, %s, v15' % sEp)
a('s_mov_b64 exec, 15')
a('global_store_dword v14, v15, %s sc1' % pWS)
a('s_mov_b64 exec, -1')
a.label('L_noinit')


def dma_block():
    for q in range(4):
        a('global_load_lds_dwordx4 %s, %s offset:%d nt' % (v(DA + q), pB, 1024 * q))
    a('s_add_u32 %s, %s, 0x4000' % (pBlo, pBlo))
    a('s_addc_u32 %s, %s, 0' % (pBhi, pBhi))
    a('s_add_u32 m0, m0, 0x4000')


GU = 64; WUV = 80; WD = 96; WO = 104; FA = 168
for _ in range(6):
    dma_block()
a('s_waitcnt vmcnt(8)')
if DI_AT == 6:
    flag_add(F_H0, F_DI)
else:
    flag_add(F_H0)
stamp(4)
reprefetch(96)
dma_block()
if DI_AT == 7:
    flag_add(F_DI)
dma_block()
if DI_AT == 8:
    flag_add(F_DI)
a('s_setprio 0')
a('v_mov_b32 v53, 0xff')
AG = 200; AU = 204; AD = 208; AO = 209
a('s_lshr_b32 %s, %s, 1' % (sT0, sX))
a('s_lshl2_add_u32 %s, %s, %s' % (sT0, sA, sT0))
a('s_mul_i32 %s, %s, 28' % (sT3, sT0))
a('s_and_b32 %s, %s, 1' % (sT0, sX))
a('s_mul_i32 %s, %s, 12' % (sT1, sT0))
a('s_add_u32 %s, %s, %s' % (sT3, sT3, sT1))
a('s_add_u32 %s, %s, %s' % (sT3, sT3, sI15))
a('s_lshl2_add_u32 %s, %s, 12' % (sT0, sT0))
a('s_cmp_lt_u32 %s, %s' % (sI15, sT0))
a('s_cselect_b32 %s, -1, 0' % sFM)
a('s_lshr_b32 %s, %s, 3' % (sFG1, sT3))
a('s_and_b32 %s, %s, 7' % (sMS, sT3))
a('s_bitcmp1_b32 %s, 0' % sW)
a('s_cselect_b64 %s, %s, %s' % (pB, pWU, pWG))
a('s_lshr_b32 %s, %s, 1' % (sT1, sW))
a('s_lshl1_add_u32 %s, %s, %s' % (sT0, sMS, sT1))
a('s_mul_i32 %s, %s, %d' % (sT0, sT0, 32 * 3584))
a('s_lshl_b32 %s, %s, 7' % (sT1, sFG1))
a('s_add_u32 %s, %s, %s' % (sT0, sT0, sT1))
a('v_mul_u32_u24 v14, 3584, %s' % vR8)
a('v_lshl_add_u32 v14, %s, 4, v14' % vCH)
a('v_add_u32 %s, %s, v14' % (v(AG), sT0))
a('v_and_b32 %s, %s, %s' % (v(AG), sFM, v(AG)))
for t in range(1, 4):
    a('v_add_u32 %s, %d, %s' % (v(AG + t), 8 * 3584 * t, v(AG)))
a('v_lshlrev_b32 v17, 10, %s' % vG)
a('v_lshl_or_b32 v17, %s, 4, v17' % vI)
a('s_lshl_b32 %s, %s, 8' % (sT1, sW))
a('s_add_u32 %s, %s, 0x1000' % (sT1, sT1))
a('s_lshl_b32 %s, %s, 9' % (sT0, sHD))
a('s_add_u32 %s, %s, %s' % (sT0, sT0, sT1))
a('v_add_u32 v14, %s, v17' % sT0)
a('s_lshl_b32 %s, %s, 14' % (sT4, sCQ))
for p in range(8):
    a('v_add_u32 %s, %s, v14' % (v(AO + p), sT4))
    if p < 7:
        a('s_add_u32 %s, %s, 0x2000' % (sT4, sT4))
        a('s_and_b32 %s, %s, 0xe000' % (sT4, sT4))
a('s_lshl_b32 %s, %s, 13' % (sT0, sT3))
a('s_add_u32 %s, %s, %s' % (sT0, sT0, sT1))
a('v_add_u32 %s, %s, v17' % (v(AD), sT0))
a('v_and_b32 %s, %s, %s' % (v(AD), sFM, v(AD)))
a('v_or_b32 %s, 0x1000, %s' % (v(AD), v(AD)))
a('s_lshr_b32 %s, %s, 1' % (sT0, sW))
a('s_lshl_b32 %s, %s, 5' % (sT0, sT0))
a('s_lshl2_add_u32 %s, %s, %s' % (sT0, sCQ, sT0))
a('s_and_b32 %s, %s, 1' % (sT1, sW))
a('s_add_u32 %s, %s, %s' % (sT0, sT0, sT1))
a('s_lshl_b32 %s, %s, 16' % (sT0, sT0))
a('s_add_u32 %s, %s, %s' % (sT0, sT0, sHD))
a('v_add_u32 %s, %s, v16' % (v(AU), sT0))
a('v_add_u32 %s, 0x20000, %s' % (v(AU + 1), v(AU)))
a('v_add_u32 %s, 0x100000, %s' % (v(AU + 2), v(AU)))
a('v_add_u32 %s, 0x120000, %s' % (v(AU + 3), v(AU)))


def tl(kind, k):
    if kind == 'g':
        return 'global_load_dwordx4 %s, %s, %s nt' % (v(GU + 4 * k, 4), v(AG + k), pB)
    if kind == 'u':
        return 'global_load_dwordx4 %s, %s, %s nt' % (v(WUV + 4 * k, 4), v(AU + k), pWUV)
    if kind == 'd':
        return 'global_load_dwordx4 %s, %s, %s offset:%d nt' % (v(WD + 4 * k, 4), v(AD), pWD, -4096 + 4096 * k)
    return 'global_load_dwordx4 %s, %s, %s offset:%d nt' % (v(WO + 4 * k, 4), v(AO + (k >> 1)), pWO, -4096 + 4096 * (k & 1))


order = []
wo = list(range(16))
if TB:
    for k in range(4):
        order += [('g', k), ('o', wo.pop(0))]
    order += [('u', k) for k in range(4)] + [('d', 0), ('d', 1)] + [('o', k) for k in wo]
    NTA = opt('nta', 14)
else:
    for kind, cnt, per in (('g', 4, 1), ('u', 4, 2), ('d', 2, 2)):
        for k in range(cnt):
            order.append((kind, k))
            for _ in range(per):
                order.append(('o', wo.pop(0)))
    NTA = 26
assert len(order) == 26
ntail = [0]


def issue_tail(upto, lim=True):
    while ntail[0] < (min(upto, NTA) if lim else upto):
        W = W1 if ntail[0] < max(W1, HOLDN, SLOWN) else W2
        if lim:
            a('s_waitcnt vmcnt(%d)' % (W - 1))
        if ntail[0] == W1 - 1:
            flag_add(*((F_H1, F_DI) if DI_AT == 9 else (F_H1,)))
            stamp(5)
        if HOLDN and ntail[0] == HOLDN:
            spin(F_QL, 4, sleep=2)
        a(tl(*order[ntail[0]]))
        ntail[0] += 1


ADAPT = opt('adapt', 1)
if ADAPT:
    issue_tail(W1)
    k0 = ntail[0]
    for k in range(k0, NTA):
        a('ds_read_b32 %s, %s offset:%d' % (vF, vLB, F_QL - LB))
        a('s_waitcnt lgkmcnt(0)')
        a('v_readfirstlane_b32 %s, %s' % (sT0, vF))
        a('s_cmp_ge_u32 %s, 4' % sT0)
        a('s_cbranch_scc1 L_u%d' % k)
        a('s_waitcnt vmcnt(%d)' % (W1 - 1))
        a(tl(*order[k]))
    a('s_branch L_ud')
    for k in range(k0, NTA):
        a.label('L_u%d' % k)
        a(tl(*order[k]))
    a.label('L_ud')
    ntail[0] = NTA
else:
    issue_tail(W1 + 2)
a('s_lshr_b32 %s, %s, 1' % (sT0, sMS))
a('s_lshl_b32 %s, %s, 9' % (sT0, sT0))
a('s_and_b32 %s, %s, 1' % (sT1, sMS))
a('s_lshl_b32 %s, %s, 5' % (sT1, sT1))
a('s_add_u32 %s, %s, %s' % (sT0, sT0, sT1))
a('s_lshr_b32 %s, %s, 1' % (sT1, sW))
a('s_lshl4_add_u32 %s, %s, %s' % (sT0, sT1, sT0))
a('s_add_u32 %s, %s, 0x%x' % (sT0, sT0, XT))
a('v_lshl_add_u32 v15, %s, 6, %s' % (vR8, sT0))
spin(F_XT, 1, reads=['ds_read_b128 v[24:27], v15'])
issue_tail(8)
for t in range(4):
    for r in range(4):
        a('v_and_b32 %s, %s, %s' % (v(FA + 4 * t + r), v(24 + t), vM[r]))
part_waddr('v32', CX)
a('s_and_b32 %s, %s, 1' % (sT0, sW))
a('s_lshr_b32 %s, %s, 1' % (sT1, sW))
a('s_lshl1_add_u32 %s, %s, %s' % (sT0, sT0, sT1))
a('s_sub_u32 %s, %s, %s' % (sT0, sT0, sW))
a('s_lshl_b32 %s, %s, 9' % (sT0, sT0))
a('v_add_u32 v33, %s, v32' % sT0)
a('v_bfe_u32 v36, %s, 2, 3' % vLane)
a('v_lshlrev_b32 v34, 5, v36')
a('v_and_b32 v35, 1, %s' % vLane)
a('v_lshl_or_b32 v34, v35, 4, v34')
a('v_bfe_u32 v35, %s, 1, 1' % vLane)
a('v_lshl_or_b32 v34, v35, 10, v34')
a('v_add_u32 v34, %s, v34' % vLB)
a('s_lshl_b32 %s, %s, 12' % (sT0, sFG1))
a('s_lshl_b32 %s, %s, 6' % (sT1, sMS))
a('s_add_u32 %s, %s, %s' % (sT0, sT0, sT1))
a('s_add_u32 %s, %s, 0x%x' % (sT0, sT0, W_FP))
a('v_lshlrev_b32 v36, 9, v36')
a('v_and_b32 %s, 3, %s' % (vFPA, vLane))
a('v_lshl_or_b32 %s, %s, 4, v36' % (vFPA, vFPA))
a('v_add_u32 %s, %s, %s' % (vFPA, sT0, vFPA))
issue_tail(10)
a('s_waitcnt vmcnt(%d)' % (ntail[0] - 7))
for t in range(4):
    mfma(28, FA + 4 * t, GU + 4 * t, None if t == 0 else 28)
issue_tail(11)
a('s_mov_b64 exec, %s' % mVALID)
a('ds_write_b128 v33, v[28:31] offset:%d' % (FS - CX))
a('s_mov_b64 exec, 1')
a('ds_add_rtn_u32 %s, %s, %s offset:%d' % (vF, vLB, vOne, F_FS - LB))
a('s_mov_b64 exec, -1')
for k in range(4):
    a('ds_read_b128 %s, v34 offset:%d' % (v(36 + 4 * k, 4), FS - LB + 256 * k))
a('s_waitcnt lgkmcnt(0)')
a('v_readfirstlane_b32 %s, %s' % (sT0, vF))
a('s_cmp_lg_u32 %s, 3' % sT0)
a('s_cbranch_scc1 L_nofp')
a('s_cmp_eq_u32 %s, 0' % sFM)
a('s_cbranch_scc1 L_nofp')
pkadd(36, 36, 40); pkadd(38, 38, 42); pkadd(44, 44, 48); pkadd(46, 46, 50); pkadd(36, 36, 44); pkadd(38, 38, 46)
tag4(36, 'v53')
setexec(0xffffffff)
a('global_store_dwordx4 %s, v[36:39], %s sc1' % (vFPA, pWS))
setexec(-1)
a.label('L_nofp')
issue_tail(26)
stamp(6)
reprefetch(160)
reprefetch(164)
SA = 184
for k in range(16):
    a('v_mov_b32 %s, 0' % v(SA + k))
a('v_mov_b32 v52, 0')
a('s_lshl_b32 %s, %s, 7' % (sT0, sW))
a('s_add_u32 %s, %s, 0x%x' % (sT0, sT0, CL))
a('v_lshl_add_u32 v54, %s, 4, %s' % (vR8, sT0))
a('s_lshl_b32 %s, %s, 2' % (sT0, sCQ))
a('v_add_u32 v55, %s, %s' % (sT0, vI))
a('v_and_b32 v55, 15, v55')
a('v_lshl_add_u32 v55, v55, 2, %s' % vG)
a('v_lshlrev_b32 v55, 2, v55')
a('v_add_u32 v55, 0x%x, v55' % CX)
a('s_lshl_b32 %s, s2, 14' % sT0)
a('s_lshl_b32 %s, %s, 12' % (sT1, sW))
a('s_add_u32 %s, %s, %s' % (sT0, sT0, sT1))
a('s_add_u32 %s, %s, 0x%x' % (sT0, sT0, W_SP))
a('v_add_u32 v60, %s, %s' % (sT0, vL16))
a('v_and_b32 v61, 3, %s' % vLane)
a('v_lshl_add_u32 v61, %s, 2, v61' % vG)
a('v_lshlrev_b32 v61, 4, v61')
a('s_lshl_b32 %s, %s, 8' % (sT0, sW))
a('s_add_u32 %s, %s, 0x%x' % (sT0, sT0, FIN))
a('v_add_u32 v61, %s, v61' % sT0)
a('v_lshlrev_b32 v62, 2, %s' % vLane)
a('v_add_u32 v62, 0x%x, v62' % FIN)
a('s_lshl_b32 %s, s2, 4' % sT0)
a('s_and_b32 %s, %s, 0x3f0' % (sT0, sT0))
a('v_lshl_add_u32 v63, %s, 1, %s' % (vCH, sT0))
a('v_add_u32 v20, %s, v63' % vLB)
a('ds_read_u16 v21, v20 offset:%d' % (XR - LB))
a('s_mov_b32 s94, 0x000f000f')
a('s_mov_b32 s95, 0x000f000f')
a('s_waitcnt vmcnt(0)')
stamp(7)
assert TB
a('s_lshl_b32 %s, %s, 9' % (sT0, sT3))
a('s_add_u32 %s, %s, 0x%x' % (sT0, sT0, W_FP))
a('v_and_b32 v14, 0x1f0, %s' % vL16)
a('v_add_u32 v14, %s, v14' % sT0)
spin(F_G3, 1, sleep=2)
a('global_load_dwordx4 v[36:39], v14, %s sc1' % pWS)
issue_tail(14, False)
spin(F_G3, 4, sleep=1)
issue_tail(26, False)
a('s_cmp_eq_u32 %s, 0' % sFM)
a('s_waitcnt vmcnt(%d)' % (26 - NTA))
a('s_cbranch_scc1 L_nof2')
a('s_branch L_fchk')
Lr = a.newlabel('fhop'); Ld = a.newlabel('fhopd')
a.label(Lr)
a('global_load_dwordx4 v[36:39], v14, %s sc1' % pWS)
a('s_waitcnt vmcnt(0)')
a.label('L_fchk')
chk4('v15', 36, True)
a('v_and_b32 v15, 0xff, v15')
a('v_cmp_ne_u32 vcc, 0, v15')
retry_tail(Lr, Ld, sleep=FSLEEP)
for rr in (4, 8):
    for k in range(4):
        dppop('v_add_f32', v(36 + k), 'row_ror:%d' % rr)
for k in range(4):
    a('v_mov_b32 %s, %s' % (v(40 + k), v(36 + k)))
for k in range(4):
    a('v_permlane16_swap_b32 %s, %s' % (v(36 + k), v(40 + k)))
for k in range(4):
    a('v_add_f32 %s, %s, %s' % (v(36 + k), v(36 + k), v(40 + k)))
a('v_mov_b32_dpp v36, v37 quad_perm:[0,1,2,3] row_mask:0x2 bank_mask:0xf')
a('v_mov_b32_dpp v36, v38 quad_perm:[0,1,2,3] row_mask:0x4 bank_mask:0xf')
a('v_mov_b32_dpp v36, v39 quad_perm:[0,1,2,3] row_mask:0x8 bank_mask:0xf')
rnd_bf16('v36', 'v36')
a('v_mov_b32_dpp v37, v36 quad_perm:[2,3,2,3] row_mask:0xf bank_mask:0xf')
a('v_mul_f32 v38, v36, v36')
a('v_mov_b32 v39, 0x3d372713')
a('v_fma_f32 v38, v38, v39, 1.0')
a('v_mul_f32 v38, v38, v36')
a('v_mul_f32 v38, 0xc0135761, v38')
a('v_exp_f32 v38, v38')
a('v_add_f32 v38, 1.0, v38')
a('v_rcp_f32 v38, v38')
a('v_mul_f32 v38, v38, v36')
rnd_bf16('v38', 'v38')
a('v_mul_f32 v38, v38, v37')
a('v_cvt_pk_bf16_f32 v52, v38, v38')
a.label('L_nof2')
stamp(8)
OUT = 56
for t in range(2):
    for r in range(4):
        a('v_and_b32_dpp %s, v52, %s row_newbcast:%d row_mask:0xf bank_mask:0xc' % (v(SA + 8 + 4 * t + r), vM[r], t))
a('s_setprio 2')
spin(F_CL, 4, reads=['ds_read_b128 v[24:27], %s offset:%d' % (vLB, ML - LB), 'ds_read_b128 v[28:31], %s offset:%d' % (vLB, ML + 16 - LB)]
     + ['ds_read_b128 %s, v54 offset:%d' % (v(36 + 4 * k, 4), 512 * k) for k in range(4)], sleep=1)
stamp(9)
a('v_max3_f32 v14, v24, v25, v26')
a('v_max_f32 v14, v14, v27')
for k in range(4):
    a('v_sub_f32 %s, %s, v14' % (v(24 + k), v(24 + k)))
for k in range(4):
    a('v_exp_f32 %s, %s' % (v(24 + k), v(24 + k)))
a('v_mul_f32 v14, v24, v28')
a('v_mul_f32 v15, v25, v29')
a('v_fmac_f32 v14, v26, v30')
a('v_fmac_f32 v15, v27, v31')
a('v_add_f32 v14, v14, v15')
a('v_rcp_f32 v14, v14')
for t in range(4):
    a('v_mul_f32 %s, v24, %s' % (v(36 + t), v(36 + t)))
for k in range(1, 4):
    for t in range(4):
        a('v_fmac_f32 %s, %s, %s' % (v(36 + t), v(24 + k), v(36 + 4 * k + t)))
for t in range(4):
    a('v_mul_f32 %s, v14, %s' % (v(36 + t), v(36 + t)))
for t in range(4):
    a('v_cvt_pk_bf16_f32 %s, %s, %s' % (v(24 + t), v(36 + t), v(36 + t)))
for t in range(4):
    for r in range(4):
        a('v_and_b32 %s, %s, %s' % (v(FA + 4 * t + r), v(24 + t), vM[r]))
    if t >= 1:
        mfma(28, FA + 4 * (t - 1), WUV + 4 * (t - 1), None if t == 1 else 28)
mfma(28, FA + 12, WUV + 12, 28)
a('s_mov_b64 exec, %s' % mVALID)
a('ds_write_b128 v32, v[28:31]')
flag_add(F_CX)
spin(F_CX, 4, reads=['ds_read2st64_b32 %s, v55 offset0:%d offset1:%d' % (v(36 + 2 * k, 2), 2 * k, 2 * k + 1) for k in range(4)])
stamp(10)
sum8('v24', 36)
a('v_cvt_pk_bf16_f32 v24, v24, v24')
for t in range(16):
    s = SA + 4 * (t & 1)
    for r in range(4):
        a('v_and_b32_dpp %s, v24, %s row_newbcast:%d row_mask:0xf bank_mask:0x3' % (v(s + r), vM[r], t))
    if t >= 1:
        if TB and t - 1 >= 4:
            a('s_waitcnt vmcnt(%d)' % (15 - (t - 1)))
        mfma(OUT, SA + 4 * ((t - 1) & 1), WO + 4 * (t - 1), None if t == 1 else OUT)
        if t == 5:
            mfma(OUT, SA + 8, WD, OUT)
            mfma(OUT, SA + 12, WD + 4, OUT)
a('s_waitcnt vmcnt(0)')
mfma(OUT, SA + 4, WO + 60, OUT)
tag4(OUT, 'v53')
a('global_store_dwordx4 %s, %s, %s sc1' % (vSPA, v(OUT, 4), pWS))
stamp(11)
a('s_cmp_gt_u32 s2, 63')
a('s_cbranch_scc1 L_sdone')
if GATE5:
    a('s_lshl_b32 %s, %s, 10' % (sT0, sW))
    a('s_add_u32 %s, %s, 0x%x' % (sT0, sT0, W_F5))
    a('v_and_b32 v14, 3, %s' % vLane)
    a('v_lshl_add_u32 v14, v14, 8, %s' % sT0)
    a('s_movk_i32 %s, 64' % sT4)
    a.label('L_f5')
    a('global_load_dword v15, v14, %s sc1' % pWS)
    a('s_waitcnt vmcnt(0)')
    a('v_cmp_ne_u32 vcc, %s, v15' % sEp)
    a('s_cbranch_vccz L_f5d')
    a('s_sub_u32 %s, %s, 1' % (sT4, sT4))
    a('s_cbranch_scc0 L_f5')
    a.label('L_f5d')
else:
    a('s_waitcnt vmcnt(0)')
stamp(12)
Lr = a.newlabel('fin'); Ld = a.newlabel('find')
a.label(Lr)
for k in range(4):
    a('global_load_dwordx4 %s, v60, %s offset:%d sc1' % (v(64 + 4 * k, 4), pWS, 1024 * k))
for k in range(4):
    a('s_waitcnt vmcnt(%d)' % (3 - k))
    chk4('v22', 64 + 4 * k, k == 0)
    if k == 1:
        pkadd(64, 64, 68); pkadd(66, 66, 70)
a('v_and_b32 v22, 0xff, v22')
a('v_cmp_ne_u32 vcc, 0, v22')
pkadd(72, 72, 76); pkadd(74, 74, 78); pkadd(64, 64, 72); pkadd(66, 66, 74)
retry_tail(Lr, Ld, sleep=4)
stamp(13)
for rr in (4, 8):
    for k in range(4):
        dppop('v_add_f32', v(64 + k), 'row_ror:%d' % rr)
a('s_mov_b64 exec, %s' % mT0)
a('ds_write_b128 v61, v[64:67]')
a('s_mov_b64 exec, 1')
a('ds_add_rtn_u32 %s, %s, %s offset:%d' % (vF, vLB, vOne, F_FIN - LB))
a('s_mov_b64 exec, -1')
a('ds_read2st64_b32 v[22:23], v62 offset0:0 offset1:1')
a('ds_read2st64_b32 v[24:25], v62 offset0:2 offset1:3')
a('s_waitcnt lgkmcnt(0)')
a('v_readfirstlane_b32 %s, %s' % (sT0, vF))
pkadd(22, 22, 24)
a('s_cmp_lg_u32 %s, 3' % sT0)
a('s_cbranch_scc1 L_sdone')
a('v_add_f32 v22, v22, v23')
crossrow('v_add_f32', 'v22', 'v23')
rnd_bf16('v22', 'v22')
a('v_mul_f32 v24, 0xbfb8aa3b, v22')
a('v_exp_f32 v24, v24')
a('v_add_f32 v24, 1.0, v24')
a('v_rcp_f32 v24, v24')
a('v_mul_f32 v24, v24, v22')
rnd_bf16('v24', 'v24')
a('v_lshlrev_b32 v21, 16, v21')
a('v_mul_f32_dpp v24, v24, v22 row_ror:8 row_mask:0xf bank_mask:0xf')
rnd_bf16('v24', 'v24')
a('v_add_f32 v24, v24, v21')
a('v_cvt_pk_bf16_f32 v24, v24, v24')
setexec(0xff)
a('global_store_short v63, v24, %s' % pOUT)
stamp(14)
a('s_cmp_lg_u32 s2, 0')
a('s_cbranch_scc1 L_sdone')
a('v_mov_b32 v14, 0')
a('v_mov_b32 v15, %s' % sEp)
a('s_mov_b64 exec, 1')
a('global_store_dword v14, v15, %s sc1' % pWS)
a.label('L_sdone')
dump_stamps()
a('s_endpgm')

a.label('L_front')
ROLE[0] = 'f'
common_consts()
a('s_lshl_b32 %s, %s, 9' % (sT0, sW))
a('s_add_u32 %s, %s, 0x%x' % (sT0, sT0, XT))
a('v_lshl_add_u32 v14, %s, 6, %s' % (vR8, sT0))
for k in range(4):
    a('s_add_u32 %s, %s, %d' % (sT0, sCQ, k))
    a('s_and_b32 %s, %s, 3' % (sT0, sT0))
    a('s_lshl_b32 %s, %s, 4' % (sT0, sT0))
    a('v_add_u32 %s, %s, v14' % (v(56 + k), sT0))
spin(F_XT, 1, reads=['ds_read_b128 %s, %s' % (v(XD + 4 * k, 4), v(56 + k)) for k in range(4)])
stamp(2)
make_tags()
fill = []


def run_fill(n):
    for _ in range(n):
        if fill:
            a(fill.pop(0))


part_waddr('v22', QSUM)
a('v_lshrrev_b32 v23, 3, %s' % vI)
a('v_lshl_add_u32 v23, v23, 2, %s' % vG)
a('v_lshl_add_u32 v23, v23, 3, %s' % vCH)
a('v_lshlrev_b32 v23, 2, v23')
a('v_add_u32 v23, 0x%x, v23' % QSUM)
a('v_and_b32 v14, 3, %s' % vI)
a('v_xor_b32 v20, %s, v14' % vG)
a('v_lshlrev_b32 v20, 4, v20')
a('v_lshl_or_b32 v20, v14, 7, v20')
a('v_lshrrev_b32 v14, 2, %s' % vI)
a('v_lshl_or_b32 v20, v14, 10, v20')
a('s_lshl_b32 %s, %s, 12' % (sT0, sW))
a('s_add_u32 %s, %s, 0x%x' % (sT0, sT0, QL))
a('v_add_u32 v20, %s, v20' % sT0)
a('v_xor_b32 v21, 64, v20')
TP = 208
a('s_lshl_b32 %s, %s, 2' % (sT0, sW))
a('v_add_u32 v14, %s, %s' % (sT0, vG))
a('v_mul_u32_u24 v14, 37, v14')
a('v_add_u32 v14, %s, v14' % sTag[0])
a('v_and_b32 v14, 0xff, v14')
a('v_lshl_or_b32 %s, v14, 15, v14' % v(TP))
for r in range(1, 4):
    a('v_lshrrev_b32 %s, %d, %s' % (v(TP + r), 2 * r, v(TP)))
a('v_not_b32 v14, v14')
for k in range(8):
    a('v_bfe_u32 %s, v14, %d, 1' % (v(TP + 4 + k), k))
    a('v_lshlrev_b32 %s, 16, %s' % (v(TP + 4 + k), v(TP + 4 + k)))
a('v_mov_b32 v26, 0x10001')
a('s_mov_b32 %s, 0x07060302' % sT5)
for t in range(16):
    s = AP + 4 * (t & 1)
    for r in range(4):
        a('v_and_b32 %s, %s, %s' % (v(s + r), v(XD + t), vM[r]))
    if t >= 1:
        a('s_waitcnt vmcnt(%d)' % (15 - (t - 1) + (4 if t - 1 < 4 else 0)))
        mfma(ACCQ, AP + 4 * ((t - 1) & 1), WQ + 4 * (t - 1), None if t == 1 else ACCQ)
    if t == 5:
        a('ds_read_b128 %s, v20' % v(WUK, 4))
        a('ds_read_b128 %s, v21' % v(WUK + 4, 4))
        a('ds_read_b128 %s, v21 offset:512' % v(WUK + 8, 4))
        a('ds_read_b128 %s, v20 offset:512' % v(WUK + 12, 4))
a('s_waitcnt vmcnt(0)')
mfma(ACCQ, AP + 4, WQ + 60, ACCQ)
stamp(3)
a('s_lshl2_add_u32 %s, %s, %s' % (sT0, sHG, sW))
a('s_lshl_b32 %s, %s, 13' % (sT0, sT0))
a('s_add_u32 %s, %s, 0x%x' % (sT0, sT0, W_QP + 4096))
a('v_and_b32 v27, 1, %s' % vG)
a('v_lshlrev_b32 v28, 3, v27')
a('v_lshlrev_b32 v27, 10, v27')
a('v_lshl_or_b32 v27, %s, 4, v27' % vI)
a('v_lshrrev_b32 v24, 5, %s' % vLane)
a('v_lshl_or_b32 v27, v24, 8, v27')
a('v_lshl_or_b32 v28, v24, 8, v28')
a('v_add_u32 v27, %s, v27' % sT0)
a('v_and_b32 v24, 1, %s' % vLane)
a('s_mov_b64 exec, %s' % mVALID)
a('ds_write_b128 v22, %s' % v(ACCQ, 4))
flag_add(F_QS)
spin(F_QS, 4, reads=['ds_read2st64_b32 %s, v23 offset0:%d offset1:%d' % (v(QR + 2 * k, 2), 2 * k, 2 * k + 1) for k in range(4)])
stamp(4)
sum8('v14', QR)
a('v_mov_b32_dpp v15, v14 quad_perm:[1,0,3,2] row_mask:0xf bank_mask:0xf')
a('v_cvt_pk_bf16_f32 v14, v14, v15')
for k in range(8):
    a('v_mov_b32_dpp %s, v14 row_newbcast:%d row_mask:0xf bank_mask:0xf' % (v(QB + k), 2 * k))
mfma(D2, WUK, QB, None)
mfma(D2 + 4, WUK + 8, QB, None)
mfma(D2, WUK + 4, QB + 4, D2)
mfma(D2 + 4, WUK + 12, QB + 4, D2 + 4)
a('v_mul_u32_u24 v29, 1040, %s' % vI)
a('v_add_u32 v29, v28, v29')
a('s_lshl_b32 %s, %s, 6' % (sT0, sW))
a('s_add_u32 %s, %s, 0x%x' % (sT0, sT0, QL))
a('v_add_u32 v29, %s, v29' % sT0)
TC = 244
a('v_mul_u32_u24 v14, 37, %s' % vI)
a('v_add_u32 v14, %s, v14' % sTag[0])
a('v_and_b32 v14, 0xff, v14')
a('v_lshl_or_b32 %s, v14, 15, v14' % v(TC))
for k in range(8):
    a('v_add_u32 %s, %s, %s' % (v(D2 + k), v(TP + 4 + k), v(D2 + k)))
for r in range(4):
    a('v_perm_b32 %s, %s, %s, %s' % (v(D2 + r), v(D2 + 2 * r + 1), v(D2 + 2 * r), sT5))
for r in range(4):
    a('v_bfi_b32 %s, v26, %s, %s' % (v(D2 + r), v(TP + r), v(D2 + r)))
setexec(0x0001000100010001)
a('global_store_dwordx4 v25, %s, %s sc1' % (v(D2, 4), pWS))
setexec(-1)
for r in range(1, 4):
    a('v_lshrrev_b32 %s, %d, %s' % (v(TC + r), 2 * r, v(TC)))
SEL = 248
a('v_mov_b32 v14, 0x3f803f80')
a('v_cndmask_b32 v14, 0, v14, %s' % mVALID)
for r in range(4):
    a('v_and_b32 %s, v14, %s' % (v(SEL + r), vM[r]))
stamp(5)
QF = 32; PV0 = 96; PV1 = 160; ACC = 224; SD = 16
G = 32; AF0 = PV0; AF1 = PV1
a('v_lshlrev_b32 v14, 1, %s' % vCH)
a('v_lshrrev_b32 v15, 3, %s' % vI)
a('v_or_b32 v14, v14, v15')
a('v_lshlrev_b32 v30, 10, %s' % vI)
a('v_lshl_or_b32 v30, %s, 8, v30' % vG)
a('v_lshl_or_b32 v30, v14, 4, v30')
a('s_lshl_b32 %s, %s, 14' % (sT0, sW))
a('v_add_u32 v30, %s, v30' % sT0)
for ks in range(16):
    a('v_xor_b32 %s, %d, v30' % (v(ACC + ks), ks * 16))
a('v_lshrrev_b32 v14, 2, %s' % vLane)
a('v_and_b32 v15, 7, v14')
a('v_lshlrev_b32 v15, 1, v15')
a('v_lshrrev_b32 v31, 3, v14')
a('v_or_b32 v15, v15, v31')
a('v_bfe_u32 v31, %s, 1, 1' % vLane)
a('s_lshl_b32 %s, %s, 2' % (sT0, sW))
a('v_or_b32 v31, %s, v31' % sT0)
a('v_xor_b32 v15, v15, v31')
a('v_lshlrev_b32 v14, 10, v14')
a('v_lshl_or_b32 v14, v15, 4, v14')
a('v_lshl_or_b32 v24, v24, 3, v14')
a('v_xor_b32 v25, 32, v24')
a('v_add_u32 v31, %s, %s' % (vLB, vL16))
a('s_lshl3_add_u32 %s, %s, %s' % (sT3, sHG, sX))
a('s_lshl_b32 %s, %s, 8' % (sT3, sT3))
a('s_add_u32 %s, %s, 0x%x' % (sT3, sT3, W_C3))
a('v_mov_b32 v30, %s' % sT3)
a('s_mov_b32 %s, 63' % sTodo)
reprefetch(96)
spin(F_H0, 4, sleep=1)
for ks in range(16):
    a('ds_read_b128 %s, %s' % (v(AF0 + 4 * ks, 4), v(ACC + ks)))
    a('v_add_u32 %s, %s, %s' % (v(ACC + ks), sK64, v(ACC + ks)))
spin(F_DI, 4, sleep=1)
a('s_waitcnt vmcnt(0)')
stamp(6)
a.label('L_h2')
for hh in range(4):
    a('s_bitcmp0_b32 %s, %d' % (sTodo, hh))
    a('s_cbranch_scc1 L_h2i%d' % hh)
    for dh in range(2):
        a('global_load_dwordx4 %s, v27, %s offset:%d sc1' % (v(G + 16 * hh + 4 * dh, 4), pWS, hh * 2048 + dh * 512 - 4096))
    a.label('L_h2i%d' % hh)
a('s_bitcmp1_b32 %s, 4' % sTodo)
a('s_cbranch_scc1 L_h2f')
a('s_waitcnt vmcnt(0)')
a('s_branch L_h2g')
a.label('L_h2f')
a('s_bitset0_b32 %s, 4' % sTodo)
a('s_waitcnt vmcnt(7)')
a.label('L_h2g')


def try_af1(lbl):
    a('s_bitcmp0_b32 %s, 5' % sTodo)
    a('s_cbranch_scc1 %s' % lbl)
    a('ds_read_b32 %s, %s offset:%d' % (vF, vLB, F_H1 - LB))
    a('s_waitcnt lgkmcnt(0)')
    a('v_readfirstlane_b32 %s, %s' % (sT0, vF))
    a('s_cmp_lt_u32 %s, 4' % sT0)
    a('s_cbranch_scc1 %s' % lbl)
    for ks in range(16):
        a('ds_read_b128 %s, %s' % (v(AF1 + 4 * ks, 4), v(ACC + ks)))
    a('s_bitset0_b32 %s, 5' % sTodo)
    a.label(lbl)


try_af1('L_h2w')
for hh in range(4):
    a('s_bitcmp0_b32 %s, %d' % (sTodo, hh))
    a('s_cbranch_scc1 L_h2p%d' % hh)
    A_, B_, T_ = G + 16 * hh, G + 16 * hh + 4, G + 16 * hh + 8
    a('s_waitcnt vmcnt(%d)' % (7 - 2 * hh))
    mfma(T_, SEL, A_, None)
    a('s_waitcnt vmcnt(%d)' % (6 - 2 * hh))
    mfma(T_ + 4, SEL, B_, None)
    for r in range(4):
        a('v_bitop3_b32 %s, %s, %s, %s bitop3:0x7e' % (v(A_ + r), v(A_ + r), v(B_ + r), v(TC + r)))
    a('v_or3_b32 v14, %s, %s, %s' % (v(A_), v(A_ + 1), v(A_ + 2)))
    a('v_or_b32 v14, v14, %s' % v(A_ + 3))
    a('v_and_b32 v14, 0x10001, v14')
    a('v_cmp_ne_u32 vcc, 0, v14')
    for r in range(4):
        a('v_cvt_pk_bf16_f32 %s, %s, %s' % (v(B_ + r), v(T_ + 2 * r), v(T_ + 2 * r + 1)))
    a('ds_write_b64 v29, %s offset:%d' % (v(B_, 2), hh * 16))
    a('ds_write_b64 v29, %s offset:%d' % (v(B_ + 2, 2), 512 + hh * 16))
    a('s_cbranch_vccnz L_h2p%d' % hh)
    a('s_bitset0_b32 %s, %d' % (sTodo, hh))
    a.label('L_h2p%d' % hh)
a('s_and_b32 %s, %s, 15' % (sT0, sTodo))
a('s_cbranch_scc0 L_h2d')
a('s_waitcnt lgkmcnt(0)')
a('s_sleep 2')
a('s_sub_u32 %s, %s, 1' % (sBudG, sBudG))
a('s_cbranch_scc0 L_h2')
a('s_mov_b32 %s, 0' % sBudG)
a.label('L_h2d')
if STAMPS:
    a('s_sub_u32 s100, 8193, %s' % sBudG)
flag_add(F_QL)
stamp(7)
try_af1('L_h2w2')
spin(F_QL, 4)
stamp(8)
for ks in range(16):
    a('ds_read_b128 %s, v31 offset:%d' % (v(QF + 4 * ks, 4), QL - LB + ks * 1040))
a('s_bitcmp0_b32 %s, 5' % sTodo)
a('s_cbranch_scc1 L_haveaf1')
spin(F_H1, 4)
for ks in range(16):
    a('ds_read_b128 %s, %s' % (v(AF1 + 4 * ks, 4), v(ACC + ks)))
a.label('L_haveaf1')
stamp(9)
if GATE3:
    a('s_cmp_lg_u32 %s, 1' % sW)
    a('s_cbranch_scc1 L_noat')
    a('s_mov_b64 exec, 1')
    a('global_atomic_add v0, v30, %s, %s sc0 sc1' % (vOne, pWS))
    a('s_mov_b64 exec, -1')
    a.label('L_noat')


def tr_read(t, sg, tau, part):
    base = (PV0 if t == 0 else PV1) + (sg * 8 + tau) * 4 + 2 * part
    k, e = tau >> 1, tau & 1
    areg = ('v24', 'v25') if t == 0 else ('v26', 'v27')
    a('ds_read_b64_tr_b16 %s, %s offset:%d' % (v(base, 2), areg[e], (2 * sg + part) * 16384 + k * 256))


a('v_add_u32 v26, %s, v24' % sK64)
a('v_add_u32 v27, %s, v25' % sK64)


def round_scores(d):
    if MIMIC:
        for r in (0, 2):
            a('v_cvt_pk_bf16_f32 %s, %s, %s' % (v(d + r + 1), v(d + r), v(d + r + 1)))
        for r in (0, 2):
            a('v_lshlrev_b32 %s, 16, %s' % (v(d + r), v(d + r + 1)))
            a('v_and_b32 %s, 0xffff0000, %s' % (v(d + r + 1), v(d + r + 1)))
    for r in range(4):
        a('v_mul_f32 %s, 0x3db504f3, %s' % (v(d + r), v(d + r)))
    for r in (0, 2):
        a('v_cvt_pk_bf16_f32 %s, %s, %s' % (v(d + r + 1), v(d + r), v(d + r + 1)))
    for r in (0, 2):
        a('v_lshlrev_b32 %s, 16, %s' % (v(d + r), v(d + r + 1)))
        a('v_and_b32 %s, 0xffff0000, %s' % (v(d + r + 1), v(d + r + 1)))


trs = [(sg, tau, part) for sg in range(2) for tau in range(8) for part in range(2)]
fill = ['v_lshl_add_u32 v28, %s, 2, %s' % (vI, vLB),
        's_lshr_b32 %s, %s, 1' % (sT0, sW), 's_lshl_b32 %s, %s, 11' % (sT0, sT0), 's_and_b32 %s, %s, 1' % (sT1, sW),
        's_lshl3_add_u32 %s, %s, %s' % (sT0, sT1, sT0), 'v_add_u32 v29, %s, v31' % sT0, 'v_mov_b32 v15, 0x3fb8aa3b',
        'v_mul_u32_u24 v240, 80, %s' % vI, 'v_add_u32 v240, 0x%x, v240' % LS, 'v_lshl_add_u32 v241, %s, 2, v240' % vG,
        's_lshl_b32 %s, %s, 4' % (sT0, sW), 'v_add_u32 v241, %s, v241' % sT0]
for ks in range(16):
    a('s_waitcnt lgkmcnt(%d)' % (15 - ks))
    mfma(SD, AF0 + 4 * ks, QF + 4 * ks, None if ks == 0 else SD)
    run_fill(1)
assert not fill
import io
_save = a.emit
_buf = []
a.emit = lambda t: _buf.append(t)
round_scores(SD)
a('v_max3_f32 v14, %s, %s, %s' % (v(SD), v(SD + 1), v(SD + 2)))
a('v_max_f32 v14, v14, %s' % v(SD + 3))
a.emit = _save
fill = _buf
for ks in range(16):
    mfma(SD + 4, AF1 + 4 * ks, QF + 4 * ks, None if ks == 0 else SD + 4)
    tr_read(0, *trs.pop(0)); tr_read(0, *trs.pop(0))
    if ks >= 3:
        run_fill(2)
assert not fill
round_scores(SD + 4)
a('v_max3_f32 v14, v14, %s, %s' % (v(SD + 4), v(SD + 5)))
a('v_max3_f32 v14, v14, %s, %s' % (v(SD + 6), v(SD + 7)))
a('ds_max_f32 v28, v14 offset:%d' % (MX - LB))
flag_add(F_MX)
spin(F_MX, 4, reads=['ds_read_b32 v52, v28 offset:%d' % (MX - LB)])
stamp(10)
a('v_mul_f32 v14, 0xbfb8aa3b, v52')
for r in range(8):
    a('v_fma_f32 %s, %s, v15, v14' % (v(SD + r), v(SD + r)))
for r in range(8):
    a('v_exp_f32 %s, %s' % (v(SD + r), v(SD + r)))
PF = QF
for r in range(4):
    a('v_cvt_pk_bf16_f32 %s, %s, %s' % (v(48 + r), v(SD + 2 * r), v(SD + 2 * r + 1)))
a('ds_write_b64 v29, v[48:49] offset:%d' % (PL - LB))
a('ds_write_b64 v29, v[50:51] offset:%d' % (PL - LB + 1024))
sum8('v14', SD)
a('ds_write_b32 v241, v14')
flag_add(F_P)
LR = 64
spin(F_P, 4, reads=['ds_read_b128 %s, v31 offset:%d' % (v(PF + 4 * k, 4), PL - LB + 1024 * k) for k in range(4)]
     + ['ds_read_b128 %s, v240 offset:%d' % (v(LR + 4 * k, 4), 16 * k) for k in range(4)])
stamp(11)


def last_check(n):
    a('s_cmp_lg_u32 %s, 1' % sW)
    a('s_cbranch_scc1 L_nolast')
    a('s_waitcnt vmcnt(%d)' % n)
    a('v_readfirstlane_b32 %s, v0' % sT4)
    a('s_sub_u32 %s, %s, %s' % (sT4, sT4, sEp))
    a('s_cmp_lg_u32 %s, 15' % sT4)
    a('s_cbranch_scc1 L_nolast')
    a('s_add_u32 %s, %s, 0x%x' % (sT3, sT3, W_F3 - W_C3))
    a('v_mov_b32 v22, %s' % sT3)
    a('v_mov_b32 v23, %s' % sEp)
    a('s_mov_b64 exec, 1')
    a('global_store_dword v22, v23, %s sc1' % pWS)
    stamp(1)
    a('s_mov_b64 exec, -1')
    a.label('L_nolast')


if GATE3 and CHK == 0:
    last_check(0)
fill = []
for k in range(0, 8, 2):
    fill.append('v_pk_add_f32 %s, %s, %s' % (v(LR + k, 2), v(LR + k, 2), v(LR + 8 + k, 2)))
fill += ['v_pk_add_f32 %s, %s, %s' % (v(LR, 2), v(LR, 2), v(LR + 2, 2)), 'v_pk_add_f32 %s, %s, %s' % (v(LR + 4, 2), v(LR + 4, 2), v(LR + 6, 2)),
         'v_pk_add_f32 %s, %s, %s' % (v(LR, 2), v(LR, 2), v(LR + 4, 2)), 'v_add_f32 v53, %s, %s' % (v(LR), v(LR + 1)),
         'v_mov_b32 v14, 0xffff', 'v_bfi_b32 v52, v14, %s, v52' % sEp, 's_lshr_b32 %s, %s, 16' % (sT5, sEp),
         'v_mov_b32 v14, 0xfff', 'v_bfi_b32 v53, v14, %s, v53' % sT5,
         's_and_b32 %s, %s, 0x63' % (sT0, sKB), 's_and_b32 %s, %s, 3' % (sT1, sKB), 's_mul_i32 %s, %s, 7' % (sT1, sT1),
         's_add_u32 %s, %s, %s' % (sT0, sT0, sT1), 's_bfe_u32 %s, %s, 0x30002' % (sT1, sKB), 's_add_u32 %s, %s, %s' % (sT0, sT0, sT1),
         's_lshl_b32 %s, %s, 3' % (sT0, sT0), 's_lshl_b32 %s, %s, 14' % (sT1, sHG), 's_add_u32 %s, %s, %s' % (sT0, sT0, sT1),
         's_add_u32 %s, %s, 0x%x' % (sT0, sT0, W_ST), 'v_lshl_add_u32 v14, %s, 10, %s' % (vI, sT0)]
n = 0
for sg in range(2):
    for tau in range(8):
        mfma(ACC + 4 * tau, PF + 4 * (sg * 2 + 0), PV0 + (sg * 8 + tau) * 4, None if sg == 0 else ACC + 4 * tau)
        tr_read(1, sg, tau, 0); tr_read(1, sg, tau, 1)
        run_fill(3)
        n += 1
        if n == 8:
            assert not fill
            a('s_cmp_lg_u32 %s, 0' % sW)
            a('s_cbranch_scc1 L_nostat')
            setexec(0xffff)
            a('global_store_dwordx2 v14, v[52:53], %s sc1' % pWS)
            setexec(-1)
            a.label('L_nostat')
            if GATE3 and CHK == 1:
                last_check(0)
            fill = ['s_lshl_b32 %s, %s, 21' % (sT0, sHG), 's_lshl_b32 %s, %s, 15' % (sT1, sW), 's_add_u32 %s, %s, %s' % (sT0, sT0, sT1),
                    's_lshl_b32 %s, %s, 8' % (sT1, sKB), 's_add_u32 %s, %s, %s' % (sT0, sT0, sT1), 's_add_u32 %s, %s, 0x%x' % (sT0, sT0, W_OP),
                    'v_lshlrev_b32 v30, 19, %s' % vG, 'v_lshl_or_b32 v30, %s, 4, v30' % vI, 'v_add_u32 v30, %s, v30' % sT0,
                    'v_add_u32 v16, 0x20000, v30', 'v_add_u32 v17, 0x40000, v30', 'v_add_u32 v18, 0x60000, v30',
                    'v_mul_u32_u24 v56, 37, %s' % vI, 'v_add_u32 v56, %s, v56' % sTag[0], 'v_and_b32 v56, 0xff, v56', 'v_lshl_or_b32 v56, v56, 15, v56',
                    'v_lshrrev_b32 v57, 2, v56', 'v_lshrrev_b32 v58, 4, v56', 'v_lshrrev_b32 v59, 6, v56', 'v_mov_b32 v60, 0x10001',
                    's_lshl2_add_u32 %s, %s, %s' % (sT0, sH, sCQ), 's_lshl2_add_u32 %s, %s, %s' % (sT0, sT0, sW), 's_lshl_b32 %s, %s, 13' % (sT0, sT0),
                    's_add_u32 %s, %s, 0x%x' % (sT0, sT0, W_OP + 4096), 'v_add_u32 v61, %s, %s' % (sT0, vL16),
                    's_lshl2_add_u32 %s, %s, %s' % (sT0, sH, sW), 's_lshl_b32 %s, %s, 8' % (sT0, sT0), 's_add_u32 %s, %s, 0x%x' % (sT0, sT0, W_ST),
                    'v_lshl_add_u32 v62, %s, 3, %s' % (vG, vCH), 'v_lshl_add_u32 v62, v62, 3, %s' % sT0,
                    's_lshl_b32 %s, %s, 9' % (sT0, sW), 'v_add_u32 v63, %s, v31' % sT0]
for sg in range(2):
    for tau in range(8):
        idx = sg * 8 + tau
        a('s_waitcnt lgkmcnt(%d)' % min(15, 30 - 2 * idx))
        mfma(ACC + 4 * tau, PF + 4 * (sg * 2 + 1), PV1 + idx * 4, ACC + 4 * tau)
        run_fill(1)
assert not fill
OB = 64
for u in range(4):
    for r in range(4):
        a('v_cvt_pk_bf16_f32 %s, %s, %s' % (v(OB + 4 * r + u), v(ACC + 8 * u + r), v(ACC + 8 * u + 4 + r)))
    for r in range(4):
        a('v_bfi_b32 %s, v60, %s, %s' % (v(OB + 4 * r + u), v(56 + u), v(OB + 4 * r + u)))
for r, ar in enumerate(('v30', 'v16', 'v17', 'v18')):
    a('global_store_dwordx4 %s, %s, %s sc1' % (ar, v(OB + 4 * r, 4), pWS))
stamp(12)
HD_ = 96; HS = 128; HA = 136; HACC = 168
if GATE3:
    if CHK == 2:
        last_check(4)
    a('s_lshl2_add_u32 %s, %s, %s' % (sT0, sA, sW))
    a('s_lshl_b32 %s, %s, 9' % (sT0, sT0))
    a('s_add_u32 %s, %s, 0x%x' % (sT0, sT0, W_F3))
    a('v_and_b32 v19, 1, %s' % vLane)
    a('v_lshl_add_u32 v19, v19, 8, %s' % sT0)
    a('s_movk_i32 %s, 64' % sT4)
    if opt('ackfirst', 1):
        a('s_waitcnt vmcnt(0)')
        stamp(2)
    a.label('L_f3')
    a('global_load_dword v20, v19, %s sc1' % pWS)
    a('s_waitcnt vmcnt(0)')
    a('v_cmp_ne_u32 vcc, %s, v20' % sEp)
    a('s_cbranch_vccz L_f3d')
    if PSLEEP:
        a('s_sleep %d' % PSLEEP)
    a('s_sub_u32 %s, %s, 1' % (sT4, sT4))
    a('s_cbranch_scc0 L_f3')
    a.label('L_f3d')
    if STAMPS:
        a('s_sub_u32 s101, 65, %s' % sT4)
        a('s_lshl_b32 s101, s101, 8')
        a('s_or_b32 s100, s100, s101')
else:
    a('s_waitcnt vmcnt(0)')
stamp(13)
a('s_mov_b32 %s, 0' % sT2)
a('s_mov_b32 %s, 1' % sTodo)
a('s_branch L_h3')
a.label('L_st')
a('s_sleep 6')
a('s_sub_u32 %s, %s, 1' % (sBudG, sBudG))
a('s_cbranch_scc1 L_h3x')
a('global_load_dwordx2 %s, v62, %s sc1' % (v(HS, 2), pWS))
a('s_waitcnt vmcnt(0)')
a('v_xor_b32 v14, %s, %s' % (sEp, v(HS)))
a('v_xor_b32 v15, %s, %s' % (sT5, v(HS + 1)))
a('v_and_b32 v14, 0xffff, v14')
a('v_and_b32 v15, 0xfff, v15')
a('v_or_b32 v14, v14, v15')
a('v_cmp_ne_u32 vcc, 0, v14')
a('s_cbranch_vccnz L_st')
a.label('L_h3')
a('global_load_dwordx2 %s, v62, %s sc1' % (v(HS, 2), pWS))
for t in range(8):
    a('global_load_dwordx4 %s, v61, %s offset:%d sc1' % (v(HD_ + 4 * t, 4), pWS, 1024 * t - 4096))
a('v_mov_b32 v14, %s' % sTodo)
a('s_mov_b64 exec, 1')
a('ds_add_rtn_u32 %s, %s, v14 offset:%d' % (vF, vLB, F_G3 - LB))
if GATE5 and EARLY5:
    a('s_mov_b32 %s, 0' % sT4)
    a('s_waitcnt lgkmcnt(0)')
    a('v_readfirstlane_b32 %s, %s' % (sT0, vF))
    a('s_lshl2_add_u32 %s, %s, %s' % (sT0, sTodo, sT0))
    a('s_cmp_lg_u32 %s, 7' % sT0)
    a('s_cbranch_scc1 L_no5')
    a('s_lshr_b32 %s, s2, 4' % sT3)
    a('s_lshl_b32 %s, %s, 8' % (sT3, sT3))
    a('s_add_u32 %s, %s, 0x%x' % (sT3, sT3, W_C5))
    a('v_mov_b32 v22, %s' % sT3)
    a('global_atomic_add v0, v22, %s, %s sc0 sc1' % (vOne, pWS))
    a('s_mov_b32 %s, 1' % sT2)
    a('s_mov_b32 %s, 1' % sT4)
    a.label('L_no5')
a('s_mov_b64 exec, -1')
a('s_waitcnt vmcnt(8)')
a('v_xor_b32 v26, %s, %s' % (sEp, v(HS)))
a('v_xor_b32 v15, %s, %s' % (sT5, v(HS + 1)))
a('v_and_b32 v26, 0xffff, v26')
a('v_and_b32 v15, 0xfff, v15')
a('v_or_b32 v26, v26, v15')
a('v_and_b32 v16, 0xffff0000, %s' % v(HS))
a('v_mul_f32 v16, 0x3fb8aa3b, v16')
a('v_mov_b32 v14, v16')
for r in (4, 2, 1):
    dppop('v_max_f32', 'v14', 'row_ror:%d' % r)
crossrow('v_max_f32', 'v14', 'v15')
a('v_sub_f32 v16, v16, v14')
a('v_exp_f32 v16, v16')
a('v_mov_b32 v27, 0')
a('v_cvt_pk_bf16_f32 v16, v16, v16')
a('v_and_b32 v18, 0xffff0000, v16')
a('v_mul_f32 v18, v18, %s' % v(HS + 1))
for t in range(8):
    for r in range(4):
        a('v_and_b32_dpp %s, v16, %s row_newbcast:%d row_mask:0xf bank_mask:0xf' % (v(HA + 4 * t + r), vM[r], t))
    if t < 3:
        dppop('v_add_f32', 'v18', 'row_ror:%d' % (4 >> t))
crossrow('v_add_f32', 'v18', 'v15')
a('s_lshl_b32 %s, %s, 2' % (sT0, sW))
a('v_add_u32 v15, %s, %s' % (sT0, vLB))
a('s_mov_b64 exec, 1')
a('ds_write_b32 v15, v14 offset:%d' % (ML - LB))
a('ds_write_b32 v15, v18 offset:%d' % (ML + 16 - LB))
a('s_mov_b64 exec, -1')
a('s_mov_b32 %s, 0' % sTodo)
for t in range(8):
    if t == 7 and GATE5 and EARLY5:
        a('s_cmp_lg_u32 %s, 0' % sT4)
        a('s_cbranch_scc1 L_skipw')
    a('s_waitcnt vmcnt(%d)' % (7 - t))
    if t == 7 and GATE5 and EARLY5:
        a.label('L_skipw')
    mfma(HACC, HA + 4 * t, HD_ + 4 * t, None if t == 0 else HACC)
    for r in range(4):
        a('v_bitop3_b32 v27, v27, %s, %s bitop3:0xf6' % (v(HD_ + 4 * t + r), v(56 + r)))
a('v_and_or_b32 v27, v27, v60, v26')
a('v_cmp_ne_u32 vcc, 0, v27')
a('s_cbranch_vccnz L_st')
a.label('L_h3x')
setexec(0xffffffff)
a('ds_write_b128 v63, %s offset:%d' % (v(HACC, 4), CL - LB))
if GATE5 and EARLY5:
    flag_add(F_CL)
    stamp(14)
    a('s_cmp_eq_u32 %s, 0' % sT2)
    a('s_cbranch_scc1 L_fdone')
    a('v_add_u32 v16, 0x%x, v22' % (W_F5 - W_C5))
    a('v_mov_b32 v15, %s' % sEp)
    a('s_waitcnt vmcnt(0)')
    a('v_readfirstlane_b32 %s, v0' % sT0)
    a('s_sub_u32 %s, %s, %s' % (sT0, sT0, sEp))
    a('s_cmp_lg_u32 %s, 15' % sT0)
    a('s_cbranch_scc1 L_fdone')
    a('s_mov_b64 exec, 1')
    a('global_store_dword v16, v15, %s sc1' % pWS)
    a.label('L_fdone')
elif GATE5:
    a('s_mov_b64 exec, 1')
    a('ds_add_rtn_u32 %s, %s, %s offset:%d' % (vF, vLB, vOne, F_CL - LB))
    stamp(14)
    a('s_lshr_b32 %s, s2, 4' % sT3)
    a('s_lshl_b32 %s, %s, 8' % (sT3, sT3))
    a('s_add_u32 %s, %s, 0x%x' % (sT3, sT3, W_C5))
    a('v_mov_b32 v14, %s' % sT3)
    a('v_add_u32 v16, 0x%x, v14' % (W_F5 - W_C5))
    a('v_mov_b32 v15, %s' % sEp)
    a('s_waitcnt lgkmcnt(0)')
    a('v_readfirstlane_b32 %s, %s' % (sT0, vF))
    a('s_cmp_lg_u32 %s, 3' % sT0)
    a('s_cbranch_scc1 L_fdone')
    a('global_atomic_add v0, v14, %s, %s sc0 sc1' % (vOne, pWS))
    a('s_waitcnt vmcnt(0)')
    a('v_readfirstlane_b32 %s, v0' % sT0)
    a('s_sub_u32 %s, %s, %s' % (sT0, sT0, sEp))
    a('s_cmp_lg_u32 %s, 15' % sT0)
    a('s_cbranch_scc1 L_fdone')
    a('global_store_dword v16, v15, %s sc1' % pWS)
    a.label('L_fdone')
else:
    flag_add(F_CL)
    stamp(14)
dump_stamps()
a.label('L_end')
a('s_endpgm')
a.label('L_code_end')

hdr = open('cdna_kernels/%s.s.ref' % NAME).read().split('; Override launch geometry')[0]
src = hdr + '; @launch grid=(256,1,1) block=(512,1,1) lds=%d\n' % LDS_BYTES
src += '''.amdgcn_target "amdgcn-amd-amdhsa--gfx950"
.text
.globl {n}_kernel
.p2align 8
.type {n}_kernel,@function
{n}_kernel:
'''.format(n=NAME)
src += a.text()
src += '''.section .rodata,"a"
.p2align 6
.amdhsa_kernel {n}_kernel
  .amdhsa_next_free_vgpr 256
  .amdhsa_next_free_sgpr 102
  .amdhsa_accum_offset 256
  .amdhsa_group_segment_fixed_size 0
  .amdhsa_kernarg_size 104
  .amdhsa_user_sgpr_count 2
  .amdhsa_user_sgpr_kernarg_segment_ptr 1
  .amdhsa_system_sgpr_workgroup_id_x 1
.end_amdhsa_kernel
'''.format(n=NAME)
out = [x for x in sys.argv[1:] if not x.startswith('--')]
open(out[0] if out else 'cdna_kernels/%s.s' % NAME, 'w').write(src)
print('LDS', LDS_BYTES)
```
